```python
import torch

def _softmax(x, axis=-1):
    return torch.softmax(x, dim=axis)
def _gelu(x):
    return torch.nn.functional.gelu(x, approximate="tanh")
def _silu(x):
    return torch.nn.functional.silu(x)
def _sigmoid(x):
    return torch.sigmoid(x)
def _layernorm(x, axis=-1, eps=1e-5):
    m = x.mean(dim=axis, keepdim=True)
    v = x.var(dim=axis, keepdim=True, unbiased=False)
    return (x - m) / torch.sqrt(v + eps)
def _scatter_add(tgt, idx, src, axis=0):
    return tgt.clone().index_add_(axis, idx, src)
def _segment_sum(src, seg, n):
    out = torch.zeros((n,) + src.shape[1:], dtype=src.dtype)
    return out.index_add_(0, seg, src)
def _pad(x, pw):
    flat = tuple(v for pair in reversed(pw) for v in pair)
    return torch.nn.functional.pad(x, flat)

kernel_name = 'gated_mix__grouped_kv_mqa__dense_activation_relu__prompt'

def setup_inputs():

    _w = (lambda a: (lambda t: t.to(torch.bfloat16) if t.is_floating_point() else t)(torch.as_tensor(a)))
    def _A_setup():
        B, S, D, H = 1, 2048, 448, 16
        Dh = D // H
        return {
            "x": _w((lambda *s: torch.randn(*s, dtype=torch.bfloat16) * 0.05)(B, S, D)),
            "wq": _w((lambda *s: torch.randn(*s, dtype=torch.bfloat16) * 1.6)(D, H * Dh)),
            "wk": _w((lambda *s: torch.randn(*s, dtype=torch.bfloat16) * 1.6)(D, Dh)),
            "wv": _w((lambda *s: torch.randn(*s, dtype=torch.bfloat16) * 0.2)(D, Dh)),
            "wo": _w((lambda *s: torch.randn(*s, dtype=torch.bfloat16) * 0.2)(H * Dh, D)),
        }
    _A_in = _A_setup()

    def _B_setup():
        B, S, D, Dff = 1, 2048, 448, 1792
        return {
            "x": _w((lambda *s: torch.randn(*s, dtype=torch.bfloat16) * 0.05)(B, S, D)),
            "w1": _w((lambda *s: torch.randn(*s, dtype=torch.bfloat16) * 0.2)(D, Dff)),
            "w2": _w((lambda *s: torch.randn(*s, dtype=torch.bfloat16) * 0.2)(Dff, D)),
        }
    _B_in = _B_setup()

    return {
        "A_x": _A_in["x"],
        "A_wq": _A_in["wq"],
        "A_wk": _A_in["wk"],
        "A_wv": _A_in["wv"],
        "A_wo": _A_in["wo"],
        "B_x": _B_in["x"],
        "B_w1": _B_in["w1"],
        "B_w2": _B_in["w2"],
        "gate_w": _w((lambda *s: torch.randn(*s, dtype=torch.bfloat16) * 0.05)(448) * 16.0),
    }

def reference(A_x, A_wq, A_wk, A_wv, A_wo, B_x, B_w1, B_w2, gate_w):
    def _A_ref(x, wq, wk, wv, wo):
        B, S, D = x.shape
        H = 16
        Dh = D // H
        q = (lambda x, *d: x.permute(*d))((x @ wq).reshape(B, S, H, Dh), 0, 2, 1, 3)
        k = x @ wk
        v = x @ wv
        scores = torch.einsum("bhqd,bkd->bhqk", q, k) * (Dh ** -0.5)
        p = _softmax(scores, axis=-1)
        o = torch.einsum("bhqk,bkd->bhqd", p, v)
        return (lambda x, *d: x.permute(*d))(o, 0, 2, 1, 3).reshape(B, S, H * Dh) @ wo

    def _B_ref(x, w1, w2):
        h = torch.einsum("bsd,df->bsf", x, w1)
        zero = torch.zeros_like(h)
        h = torch.maximum(h, zero)
        return torch.einsum("bsf,fd->bsd", h, w2)

    x = A_x
    g = _sigmoid((x * gate_w).sum(-1, keepdims=True))
    a = _A_ref(x, A_wq, A_wk, A_wv, A_wo)
    b = _B_ref(x, B_w1, B_w2)
    return g * a + (1 - g) * b
```

```python
import sys, math, struct
NAME="gated_mix__grouped_kv_mqa__dense_activation_relu__prompt"
TS = "ts" in sys.argv
FORCE_FB = "fb" in sys.argv
L=[]
def e(s): L.append("  "+s)
def lab(s): L.append(s+":")
def f2u(x): return "0x%08x"%struct.unpack("<I",struct.pack("<f",x))[0]
class VM:
    def __init__(s): s.q=[]
    def op(s,tag,txt): e(txt); s.q.append(tag)
    def n(s,tag):
        idx=[i for i,t in enumerate(s.q) if t==tag]
        if not idx: return None
        return len(s.q)-1-idx[-1]
    def wait(s,tag):
        n=s.n(tag)
        if n is None: return
        n=min(n,63); e(f"s_waitcnt vmcnt({n})"); s.q=s.q[len(s.q)-n:] if n else []
    def all(s): e("s_waitcnt vmcnt(0)"); s.q=[]
vm=VM()
def r(p,a,n): return f"{p}[{a}:{a+n-1}]"
def mfma(d,a,b,c=None,pa="v",pb="v"):
    cc = "0" if c==0 and c is not None else r("v",d,16)
    e(f"v_mfma_f32_32x32x16_bf16 {r('v',d,16)}, {r(pa,a,4)}, {r(pb,b,4)}, {cc}")
WS_KV=0; WS_H=0x40000; WS_O=0x740000; WS_G=0x940000; WS_C=0x950000; WS_T=0x960000; WS_SZ=0x1000000
RS=28672; W0B=4*RS; QX=143360; RED=114688; FLG=163840-64-0
FLG=QX+8192+4096*0
sX,sW0,sWB,sWS,sW2,sWO,sOUT,sDBG,sH=8,12,16,20,24,28,32,36,40
sTB,sJ,sW,sRW,sST0,sCOL0,sSTB,sCOLB,sT0,sT1,sT2,sT3,sTT,sPASS,sCNT,sKVO,sHO,sW2O,sWOO,sOO,sTH,sCB=range(44,66)
sUP=66
sTS=70
tsn=[0]
def ts():
    if TS:
        e(f"s_memrealtime s[{sTS+2*tsn[0]}:{sTS+2*tsn[0]+1}]"); tsn[0]+=1
def srd(d,b,size):
    e(f"s_mov_b32 s{d}, s{b}"); e(f"s_and_b32 s{d+1}, s{b+1}, 0xffff")
    e(f"s_mov_b32 s{d+2}, {size}"); e(f"s_mov_b32 s{d+3}, 0x20000")
vL,vL16,vT0,vT1,vT2,vT3=1,2,3,4,5,6
vXA=8;vXR=12;vW0A=16;vWBA=17;vTR=21;vGR=24;vD3=25;vTR3=27;vPOLL=29;vG=30
X=32;A0=144;B0=160;WF=224
Q=32;O=64;S=128;P=160;KV=168;KT=232
OF=32;WG=96;AB=128;AA=192
hdr=open(f"cdna_kernels/{NAME}.s.ref").read().split("; Override")[0]
L.append(hdr.rstrip())
L.append("; @launch grid=(256,1,1) block=(256,1,1) lds=163840")
L.append(f'.amdgcn_target "amdgcn-amd-amdhsa--gfx950"\n.text\n.globl {NAME}_kernel\n.p2align 8\n.type {NAME}_kernel,@function\n{NAME}_kernel:')
e("s_cmp_ge_u32 s2, 256"); e("s_cbranch_scc1 L_end")
ts()
e("s_load_dwordx16 s[76:91], s[0:1], 0" if not TS else "s_load_dwordx16 s[8:23], s[0:1], 0")
PB = 76 if not TS else 8
e("s_load_dwordx8 s[92:99], s[0:1], 64")
e(f"v_lshrrev_b32 v{vT0}, 6, v0"); e(f"v_and_b32 v{vL}, 63, v0")
e(f"s_and_b32 s{sT0}, s2, 7"); e(f"v_readfirstlane_b32 s{sW}, v{vT0}")
e(f"s_lshl_b32 s{sT0}, s{sT0}, 1"); e(f"s_bfe_u32 s{sT1}, s2, 0x10003"); e(f"s_or_b32 s{sTB}, s{sT0}, s{sT1}")
e(f"s_lshr_b32 s{sJ}, s2, 4")
e(f"v_lshlrev_b32 v{vL16}, 4, v{vL}")
e(f"s_mul_i32 s{sRW}, s{sW}, {RS}")
e(f"s_lshl_b32 s{sTT}, s{sTB}, 2"); e(f"s_add_u32 s{sTT}, s{sTT}, s{sW}")
e(f"s_mov_b32 s{sUP}, 0"); e(f"s_mov_b32 s{sUP+1}, -1")
e(f"v_lshrrev_b32 v{vT0}, 3, v{vL}"); e(f"v_mul_u32_u24 v{vT0}, 896, v{vT0}")
e(f"v_and_b32 v{vT1}, 7, v{vL}"); e(f"v_lshrrev_b32 v{vT2}, 4, v{vL}"); e(f"v_xor_b32 v{vT2}, v{vT1}, v{vT2}")
e(f"v_lshl_add_u32 v{vXA}, v{vT2}, 4, v{vT0}")
e(f"v_xor_b32 v{vT2}, 4, v{vT2}"); e(f"v_lshl_add_u32 v{vXA+1}, v{vT2}, 4, v{vT0}")
e(f"v_add_u32 v{vXA+2}, {2*6144}, v{vXA}"); e(f"v_add_u32 v{vXA+3}, {3*6144}, v{vXA+1}"); e(f"v_add_u32 v{vXA+1}, 6144, v{vXA+1}")
e(f"v_bfe_u32 v{vT2}, v{vL}, 4, 1"); e(f"v_lshlrev_b32 v{vT2}, 2, v{vT2}"); e(f"v_xor_b32 v{vT2}, v{vT1}, v{vT2}")
e(f"v_lshl_add_u32 v{vD3}, v{vT2}, 4, v{vT0}"); e(f"v_add_u32 v{vD3+1}, 6144, v{vD3}")
e("s_waitcnt lgkmcnt(0)")
if TS:
    for i in range(16): e(f"v_writelane_b32 v7, s{8+i}, {i}") if False else None
pX,pWQ,pWK,pWV,pWO,pW1,pW2=PB,PB+2,PB+4,PB+6,PB+8,PB+12,PB+14
pG,pOUT,pDBG,pWS=92,94,96,98
srd(sW2,pW2,1605632); srd(sWO,pWO,401408); srd(sOUT,pOUT,1835008); srd(sDBG,pDBG,256); srd(sH,pWS,WS_SZ)
e(f"s_mov_b64 s[4:5], s[{pW1}:{pW1+1}]"); e(f"s_mov_b64 s[6:7], s[{pWQ}:{pWQ+1}]")
e(f"s_mov_b64 s[68:69], s[{pWK}:{pWK+1}]"); e(f"s_mov_b64 s[100:101], s[{pWV}:{pWV+1}]")
srd(sX,pX,1835008); srd(sWS,pWS,WS_SZ)
srd(sW0,4,1605632); e(f"s_mov_b32 s{sST0}, 3584"); e(f"s_add_u32 s{sT0}, s{sJ}, 40"); e(f"s_lshl_b32 s{sCOL0}, s{sT0}, 6")
e(f"s_cmp_ge_u32 s{sJ}, 8"); e("s_cbranch_scc1 L_w0done")
e(f"s_mov_b32 s{sCOL0}, 0"); e(f"s_mov_b32 s{sW0+2}, 0")
e(f"s_cmp_ge_u32 s{sJ}, 3"); e("s_cbranch_scc1 L_w0done")
srd(sW0,pG,896); e(f"s_mov_b32 s{sST0}, 64")
e(f"s_cmp_eq_u32 s{sJ}, 2"); e("s_cbranch_scc1 L_w0done")
srd(sW0,68,25088); e(f"s_mov_b32 s{sST0}, 56")
e(f"s_cmp_eq_u32 s{sJ}, 0"); e("s_cbranch_scc1 L_w0done")
srd(sW0,100,25088)
lab("L_w0done")
e(f"v_lshrrev_b32 v{vT0}, 2, v{vL}"); e(f"v_and_b32 v{vT1}, 3, v{vL}"); e(f"v_lshlrev_b32 v{vT1}, 4, v{vT1}")
e(f"v_mad_u32_u24 v{vW0A}, v{vT0}, s{sST0}, v{vT1}")
e(f"s_mul_i32 s{sT0}, s{sW}, 7168"); e(f"s_add_u32 s{sT0}, s{sT0}, {W0B}")
e(f"s_mul_i32 s{sT1}, s{sW}, 112"); e(f"s_mul_i32 s{sT1}, s{sT1}, s{sST0}"); e(f"s_add_u32 s{sT1}, s{sT1}, s{sCOL0}")
e(f"s_lshl_b32 s{sT2}, s{sST0}, 4")
for i in range(7):
    e(f"s_mov_b32 m0, s{sT0}"); e(f"s_add_u32 s{sT0}, s{sT0}, 1024")
    vm.op("w0",f"buffer_load_dwordx4 v{vW0A}, s[{sW0}:{sW0+3}], s{sT1} offen lds")
    e(f"s_add_u32 s{sT1}, s{sT1}, s{sT2}")
e(f"s_mul_i32 s{sT1}, s{sTT}, {32*896}")
for c in range(7):
    e(f"s_add_u32 m0, s{sRW}, {c*4096}");
    if c: e(f"s_add_u32 s{sT1}, s{sT1}, 128")
    else: e("s_nop 0")
    for i in range(4): vm.op(f"x{c}",f"buffer_load_dwordx4 v{vXA+i}, s[{sX}:{sX+3}], s{sT1} offen offset:{i*1024} lds")
e("s_getpc_b64 s[68:69]"); lab("L_pc")
e(f"s_mul_i32 s{sT0}, s{sW}, 8192"); e(f"v_lshlrev_b32 v{vT2}, 7, v{vL}"); e(f"v_add_u32 v{vT2}, s{sT0}, v{vT2}")
e(f"v_min_u32 v{vT2}, L_end-L_pc, v{vT2}")
vm.op("pf",f"global_load_dword v7, v{vT2}, s[68:69]")
srd(sWB,4,1605632); e(f"s_mov_b32 s{sSTB}, 3584")
e(f"s_mul_i32 s{sT0}, s{sJ}, 3"); e(f"s_add_u32 s{sT0}, s{sT0}, s{sW}"); e(f"s_sub_u32 s{sT0}, s{sT0}, 1"); e(f"s_lshl_b32 s{sCOLB}, s{sT0}, 6")
e(f"s_cmp_lg_u32 s{sW}, 0"); e("s_cbranch_scc1 L_wbdone")
srd(sWB,6,401408); e(f"s_mov_b32 s{sSTB}, 896"); e(f"s_mul_i32 s{sCOLB}, s{sJ}, 56")
lab("L_wbdone")
e(f"v_mad_u32_u24 v{vWBA}, v{vT0}, s{sSTB}, v{vT1}")
e(f"s_lshl_b32 s{sT0}, s{sSTB}, 4"); e(f"s_sub_u32 s{sT0}, s{sT0}, 1024")
for i in range(1,4): e(f"v_add_u32 v{vWBA+i}, s{sT0}, v{vWBA+i-1}")
e(f"s_lshl_b32 s{sSTB}, s{sSTB}, 6")
e(f"v_and_b32 v{vT0}, 31, v{vL}"); e(f"v_lshrrev_b32 v{vT1}, 5, v{vL}"); e(f"v_bfe_u32 v{vT2}, v{vL}, 1, 3")
e(f"v_xor_b32 v{vT2}, v{vT1}, v{vT2}"); e(f"v_lshlrev_b32 v{vT0}, 7, v{vT0}"); e(f"v_add_u32 v{vT0}, s{sRW}, v{vT0}")
for s in range(4):
    e(f"v_xor_b32 v{vT3}, {2*s}, v{vT2}"); e(f"v_lshl_add_u32 v{vXR+s}, v{vT3}, 4, v{vT0}")
e(f"v_lshlrev_b32 v{vGR}, 4, v{vT1}"); e(f"v_add_u32 v{vGR}, {W0B}, v{vGR}")
e(f"v_bfe_u32 v{vT0}, v{vL}, 2, 2"); e(f"v_bfe_u32 v{vT2}, v{vL}, 4, 1"); e(f"v_and_b32 v{vT3}, 3, v{vL}")
e(f"v_lshlrev_b32 v{vT3}, 3, v{vT3}"); e(f"v_lshl_add_u32 v{vT3}, v{vT2}, 5, v{vT3}")
e(f"v_lshl_add_u32 v{vT2}, v{vT1}, 3, v{vT0}"); e(f"v_lshl_add_u32 v{vTR}, v{vT2}, 6, v{vT3}")
e(f"v_add_u32 v{vTR+1}, {2*RS}, v{vTR}"); e(f"v_add_u32 v{vTR+2}, {W0B}, v{vTR}")
e(f"v_lshl_add_u32 v{vT2}, v{vT1}, 2, v{vT0}"); e(f"v_lshl_add_u32 v{vT3}, v{vT2}, 7, v{vT3}")
e(f"v_bfe_u32 v{vT2}, v{vL}, 3, 1"); e(f"v_lshl_add_u32 v{vT3}, v{vT2}, 6, v{vT3}"); e(f"v_add_u32 v{vTR3}, s{sRW}, v{vT3}")
e(f"v_xor_b32 v{vT3}, 64, v{vT3}"); e(f"v_add_u32 v{vTR3+1}, s{sRW}, v{vT3}")
e(f"s_lshl_b32 s{sCNT}, s{sTB}, 9"); e(f"s_add_u32 s{sCNT}, s{sCNT}, {WS_C}")
e(f"s_lshl_b32 s{sKVO}, s{sW}, 16")
e(f"s_cmp_ge_u32 s{sJ}, 7"); e(f"s_cselect_b32 s{sTH}, 1, 0"); e(f"s_mul_i32 s{sT0}, s{sTH}, 7"); e(f"s_sub_u32 s{sCB}, s{sJ}, s{sT0}")
e(f"s_lshl_b32 s{sT0}, s{sTB}, 2"); e(f"s_lshl_b32 s{sT1}, s{sTH}, 1"); e(f"s_add_u32 s{sT0}, s{sT0}, s{sT1}")
e(f"s_mul_i32 s{sHO}, s{sT0}, {112*1024}"); e(f"s_mul_i32 s{sT1}, s{sW}, {28*1024}"); e(f"s_add_u32 s{sHO}, s{sHO}, s{sT1}"); e(f"s_add_u32 s{sHO}, s{sHO}, {WS_H}")
e(f"s_lshl_b32 s{sOO}, s{sT0}, 15"); e(f"s_lshl_b32 s{sT1}, s{sW}, 13"); e(f"s_add_u32 s{sOO}, s{sOO}, s{sT1}"); e(f"s_add_u32 s{sOO}, s{sOO}, {WS_O}")
e(f"s_lshl_b32 s{sT1}, s{sCB}, 7"); e(f"s_mul_i32 s{sW2O}, s{sW}, {448*896}"); e(f"s_add_u32 s{sW2O}, s{sW2O}, s{sT1}")
e(f"s_mul_i32 s{sWOO}, s{sW}, {112*896}"); e(f"s_add_u32 s{sWOO}, s{sWOO}, s{sT1}")
e(f"s_cmp_ge_u32 s{sJ}, 14"); e(f"s_cselect_b32 s{sH+2}, 0, s{sH+2}"); e(f"s_cselect_b32 s{sW2+2}, 0, s{sW2+2}"); e(f"s_cselect_b32 s{sWO+2}, 0, s{sWO+2}")
e(f"s_mov_b32 s{sPASS}, 0")
def passA(kind):
    q0=list(vm.q)
    e(f"s_mov_b32 s{sT1}, s{sCOLB}")
    for c in range(7):
        vm.wait(f"x{c}")
        if c==0: e("s_barrier")
        for s in range(4): e(f"ds_read_b128 {r('v',X+16*c+4*s,4)}, v{vXR+s} offset:{c*4096}")
        for s in range(4):
            ks=4*c+s
            if kind=="g": e(f"ds_read_b128 {r('v',WF+4*s,4)}, v{vGR} offset:{ks*32}")
            elif kind!="n":
                for h in range(2): e(f"ds_read_b64_tr_b16 {r('v',WF+4*s+2*h,2)}, v{vTR+2} offset:{ks*1024+h*256}")
        e(f"s_add_u32 m0, s{sRW}, {c*4096}")
        e(f"s_waitcnt lgkmcnt({ {'g':4,'n':0}.get(kind,8) })")
        for i in range(4): vm.op(f"wb{c}",f"buffer_load_dwordx4 v{vWBA+i}, s[{sWB}:{sWB+3}], s{sT1} offen offset:{i*1024} lds")
        if c<6: e(f"s_add_u32 s{sT1}, s{sT1}, s{sSTB}")
        if kind!="n":
            e("s_waitcnt lgkmcnt(0)")
            for s in range(4):
                a,b=WF+4*s,X+16*c+4*s
                if kind=="v": a,b=b,a
                mfma(A0,a,b,0 if (c==0 and s==0) else None)
    q1=list(vm.q); vm.q=q0; return q1
def pack(dst,src,relu=False):
    for i in range(8): e(f"v_cvt_pk_bf16_f32 v{dst+i}, v{src+2*i}, v{src+2*i+1}")
    if relu:
        for i in range(8): e(f"v_pk_max_i16 v{dst+i}, v{dst+i}, 0")
def st2(tag,src,soff,off=0):
    for h in range(2): vm.op(tag,f"buffer_store_dwordx4 {r('v',src+4*h,4)}, v{vL16}, s[{sWS}:{sWS+3}], s{soff} offen offset:{off+h*1024} sc1")
PK=240
e(f"s_cmp_eq_u32 s{sJ}, 1"); e("s_cbranch_scc1 L_av")
e(f"s_cmp_eq_u32 s{sJ}, 2"); e("s_cbranch_scc1 L_ag")
e(f"s_cmp_eq_u32 s{sJ}, 0"); e("s_cbranch_scc1 L_ak")
e(f"s_cmp_lt_u32 s{sJ}, 8"); e("s_cbranch_scc1 L_an")
lab("L_ak"); qk=passA("k"); e("s_nop 15")
e(f"s_cmp_eq_u32 s{sJ}, 0"); e("s_cbranch_scc1 L_ak2")
pack(PK,A0,True)
e(f"s_mul_i32 s{sT0}, s{sTT}, {112*1024}"); e(f"s_add_u32 s{sT1}, s{sJ}, 40"); e(f"s_lshl_b32 s{sT1}, s{sT1}, 11"); e(f"s_add_u32 s{sT0}, s{sT0}, s{sT1}"); e(f"s_add_u32 s{sT0}, s{sT0}, {WS_H}")
e("s_branch L_ast")
lab("L_ak2")
pack(PK,A0)
e(f"v_mov_b32 v{vT0}, 0x3f803f80"); e(f"v_mov_b32 v{vT1}, 0x00003f80")
e(f"v_cndmask_b32 v{PK+6}, v{PK+6}, v{vT0}, s[{sUP}:{sUP+1}]"); e(f"v_cndmask_b32 v{PK+7}, v{PK+7}, v{vT1}, s[{sUP}:{sUP+1}]")
e(f"v_lshlrev_b32 v{vT0}, 7, v{vL}"); e(f"v_mov_b32 v{vT1}, 0"); e(f"v_cmp_gt_u32 vcc, 3, v{vL}"); e(f"v_mov_b32 v{vT2}, {WS_SZ}")
e(f"v_cndmask_b32 v{vT0}, v{vT2}, v{vT0}, vcc")
e(f"buffer_store_dword v{vT1}, v{vT0}, s[{sWS}:{sWS+3}], s{sCNT} offen sc1")
e(f"s_lshl_b32 s{sT0}, s{sTT}, 12"); e("s_branch L_ast")
lab("L_av"); passA("v"); e("s_nop 15")
pack(PK,A0)
e(f"v_and_b32 v{vT0}, 31, v{vL}"); e(f"v_mov_b32 v{vT1}, 0x3f803f80"); e(f"v_cmp_eq_u32 vcc, 28, v{vT0}"); e("s_nop 1")
e(f"v_cndmask_b32 v{vT1}, 0, v{vT1}, vcc"); e(f"v_cmp_gt_u32 vcc, 28, v{vT0}"); e("s_nop 1")
for i in range(8): e(f"v_cndmask_b32 v{PK+i}, v{vT1}, v{PK+i}, vcc")
e(f"s_lshl_b32 s{sT0}, s{sTT}, 12"); e(f"s_add_u32 s{sT0}, s{sT0}, 2048"); e("s_branch L_ast")
lab("L_ag"); passA("g"); e("s_nop 15")
e(f"v_mul_f32 v{vT0}, {f2u(-math.log2(math.e))}, v{A0}"); e(f"v_exp_f32 v{vT0}, v{vT0}"); e("s_nop 0"); e(f"v_add_f32 v{vT0}, 1.0, v{vT0}")
e(f"v_rcp_f32 v{vT0}, v{vT0}"); e(f"v_and_b32 v{vT1}, 31, v{vL}"); e(f"v_lshlrev_b32 v{vT1}, 2, v{vT1}")
e(f"s_lshl_b32 s{sT0}, s{sTT}, 7"); e(f"s_add_u32 s{sT0}, s{sT0}, {WS_G}")
e(f"buffer_store_dword v{vT0}, v{vT1}, s[{sWS}:{sWS+3}], s{sT0} offen sc1")
e(f"s_mov_b32 s{sT0}, {WS_SZ}"); e("s_branch L_ast")
lab("L_an"); passA("n"); e(f"s_mov_b32 s{sT0}, {WS_SZ}")
lab("L_ast")
vm.q=qk
st2("a",PK,sT0)
ts()
def trB(ks):
    b=WF+16*(ks%2)
    for t in range(4):
        for h in range(2): e(f"ds_read_b64_tr_b16 {r('v',b+4*t+2*h,2)}, v{vTR+t//2} offset:{(t%2)*RS+ks*1024+h*256}")
stage={0:"wb2",12:"wb4",20:"all"}
def sync(ks):
    if stage[ks]=="all":
        vm.all(); e("s_barrier")
        e(f"s_cmp_ge_u32 s{sJ}, 2"); e("s_cbranch_scc1 L_noh1"); e(f"s_cmp_lg_u32 s{sW}, 0"); e("s_cbranch_scc1 L_noh1")
        e(f"v_mov_b32 v{vT0}, 1"); e(f"v_lshlrev_b32 v{vT1}, 8, v{vL}")
        e(f"buffer_atomic_add v{vT0}, v{vT1}, s[{sDBG}:{sDBG+3}], 0 offen sc1")
        lab("L_noh1")
    else: vm.wait(stage[ks]); e("s_barrier")
sync(0); e("s_nop 1"); trB(0)
for ks in range(28):
    if ks+1<28:
        if ks+1 in stage: sync(ks+1)
        trB(ks+1); e("s_waitcnt lgkmcnt(8)")
    else: e("s_waitcnt lgkmcnt(0)")
    for t in range(4): mfma(B0+16*t,WF+16*(ks%2)+4*t,X+4*ks,0 if ks==0 else None)
ts()
e(f"v_mov_b32 v{vT1}, 0")
vm.op("p1",f"buffer_load_dword v{vPOLL}, v{vT1}, s[{sDBG}:{sDBG+3}], 0 offen sc1")
e(f"s_mul_i32 s{sT0}, s{sTT}, {112*1024}"); e(f"s_mul_i32 s{sT1}, s{sJ}, {3*2048}"); e(f"s_add_u32 s{sT0}, s{sT0}, s{sT1}"); e(f"s_add_u32 s{sT0}, s{sT0}, {WS_H}")
e(f"s_mov_b32 s{sT2}, {f2u(math.log2(math.e)/math.sqrt(28))}"); e("s_nop 7")
for i in range(16): e(f"v_mul_f32 v{B0+i}, s{sT2}, v{B0+i}")
pack(Q,B0)
for i in (6,7): e(f"v_cndmask_b32 v{Q+i}, v{Q+i}, 0, s[{sUP}:{sUP+1}]")
for t in range(1,4): pack(40+8*t,B0+16*t,True)
st2("h",48,sT0); st2("h",56,sT0,2048); e(f"s_add_u32 s{sT0}, s{sT0}, 4096"); st2("h",64,sT0)
def spin(name,tag,srdn,soff,target):
    vm.wait(tag); e(f"v_readfirstlane_b32 s{sT0}, v{vPOLL}"); e(f"s_cmp_ge_u32 s{sT0}, {target}"); e(f"s_cbranch_scc0 L_sp{name}"); lab(f"L_ok{name}")
    tail.append(f"""L_sp{name}:
  s_mov_b32 s{sT1}, 0
  v_mov_b32 v{vT1}, 0
L_sq{name}:
  s_sleep 2
  buffer_load_dword v{vPOLL}, v{vT1}, s[{srdn}:{srdn+3}], {soff} offen sc1
  s_add_u32 s{sT1}, s{sT1}, 1
  s_waitcnt vmcnt(0)
  v_readfirstlane_b32 s{sT0}, v{vPOLL}
  s_cmp_ge_u32 s{sT1}, 0x40000
  s_cbranch_scc1 L_ok{name}
  s_cmp_ge_u32 s{sT0}, {target}
  s_cbranch_scc0 L_sq{name}
  s_branch L_ok{name}""")
tail=[]
spin("1","p1",sDBG,"0",32)
ts()
def ldws(tag,dst,soff,off,p="v",srdn=sWS): vm.op(tag,f"buffer_load_dwordx4 {r(p,dst,4)}, v{vL16}, s[{srdn}:{srdn+3}], {soff} offen offset:{off} sc1")
for h in range(2): ldws("kt",KT+4*h,"0",h*1024)
def ldkv(kt,which):
    for f in which: ldws(f"kv{kt}_{f//2}",KV+16*(kt%4)+4*f,f"s{sT3}",f*1024)
def setkv(kt): e(f"s_add_u32 s{sT3}, s{sKVO}, {kt*4096}")
def mins(m,q):
    e(f"v_sub_f32 v{m}, 0, v{m}"); e(f"v_and_b32 v{vT0}, 0xffff0000, v{m}"); e(f"v_sub_f32 v{m}, v{m}, v{vT0}")
    e(f"v_and_b32 v{vT1}, 0xffff0000, v{m}"); e(f"v_sub_f32 v{m}, v{m}, v{vT1}")
    e(f"v_lshrrev_b32 v{vT0}, 16, v{vT0}"); e(f"v_or_b32 v{vT0}, v{vT0}, v{vT1}"); e(f"v_lshrrev_b32 v{m}, 16, v{m}")
    e(f"v_cndmask_b32 v{q+6}, v{q+6}, v{vT0}, s[{sUP}:{sUP+1}]"); e(f"v_cndmask_b32 v{q+7}, v{q+7}, v{m}, s[{sUP}:{sUP+1}]")
def halfmax(m):
    e(f"v_mov_b32 v{vT0}, v{m}"); e("s_nop 1"); e(f"v_permlane32_swap_b32 v{vT0}, v{m}"); e("s_nop 1"); e(f"v_max_f32 v{m}, v{m}, v{vT0}")
vm.wait("kt")
mfma(S,KT,Q,0); mfma(S,KT+4,Q+4)
e(f"s_lshl_b32 s{sT0}, s{sW}, 11"); e(f"s_add_u32 s{sT0}, s{sT0}, {QX}"); e(f"v_add_u32 v{vT3}, s{sT0}, v{vL16}"); e("s_nop 10")
e(f"v_max3_f32 v{vT2}, v{S}, v{S+1}, v{S+2}")
for i in range(3,15,2): e(f"v_max3_f32 v{vT2}, v{vT2}, v{S+i}, v{S+i+1}")
e(f"v_max_f32 v{vT2}, v{vT2}, v{S+15}")
halfmax(vT2); mins(vT2,Q)
e(f"ds_write_b128 v{vT3}, {r('v',Q,4)}"); e(f"ds_write_b128 v{vT3}, {r('v',Q+4,4)} offset:1024")
e("s_waitcnt lgkmcnt(0)"); e("s_barrier")
for i in range(1,4):
    e(f"s_add_u32 s{sT0}, s{sW}, {i}"); e(f"s_and_b32 s{sT0}, s{sT0}, 3"); e(f"s_lshl_b32 s{sT0}, s{sT0}, 11"); e(f"s_add_u32 s{sT0}, s{sT0}, {QX}")
    e(f"v_add_u32 v{vT3}, s{sT0}, v{vL16}")
    for h in range(2): e(f"ds_read_b128 {r('v',Q+8*i+4*h,4)}, v{vT3} offset:{h*1024}")
e(f"s_cmp_lg_u32 s{sW}, 0"); e("s_cbranch_scc1 L_noh2")
e(f"v_mov_b32 v{vT0}, 1"); e(f"v_lshlrev_b32 v{vT1}, 24, v{vL}")
e(f"buffer_atomic_add v{vT0}, v{vT1}, s[{sWS}:{sWS+3}], s{sCNT} offen sc1")
lab("L_noh2")
lab("L_attn")
assert not vm.q
for kt in range(3): setkv(kt); ldkv(kt,[0,1,2,3])
def dma3(step):
    e(f"s_add_u32 m0, s{sRW}, {(step%14)*2048}")
    if step<28: e(f"s_add_u32 s{sT2}, s{sW2O}, {step*16*896}"); sr=sW2
    else: e(f"s_add_u32 s{sT2}, s{sWOO}, {((step-28)//2*28+(step-28)%2*16)*896}"); sr=sWO
    return [lambda i=i: vm.op(f"d{step}",f"buffer_load_dwordx4 v{vD3+i}, s[{sr}:{sr+3}], s{sT2} offen offset:{i*1024} lds") for i in range(2)]
def qk(t,h): mfma(S+16*(t%2),KV+16*((t//4)%4)+4*h,Q+8*(t%4)+4*h,0 if h==0 else None)
def pv(t,h): mfma(O+16*(t%4),KV+16*((t//4)%4)+8+4*h,P+4*h,0 if (t<4 and h==0) else None)
def grp(t,g):
    s=S+16*(t%2)+4*g
    for i in range(4): e(f"v_exp_f32 v{s+i}, v{s+i}")
    for i in range(2): e(f"v_cvt_pk_bf16_f32 v{P+2*g+i}, v{s+2*i}, v{s+2*i+1}")
e("s_waitcnt lgkmcnt(0)"); vm.wait("kv0_0")
ts()
qk(0,0); qk(0,1); e("s_nop 11")
POLL_AT=16; H0=20
hl=[(ks,u) for ks in range(28) for u in range(2)]
def ldh():
    ks,u=hl.pop(0)
    if ks%4==0: e(f"s_add_u32 s{sT0+u}, s{sHO}, {u*112*1024+ks*1024}")
    ldws(f"h{ks}",(ks*2+u)*4,f"s{sT0+u}",(ks%4)*1024,"a",sH)
for t in range(64):
    kt=t//4; ex=[[],[],[],[]]
    if t%4==1 and kt+3<16: ex[0].append(lambda: (setkv(kt+3),ldkv(kt+3,[0]))); ex[1].append(lambda: ldkv(kt+3,[1])); ex[2].append(lambda: ldkv(kt+3,[2])); ex[3].append(lambda: ldkv(kt+3,[3]))
    else:
        n=t-(t+2)//4
        if n<14:
            def f(n=n): global dd; dd=dma3(n); dd[0]()
            ex[0].append(f); ex[2].append(lambda: dd[1]())
        if t>=H0 and hl: ex[1].append(ldh); ex[3].append(ldh)
    if t==POLL_AT: ex[1].append(lambda: (e(f"v_mov_b32 v{vT1}, 0"), vm.op("p2",f"buffer_load_dword v{vPOLL}, v{vT1}, s[{sWS}:{sWS+3}], s{sCNT} offen sc1")))
    if t==H0-1: ex[3].append(lambda: spin("2","p2",sWS,f"s{sCNT}",16))
    if t==62:
        def f():
            e(f"v_and_b32 v{vT1}, 31, v{vL}"); e(f"v_lshlrev_b32 v{vT1}, 2, v{vT1}")
            e(f"s_lshl_b32 s{sT0}, s{sTB}, 9"); e(f"s_lshl_b32 s{sT1}, s{sTH}, 8"); e(f"s_add_u32 s{sT0}, s{sT0}, s{sT1}"); e(f"s_add_u32 s{sT0}, s{sT0}, {WS_G}")
            for u in range(2): vm.op("g",f"buffer_load_dword v{vG+u}, v{vT1}, s[{sH}:{sH+3}], s{sT0} offen offset:{u*128} sc1")
        ex[1].append(f)
    if t<63:
        if (t+1)%4==0: vm.wait(f"kv{kt+1}_0")
        qk(t+1,0)
    grp(t,0); [f() for f in ex[0]]
    if t<63: qk(t+1,1)
    grp(t,1); [f() for f in ex[1]]
    if t>0: pv(t-1,1)
    grp(t,2); [f() for f in ex[2]]
    if t%4==0: vm.wait(f"kv{kt}_1")
    pv(t,0)
    grp(t,3); [f() for f in ex[3]]
assert not hl
e("s_nop 1"); pv(63,1)
ts()
for i in range(1,4):
    e(f"s_add_u32 s{sT0}, s{sW}, {i}"); e(f"s_and_b32 s{sT0}, s{sT0}, 3"); e(f"s_mul_i32 s{sT0}, s{sT0}, 12288"); e(f"s_add_u32 s{sT0}, s{sT0}, {RED+(i-1)*4096}")
    e(f"v_add_u32 v{vT0+i}, s{sT0}, v{vL16}")
    if i==3: e("s_nop 7")
    if i==1:
        e("s_nop 7")
        e(f"v_max3_f32 v{vT0}, v{O+12}, v{O+28}, v{O+44}"); e(f"v_max_f32 v{vT0}, v{vT0}, v{O+60}")
        e(f"v_add_f32 v7, v{O+12}, v{O+28}"); e(f"v_add_f32 v7, v7, v{O+44}"); e(f"v_add_f32 v7, v7, v{O+60}")
        e(f"v_cmp_nlt_f32 vcc, v7, v{vT0}") if False else None
        e(f"v_cmp_ngt_f32 vcc, {f2u(2.0**40 if not FORCE_FB else -1.0)}, v7"); e(f"s_and_b64 vcc, vcc, s[{sUP}:{sUP+1}]"); e(f"s_cmp_lg_u64 vcc, 0")
        e(f"s_cselect_b32 s{sT1}, 1.0, 0"); e(f"v_mov_b32 v7, s{sT1}")
        for q in range(4): e(f"v_cndmask_b32 v{O+16*q+15}, v{O+16*q+15}, v7, s[{sUP}:{sUP+1}]")
    for q in range(4): e(f"ds_write_b128 v{vT0+i}, {r('v',O+16*i+4*q,4)} offset:{q*1024}")
e(f"s_mul_i32 s{sT0}, s{sW}, 12288"); e(f"s_add_u32 s{sT0}, s{sT0}, {RED}"); e(f"v_add_u32 v{vT0}, s{sT0}, v{vL16}")
e("s_waitcnt lgkmcnt(0)"); e("s_barrier")
for i in range(12): e(f"ds_read_b128 {r('v',O+16+4*i,4)}, v{vT0} offset:{i*1024}")
e(f"s_lshl_b32 s{sT0}, s{sTT}, 15"); e(f"s_lshl_b32 s{sT1}, s{sJ}, 11"); e(f"s_add_u32 s{sT0}, s{sT0}, s{sT1}"); e(f"s_add_u32 s{sT2}, s{sT0}, {WS_O}")
for i in range(3):
    e(f"s_waitcnt lgkmcnt({8-4*i})")
    for k in range(16): e(f"v_add_f32 v{O+k}, v{O+k}, v{O+16+16*i+k}")
e("s_nop 0"); e(f"v_readlane_b32 s{sT0}, v{O+15}, 32")
e(f"v_rcp_f32 v{vT0}, v{O+12}"); e(f"s_cmp_lg_u32 s{sT0}, 0"); e("s_cbranch_scc1 L_fb"); lab("L_fbok")
e(f"v_mov_b32 v{vT1}, v{vT0}"); e("s_nop 1"); e(f"v_permlane32_swap_b32 v{vT0}, v{vT1}"); e("s_nop 1")
for k in range(16): e(f"v_mul_f32 v{O+k}, v{O+k}, v{vT1}")
pack(P,O)
for i in (6,7): e(f"v_cndmask_b32 v{P+i}, v{P+i}, 0, s[{sUP}:{sUP+1}]")
st2("o",P,sT2)
e(f"s_lshr_b32 s{sT0}, s{sW}, 1"); e(f"s_lshl_b32 s{sT0}, s{sT0}, 7"); e(f"s_add_u32 s{sT3}, s{sT0}, 128"); e(f"s_add_u32 s{sT3}, s{sT3}, s{sCNT}")
e(f"v_mov_b32 v{vT2}, 1"); e(f"v_lshlrev_b32 v{vT3}, 24, v{vL}")
h3=f"buffer_atomic_add v{vT2}, v{vT3}, s[{sWS}:{sWS+3}], s{sT3} offen sc1"
e(f"s_cmp_ge_u32 s{sJ}, 14"); e("s_cbranch_scc1 L_idle")
tail.append(f"L_idle:\n  s_waitcnt vmcnt(0)\n  {h3}\n  s_branch L_fin")
ts()
def tr3(st):
    b=WG+8*(st%4)
    for t in range(2):
        for h in range(2): e(f"ds_read_b64_tr_b16 {r('v',b+4*t+2*h,2)}, v{vTR3+t} offset:{(st%14)*2048+h*1024}")
vm.wait("d13"); vm.wait("h27"); tr3(0); tr3(1)
SIG=5; P3=14; O0=18
ol=[(s,u) for s in range(8) for u in range(2)]
e(f"s_lshl_b32 s{sT0}, s{sTH}, 7"); e(f"s_add_u32 s{sCNT}, s{sCNT}, s{sT0}"); e(f"s_add_u32 s{sCNT}, s{sCNT}, 128")
for st in range(36):
    if st+2<36: vm.wait(f"d{st+2}"); tr3(st+2); e("s_waitcnt lgkmcnt(8)")
    else: e(f"s_waitcnt lgkmcnt({4*(35-st)})")
    ex=[]
    if st+14<36: ex=dma3(st+14)
    if st==SIG: vm.wait("o"); vm.op("sig",h3)
    if st==P3: e(f"v_mov_b32 v{vT1}, 0"); vm.op("p3",f"buffer_load_dword v{vPOLL}, v{vT1}, s[{sWS}:{sWS+3}], s{sCNT} offen sc1")
    if st==O0: spin("3","p3",sWS,f"s{sCNT}",32); ts()
    if st>=O0:
        def f():
            if not ol: return
            s,u=ol.pop(0)
            if s%4==0: e(f"s_add_u32 s{sT0+u}, s{sOO}, {u*32768+s*1024}")
            ldws(f"o{s}",OF+(s*2+u)*4,f"s{sT0+u}",(s%4)*1024)
        ex=ex+[f,f]
    if st>=28: vm.wait(f"o{st-28}")
    k=0
    for t in range(2):
        for u in range(2):
            if st<28: mfma(AB+32*u+16*t,WG+8*(st%4)+4*t,(st*2+u)*4,0 if st==0 else None,pb="a")
            else: mfma(AA+32*u+16*t,WG+8*(st%4)+4*t,OF+((st-28)*2+u)*4,0 if st==28 else None)
            if k<len(ex): ex[k]()
            k+=1
ts()
e(f"v_and_b32 v{vT0}, 31, v{vL}"); e(f"v_mul_u32_u24 v{vT0}, 272, v{vT0}"); e(f"v_lshrrev_b32 v{vT1}, 5, v{vL}"); e(f"v_lshl_add_u32 v{vT0}, v{vT1}, 4, v{vT0}"); e(f"v_add_u32 v{vT0}, s{sRW}, v{vT0}")
e(f"v_lshrrev_b32 v{vT1}, 3, v{vL}"); e(f"s_lshl_b32 s{sT0}, s{sW}, 4"); e(f"v_add_u32 v{vT1}, s{sT0}, v{vT1}"); e(f"v_and_b32 v{vT2}, 7, v{vL}")
e(f"v_mul_u32_u24 v{vT3}, 896, v{vT1}"); e(f"v_lshl_add_u32 v{vT3}, v{vT2}, 4, v{vT3}")
e(f"v_mul_u32_u24 v{vT1}, 272, v{vT1}"); e(f"v_lshl_add_u32 v{vT1}, v{vT2}, 5, v{vT1}"); e(f"v_add_u32 v{vT2}, {2*RS}, v{vT1}")
e(f"s_lshl_b32 s{sT0}, s{sTB}, 1"); e(f"s_add_u32 s{sT0}, s{sT0}, s{sTH}"); e(f"s_mul_i32 s{sT0}, s{sT0}, {64*896}"); e(f"s_lshl_b32 s{sT1}, s{sCB}, 7"); e(f"s_add_u32 s{sT0}, s{sT0}, s{sT1}")
e(f"s_add_u32 s{sT1}, s{sT0}, {8*896}")
vm.all()
for u in range(2):
    for t in range(2):
        b=32*u+16*t
        for k in range(16): e(f"v_sub_f32 v{AA+b+k}, v{AA+b+k}, v{AB+b+k}")
        for k in range(16): e(f"v_fmac_f32 v{AB+b+k}, v{vG+u}, v{AA+b+k}")
        for q in range(4): e(f"ds_write_b128 v{vT0}, {r('v',AB+b+4*q,4)} offset:{u*32*272+t*128+q*32}")
e("s_waitcnt lgkmcnt(0)"); e("s_barrier")
for p in range(2):
    for w in range(4):
        for h in range(2): e(f"ds_read_b128 {r('v',32+32*p+8*w+4*h,4)}, v{vT1+w//2} offset:{(w%2)*RS+p*8*272+h*16}")
for p in range(2):
    e(f"s_waitcnt lgkmcnt({8-8*p})"); b=32+32*p
    for k in range(8): e(f"v_add_f32 v{b+k}, v{b+k}, v{b+8+k}"); e(f"v_add_f32 v{b+16+k}, v{b+16+k}, v{b+24+k}")
    for k in range(8): e(f"v_add_f32 v{b+k}, v{b+k}, v{b+16+k}")
    for k in range(4): e(f"v_cvt_pk_bf16_f32 v{b+8+k}, v{b+2*k}, v{b+2*k+1}")
    e(f"buffer_store_dwordx4 {r('v',b+8,4)}, v{vT3}, s[{sOUT}:{sOUT+3}], s{sT0+p} offen")
lab("L_fin")
if TS:
    e("s_waitcnt vmcnt(0)"); ts(); e("s_waitcnt lgkmcnt(0)")
    for i in range(tsn[0]): e(f"v_writelane_b32 v7, s{sTS+2*i}, {i}")
    e(f"s_lshl_b32 s{sT0}, s2, 2"); e(f"s_add_u32 s{sT0}, s{sT0}, s{sW}"); e(f"s_lshl_b32 s{sT0}, s{sT0}, 8"); e(f"s_add_u32 s{sT0}, s{sT0}, {WS_T}")
    e(f"v_lshlrev_b32 v{vT0}, 2, v{vL}"); e(f"buffer_store_dword v7, v{vT0}, s[{sWS}:{sWS+3}], s{sT0} offen")
e("s_endpgm")
for t in tail: L.append(t)
lab("L_fb")
e(f"s_cmp_lg_u32 s{sPASS}, 0"); e("s_cbranch_scc1 L_fbok"); e(f"s_mov_b32 s{sPASS}, 1"); e("s_waitcnt vmcnt(0)")
M=P
for q in range(4):
    e(f"v_mov_b32 v{M+q}, 0xff800000")
    for i in (6,7): e(f"v_cndmask_b32 v{Q+8*q+i}, v{Q+8*q+i}, 0, s[{sUP}:{sUP+1}]")
e(f"s_mov_b32 s{sT3}, s{sKVO}"); e(f"s_mov_b32 s{sT2}, 16")
lab("L_fbl")
for h in range(2): e(f"buffer_load_dwordx4 {r('v',KT+4*h,4)}, v{vL16}, s[{sWS}:{sWS+3}], s{sT3} offen offset:{h*1024} sc1")
e("s_waitcnt vmcnt(0)")
for q in range(4):
    mfma(S,KT,Q+8*q,0); mfma(S,KT+4,Q+8*q+4); e("s_nop 15")
    for i in range(0,16,2): e(f"v_max3_f32 v{M+q}, v{M+q}, v{S+i}, v{S+i+1}")
e(f"s_add_u32 s{sT3}, s{sT3}, 4096"); e(f"s_sub_u32 s{sT2}, s{sT2}, 1"); e(f"s_cmp_lg_u32 s{sT2}, 0"); e("s_cbranch_scc1 L_fbl")
e("s_barrier")
e(f"v_lshlrev_b32 v{vT2}, 2, v{vL}")
for q in range(4):
    halfmax(M+q)
    e(f"s_add_u32 s{sT0}, s{sW}, {q}"); e(f"s_and_b32 s{sT0}, s{sT0}, 3"); e(f"s_lshl_b32 s{sT0}, s{sT0}, 10"); e(f"s_add_u32 s{sT0}, s{sT0}, {RED}")
    e(f"v_add_u32 v{S+q}, s{sT0}, v{vT2}"); e(f"ds_write_b32 v{S+q}, v{M+q} offset:{q*256}")
e("s_waitcnt lgkmcnt(0)"); e("s_barrier")
for q in range(4):
    for i in range(4): e(f"ds_read_b32 v{S+4+i}, v{S+q} offset:{i*256}")
    e("s_waitcnt lgkmcnt(0)"); e(f"v_max3_f32 v{M+q}, v{S+4}, v{S+5}, v{S+6}"); e(f"v_max_f32 v{M+q}, v{M+q}, v{S+7}")
    mins(M+q,Q+8*q)
e("s_barrier"); e("s_branch L_attn")
lab("L_end"); e("s_endpgm")
L.append(f""".section .rodata,"a"
.p2align 6
.amdhsa_kernel {NAME}_kernel
  .amdhsa_next_free_vgpr 512
  .amdhsa_next_free_sgpr 102
  .amdhsa_accum_offset 256
  .amdhsa_group_segment_fixed_size 0
  .amdhsa_kernarg_size 96
  .amdhsa_user_sgpr_count 2
  .amdhsa_user_sgpr_kernarg_segment_ptr 1
  .amdhsa_system_sgpr_workgroup_id_x 1
.end_amdhsa_kernel""")
out=[a for a in sys.argv[1:] if a.endswith(".s")]
open(out[0] if out else f"cdna_kernels/{NAME}.s","w").write("\n".join(L)+"\n")
```

```python
import sys, math, struct
NAME="gated_mix__grouped_kv_mqa__dense_activation_relu__prompt"
TC = "tc" in sys.argv
TS = "ts" in sys.argv or TC
FORCE_FB = "fb" in sys.argv
import re
DROP=[a[5:] for a in sys.argv if a.startswith("drop=")]
L=[]
def e(s): L.append("  "+s)
def lab(s): L.append(s+":")
def f2u(x): return "0x%08x"%struct.unpack("<I",struct.pack("<f",x))[0]
class VM:
    def __init__(s): s.q=[]; s.seen=set()
    def op(s,tag,txt):
        s.seen.add(tag)
        for d in DROP:
            if re.fullmatch(d,tag): return
        e(txt); s.q.append(tag)
    def n(s,tag):
        assert tag in s.seen, tag
        idx=[i for i,t in enumerate(s.q) if t==tag]
        if not idx: return None
        return len(s.q)-1-idx[-1]
    def wait(s,tag):
        n=s.n(tag)
        if n is None: return
        n=min(n,63); e(f"s_waitcnt vmcnt({n})"); s.q=s.q[len(s.q)-n:] if n else []
    def all(s): e("s_waitcnt vmcnt(0)"); s.q=[]
vm=VM()
class LG(VM):
    def wait(s,tag):
        n=s.n(tag)
        if n is None: return
        n=min(n,15); e(f"s_waitcnt lgkmcnt({n})"); s.q=s.q[len(s.q)-n:] if n else []
    def all(s): e("s_waitcnt lgkmcnt(0)"); s.q=[]
lg=LG()
def opt(name,d):
    v=[a.split("=")[1] for a in sys.argv if a.startswith(name+"=")]
    return int(v[0]) if v else d
def r(p,a,n): return f"{p}[{a}:{a+n-1}]"
def mfma(d,a,b,c=None,pa="v",pb="v"):
    cc = "0" if c==0 and c is not None else r("v",d,16)
    e(f"v_mfma_f32_32x32x16_bf16 {r('v',d,16)}, {r(pa,a,4)}, {r(pb,b,4)}, {cc}")
WS_KV=0; WS_H=0x40000; WS_O=0x740000; WS_G=0x940000; WS_C=0x950000; WS_T=0x960000; WS_SZ=0x1000000
RS=28672; W0B=4*RS; QX=143360; RED=114688
sX,sW0,sWB,sWS,sWO,sOUT,sDBG=8,12,16,20,24,28,32
bKV,bH,bW2,pW2s=36,38,40,42
sTB,sJ,sW,sRW,sST0,sROT,sSTB,sCOLB,sT0,sT1,sT2,sT3,sTT,sPASS,sCNT,sSP,sHO,sW2O,sWOO,sOO,sTH,sCB=range(44,66)
sUP=66; sTS=70; sPR=3
tsn=[0]
TSET=[a[4:] for a in sys.argv if a.startswith("set=")]; TSET=TSET[0] if TSET else "m"
def ts(k="m",idx=None):
    if TS and (TSET in k or k=="*"):
        if idx is not None: tsn[0]=idx
        e(f"{'s_memtime' if TC else 's_memrealtime'} s[{sTS+2*tsn[0]}:{sTS+2*tsn[0]+1}]"); tsn[0]+=1
def srd(d,b,size):
    e(f"s_mov_b32 s{d}, s{b}"); e(f"s_and_b32 s{d+1}, s{b+1}, 0xffff")
    e(f"s_mov_b32 s{d+2}, {size}"); e(f"s_mov_b32 s{d+3}, 0x20000")
vL,vL16,vT0,vT1,vT2,vT3=1,2,3,4,5,6
vXA=8;vXR=12;vW0A=16;vWBA=17;vTR0=21;vTRB=22;vTR3=26;vPOLL=28;vGO=29;vG=30;vD3=240;vHU=244;vOU=246;vONE=248;vSIG=249;vZ=250
WF=32;PK=48;B0=64;A0=128
Q=32;O=64;S=128;P=160;KV=168;KT=232
OF=64;WG=192;AB=128
hdr=open(f"cdna_kernels/{NAME}.s.ref").read().split("; Override")[0]
L.append(hdr.rstrip())
L.append("; @launch grid=(256,1,1) block=(256,1,1) lds=163840")
L.append(f'.amdgcn_target "amdgcn-amd-amdhsa--gfx950"\n.text\n.globl {NAME}_kernel\n.p2align 8\n.type {NAME}_kernel,@function\n{NAME}_kernel:')
e("s_cmp_ge_u32 s2, 256"); e("s_cbranch_scc1 L_end")
ts("*")
e("s_load_dwordx16 s[8:23], s[0:1], 0"); e("s_load_dwordx8 s[92:99], s[0:1], 64")
e(f"v_lshrrev_b32 v{vT0}, 6, v0"); e(f"v_and_b32 v{vL}, 63, v0")
if opt("map",1):
    e(f"s_bfe_u32 s{sT0}, s2, 0x20001"); e(f"v_readfirstlane_b32 s{sW}, v{vT0}")
    e(f"s_lshl_b32 s{sT0}, s{sT0}, 2"); e(f"s_bfe_u32 s{sT1}, s2, 0x20003"); e(f"s_or_b32 s{sTB}, s{sT0}, s{sT1}")
    e(f"s_and_b32 s{sTH}, s2, 1"); e(f"s_lshr_b32 s{sCB}, s2, 5")
else:
    e(f"s_and_b32 s{sT0}, s2, 7"); e(f"v_readfirstlane_b32 s{sW}, v{vT0}")
    e(f"s_lshl_b32 s{sT0}, s{sT0}, 1"); e(f"s_bfe_u32 s{sT1}, s2, 0x10003"); e(f"s_or_b32 s{sTB}, s{sT0}, s{sT1}")
    e(f"s_bfe_u32 s{sTH}, s2, 0x10004"); e(f"s_lshr_b32 s{sCB}, s2, 5")
e(f"s_lshl_b32 s{sJ}, s{sTH}, 3"); e(f"s_or_b32 s{sJ}, s{sJ}, s{sCB}")
e(f"v_lshlrev_b32 v{vL16}, 4, v{vL}")
e(f"s_mul_i32 s{sRW}, s{sW}, {RS}")
e(f"s_lshl_b32 s{sTT}, s{sTB}, 2"); e(f"s_add_u32 s{sTT}, s{sTT}, s{sW}")
e(f"s_lshl_b32 s{sT0}, s{sTB}, 1"); e(f"s_add_u32 s{sT0}, s{sT0}, s{sJ}"); e(f"s_mul_i32 s{sT1}, s{sT0}, 37"); e(f"s_lshr_b32 s{sT1}, s{sT1}, 8")
e(f"s_mul_i32 s{sT1}, s{sT1}, 7"); e(f"s_sub_u32 s{sROT}, s{sT0}, s{sT1}")
if not opt("rot",1): e(f"s_mov_b32 s{sROT}, 0")
e(f"v_lshrrev_b32 v7, 3, v{vL}"); e(f"v_mul_u32_u24 v{vT0}, 896, v7")
e(f"v_and_b32 v{vT1}, 7, v{vL}"); e(f"v_lshrrev_b32 v{vT2}, 4, v{vL}"); e(f"v_xor_b32 v{vT2}, v{vT1}, v{vT2}")
e(f"v_lshl_add_u32 v{vXA}, v{vT2}, 4, v{vT0}")
e(f"v_xor_b32 v{vT2}, 4, v{vT2}"); e(f"v_lshl_add_u32 v{vXA+1}, v{vT2}, 4, v{vT0}")
e(f"v_add_u32 v{vXA+2}, {2*6144}, v{vXA}"); e(f"v_add_u32 v{vXA+3}, {3*6144}, v{vXA+1}"); e(f"v_add_u32 v{vXA+1}, 6144, v{vXA+1}")
e(f"v_bfe_u32 v{vT2}, v{vL}, 4, 1"); e(f"v_lshlrev_b32 v{vT2}, 2, v{vT2}"); e(f"v_xor_b32 v{vT2}, v{vT1}, v{vT2}"); e(f"v_lshlrev_b32 v{vWBA}, 4, v{vT2}")
e(f"v_add_u32 v{vD3}, v{vWBA}, v{vT0}")
e(f"v_lshrrev_b32 v{vT0}, 2, v{vL}"); e(f"v_and_b32 v{vT1}, 3, v{vL}"); e(f"v_lshlrev_b32 v{vT1}, 4, v{vT1}")
e(f"s_cmp_lt_u32 s{sCB}, 2"); e(f"s_cselect_b32 s{sSP}, 1, 0")
e("s_waitcnt lgkmcnt(0)")
ts("s")
pG,pOUT,pDBG,pWS=92,94,96,98
e("s_mov_b64 s[4:5], s[20:21]"); e("s_mov_b64 s[6:7], s[10:11]"); e(f"s_mov_b64 s[{pW2s}:{pW2s+1}], s[22:23]")
srd(sWO,16,401408)
e("s_mov_b64 s[100:101], s[12:13]"); e(f"s_mov_b32 s{sST0}, 56"); e(f"s_mov_b32 s{sT3}, 25088"); e(f"s_mov_b32 s{sT2}, 0")
e(f"s_cmp_eq_u32 s{sJ}, 0"); e("s_cbranch_scc1 L_w0done")
e("s_mov_b64 s[100:101], s[14:15]")
e(f"s_cmp_eq_u32 s{sJ}, 8"); e("s_cbranch_scc1 L_w0done")
e(f"s_mov_b32 s{sT3}, 0")
e(f"s_cmp_eq_u32 s{sJ}, 9"); e("s_cbranch_scc1 L_w0done")
e("s_mov_b64 s[100:101], s[6:7]"); e(f"s_mov_b32 s{sST0}, 896"); e(f"s_mov_b32 s{sT3}, 401408"); e(f"s_mul_i32 s{sT2}, s{sJ}, 56")
e(f"s_cmp_lg_u32 s{sJ}, 1"); e("s_cbranch_scc1 L_w0done")
e(f"s_mov_b64 s[100:101], s[{pG}:{pG+1}]"); e(f"s_mov_b32 s{sST0}, 2"); e(f"s_mov_b32 s{sT3}, 896"); e(f"s_mov_b32 s{sT2}, 0"); e(f"v_mov_b32 v{vT0}, 0")
lab("L_w0done")
srd(sW0,100,f"s{sT3}"); srd(sX,8,1835008)
e(f"v_mad_u32_u24 v{vW0A}, v{vT0}, s{sST0}, v{vT1}")
e(f"s_lshl_b32 s{sT0}, s{sW}, 10"); e(f"s_add_u32 s{sT0}, s{sT0}, {W0B}")
e(f"s_lshl_b32 s{sST0}, s{sST0}, 4"); e(f"s_mul_i32 s{sT1}, s{sW}, s{sST0}"); e(f"s_add_u32 s{sT2}, s{sT2}, s{sT1}"); e(f"s_lshl_b32 s{sST0}, s{sST0}, 2")
e(f"s_mul_i32 s{sT3}, s{sTT}, {32*896}")
def rotc(c):
    if c==0: e(f"s_mov_b32 s{sPR}, s{sROT}")
    else: e(f"s_add_u32 s{sPR}, s{sPR}, 1"); e(f"s_cmp_eq_u32 s{sPR}, 7"); e(f"s_cselect_b32 s{sPR}, 0, s{sPR}")
for c in range(7):
    rotc(c); e(f"s_mul_i32 s{sT1}, s{sPR}, s{sST0}"); e(f"s_add_u32 m0, s{sT0}, {c*4096}"); e(f"s_add_u32 s{sT1}, s{sT1}, s{sT2}")
    vm.op(f"x{c}",f"buffer_load_dwordx4 v{vW0A}, s[{sW0}:{sW0+3}], s{sT1} offen lds")
    e(f"s_lshl_b32 s{sT1}, s{sPR}, 7"); e(f"s_add_u32 m0, s{sRW}, {c*4096}"); e(f"s_add_u32 s{sT1}, s{sT1}, s{sT3}")
    for i in range(4): vm.op(f"x{c}",f"buffer_load_dwordx4 v{vXA+i}, s[{sX}:{sX+3}], s{sT1} offen offset:{i*1024} lds")
    if c==1:
        e("s_getpc_b64 s[68:69]"); lab("L_pc")
        e(f"s_mul_i32 s{sT1}, s{sW}, 8192"); e(f"v_lshlrev_b32 v{vT2}, 7, v{vL}"); e(f"v_add_u32 v{vT2}, s{sT1}, v{vT2}")
        e(f"v_min_u32 v{vT2}, L_end-L_pc, v{vT2}")
        vm.op("pf",f"global_load_dword v{vPOLL}, v{vT2}, s[68:69]")
srd(sWS,pWS,WS_SZ); srd(sOUT,pOUT,1835008); srd(sDBG,pDBG,256)
e(f"s_mov_b32 s{sUP}, 0"); e(f"s_mov_b32 s{sUP+1}, -1")
for i in range(1,4): e(f"v_add_u32 v{vD3+i}, {6144*i}, v{vD3}")
e(f"s_lshl_b32 s{sT0}, s{sCB}, 1"); e(f"s_sub_u32 s{sT0}, s{sT0}, 2"); e(f"s_cmp_eq_u32 s{sSP}, 1"); e(f"s_cselect_b32 s{sT0}, s{sCB}, s{sT0}")
e(f"s_mul_i32 s{sT1}, s{sTH}, 14"); e(f"s_add_u32 s68, s{sT0}, s{sT1}")
srd(sWB,4,1605632); e(f"s_mov_b32 s{sSTB}, 3584")
e(f"s_lshr_b32 s{sT1}, s{sW}, 1"); e(f"s_add_u32 s{sT0}, s68, s{sT1}"); e(f"s_lshl_b32 s{sCOLB}, s{sT0}, 7")
e(f"s_and_b32 s{sT1}, s{sT1}, s{sSP}"); e("s_cbranch_scc0 L_wbdone")
srd(sWB,6,401408); e(f"s_mov_b32 s{sSTB}, 896"); e(f"s_mul_i32 s{sCOLB}, s{sJ}, 56")
lab("L_wbdone")
e(f"v_mad_u32_u24 v{vWBA}, v7, s{sSTB}, v{vWBA}")
e(f"s_lshl_b32 s{sT0}, s{sSTB}, 3"); e(f"s_sub_u32 s{sT0}, s{sT0}, 1024")
for i in range(1,4): e(f"v_add_u32 v{vWBA+i}, s{sT0}, v{vWBA+i-1}")
e(f"s_lshl_b32 s{sSTB}, s{sSTB}, 5"); e(f"s_and_b32 s{sT0}, s{sW}, 1"); e(f"s_mul_i32 s{sT0}, s{sT0}, s{sSTB}"); e(f"s_add_u32 s{sCOLB}, s{sCOLB}, s{sT0}"); e(f"s_lshl_b32 s{sSTB}, s{sSTB}, 1")
e(f"v_and_b32 v{vT0}, 31, v{vL}"); e(f"v_lshrrev_b32 v{vT1}, 5, v{vL}"); e(f"v_bfe_u32 v{vT2}, v{vL}, 1, 3")
e(f"v_xor_b32 v{vT2}, v{vT1}, v{vT2}"); e(f"v_lshlrev_b32 v{vT0}, 7, v{vT0}"); e(f"v_add_u32 v{vT0}, s{sRW}, v{vT0}")
for s in range(4):
    e(f"v_xor_b32 v{vT3}, {2*s}, v{vT2}"); e(f"v_lshl_add_u32 v{vXR+s}, v{vT3}, 4, v{vT0}")
e(f"v_bfe_u32 v{vT0}, v{vL}, 2, 2"); e(f"v_bfe_u32 v{vT2}, v{vL}, 4, 1"); e(f"v_and_b32 v{vT3}, 3, v{vL}")
e(f"v_lshlrev_b32 v{vT3}, 3, v{vT3}"); e(f"v_lshl_add_u32 v{vT3}, v{vT2}, 5, v{vT3}")
e(f"v_lshl_add_u32 v{vT2}, v{vT1}, 3, v{vT0}"); e(f"v_lshl_add_u32 v{vTR0}, v{vT2}, 6, v{vT3}"); e(f"v_add_u32 v{vTR0}, {W0B}, v{vTR0}")
e(f"v_bfe_u32 v7, v{vL}, 3, 1"); e(f"v_lshl_add_u32 v{vT3}, v7, 6, v{vT3}")
e(f"v_lshl_add_u32 v{vTRB}, v{vT2}, 7, v{vT3}"); e(f"v_xor_b32 v{vTRB+1}, 64, v{vTRB}")
e(f"v_add_u32 v{vTRB+2}, {2*RS}, v{vTRB}"); e(f"v_add_u32 v{vTRB+3}, {2*RS}, v{vTRB+1}")
e(f"v_lshl_add_u32 v{vT2}, v{vT1}, 2, v{vT0}"); e(f"v_lshl_add_u32 v{vT3}, v{vT2}, 7, v{vT3}")
e(f"s_and_b32 s{sT0}, s{sW}, 1"); e(f"s_lshl_b32 s{sT0}, s{sT0}, 6"); e(f"v_xor_b32 v{vT3}, s{sT0}, v{vT3}"); e(f"v_add_u32 v{vTR3}, s{sRW}, v{vT3}")
e(f"v_xor_b32 v{vT3}, 64, v{vT3}"); e(f"v_add_u32 v{vTR3+1}, s{sRW}, v{vT3}")
e(f"s_lshr_b32 s{sT0}, s{sW}, 1"); e(f"s_xor_b32 s{sT1}, s{sT0}, 1")
for u in range(2):
    e(f"s_mul_i32 s{sT2}, s{sT0+u}, {112*1024}"); e(f"v_add_u32 v{vHU+u}, s{sT2}, v{vL16}"); e(f"s_lshl_b32 s{sT2}, s{sT0+u}, 15"); e(f"v_add_u32 v{vOU+u}, s{sT2}, v{vL16}")
e(f"v_mov_b32 v{vONE}, 1"); e(f"v_lshlrev_b32 v{vSIG}, 24, v{vL}"); e(f"v_mov_b32 v{vZ}, 0")
e(f"s_lshl_b32 s{sCNT}, s{sTB}, 9"); e(f"s_add_u32 s{sCNT}, s{sCNT}, {WS_C}")
e(f"s_lshl_b32 s{sT0}, s{sTB}, 2"); e(f"s_lshl_b32 s{sT1}, s{sTH}, 1"); e(f"s_add_u32 s{sT0}, s{sT0}, s{sT1}")
e(f"s_mul_i32 s{sHO}, s{sT0}, {112*1024}"); e(f"s_mul_i32 s{sT1}, s{sW}, {28*1024}"); e(f"s_add_u32 s{sHO}, s{sHO}, s{sT1}"); e(f"s_add_u32 s{sHO}, s{sHO}, {WS_H+4096}")
e(f"s_lshl_b32 s{sOO}, s{sT0}, 15"); e(f"s_lshl_b32 s{sT1}, s{sW}, 13"); e(f"s_add_u32 s{sOO}, s{sOO}, s{sT1}"); e(f"s_add_u32 s{sOO}, s{sOO}, {WS_O+4096}")
e(f"s_min_u32 s{sT1}, s{sCB}, 6"); e(f"s_lshl_b32 s{sT1}, s{sT1}, 7"); e(f"s_mul_i32 s{sW2O}, s{sW}, {448*896}"); e(f"s_add_u32 s{sW2O}, s{sW2O}, s{sT1}")
e(f"s_mul_i32 s{sWOO}, s{sW}, {112*896}"); e(f"s_add_u32 s{sWOO}, s{sWOO}, s{sT1}")
e(f"s_mov_b32 s{sPASS}, 0")
ts("s")
def wbdma(c):
    rotc(c); e(f"s_mul_i32 s{sT1}, s{sPR}, s{sSTB}"); e(f"s_add_u32 m0, s{sRW}, {c*4096}"); e(f"s_add_u32 s{sT1}, s{sT1}, s{sCOLB}")
    lg.wait(f"x{c}")
    for i in range(4): vm.op(f"wb{c}",f"buffer_load_dwordx4 v{vWBA+i}, s[{sWB}:{sWB+3}], s{sT1} offen offset:{i*1024} lds")
NE=opt("ne",3)
def passA(kind):
    for c in range(7):
        vm.wait(f"x{c}")
        if c in (0,1,3,6): ts("s",{0:3,1:4,3:5,6:6}[c])
        for s in range(4): lg.op(f"x{c}",f"ds_read_b128 {r('a',16*c+4*s,4)}, v{vXR+s} offset:{c*4096}")
        e("s_barrier")
        for s in range(4):
            ks=4*c+s
            if kind=="g": lg.op("w",f"ds_read_b128 {r('v',WF+4*s,4)}, v7 offset:{ks*1024}")
            else:
                for h in range(2): lg.op("w",f"ds_read_b64_tr_b16 {r('v',WF+4*s+2*h,2)}, v{vTR0} offset:{ks*1024+h*256}")
        if kind in "qg" or c<NE: wbdma(c)
        lg.all()
        for s in range(4):
            z=0 if (c==0 and s==0) else None
            if kind=="v": mfma(A0,16*c+4*s,WF+4*s,z,pa="a")
            else: mfma(A0,WF+4*s,16*c+4*s,z,pb="a")
def pack(dst,src,relu=False):
    for i in range(8): e(f"v_cvt_pk_bf16_f32 v{dst+i}, v{src+2*i}, v{src+2*i+1}")
    if relu:
        for i in range(8): e(f"v_pk_max_i16 v{dst+i}, v{dst+i}, 0")
def st2(tag,src,soff,off=0):
    for h in range(2): vm.op(tag,f"buffer_store_dwordx4 {r('v',src+4*h,4)}, v{vL16}, s[{sWS}:{sWS+3}], s{soff} offen offset:{off+h*1024} sc1")
tail=[]
q0=list(vm.q)
e(f"s_cmp_eq_u32 s{sJ}, 8"); e("s_cbranch_scc1 L_av")
e(f"s_cmp_eq_u32 s{sJ}, 1"); e("s_cbranch_scc1 L_ag")
e(f"s_cmp_eq_u32 s{sJ}, 0"); e("s_cbranch_scc1 L_ak")
passA("q"); qn=list(vm.q); main=L; L=[]
lab("L_ak"); vm.q=list(q0); passA("k")
e(f"v_lshlrev_b32 v{vT0}, 7, v{vL}"); e(f"v_cmp_gt_u32 vcc, 3, v{vL}"); e(f"v_mov_b32 v{vT2}, {WS_SZ}"); e(f"s_lshl_b32 s{sT0}, s{sTT}, 12")
e(f"v_cndmask_b32 v{vT2}, v{vT2}, v{vT0}, vcc")
e(f"buffer_store_dword v{vZ}, v{vT2}, s[{sWS}:{sWS+3}], s{sCNT} offen sc1")
e(f"v_mov_b32 v{vT0}, 0x3f803f80"); e(f"v_mov_b32 v{vT1}, 0x00003f80"); e("s_nop 7")
pack(PK,A0)
e(f"v_cndmask_b32 v{PK+6}, v{PK+6}, v{vT0}, s[{sUP}:{sUP+1}]"); e(f"v_cndmask_b32 v{PK+7}, v{PK+7}, v{vT1}, s[{sUP}:{sUP+1}]")
e("s_branch L_akv")
lab("L_av"); vm.q=list(q0); passA("v")
e(f"v_and_b32 v{vT0}, 31, v{vL}"); e(f"v_mov_b32 v{vT1}, 0x3f803f80"); e(f"v_cmp_eq_u32 vcc, 28, v{vT0}"); e("s_nop 1")
e(f"v_cndmask_b32 v{vT1}, 0, v{vT1}, vcc"); e(f"v_cmp_gt_u32 vcc, 28, v{vT0}"); e("s_nop 7")
pack(PK,A0)
for i in range(8): e(f"v_cndmask_b32 v{PK+i}, v{vT1}, v{PK+i}, vcc")
e(f"s_lshl_b32 s{sT0}, s{sTT}, 12"); e(f"s_add_u32 s{sT0}, s{sT0}, 2048")
lab("L_akv"); st2("a",PK,sT0)
for c in range(NE,7): wbdma(c)
vm.wait("a"); e("s_barrier")
e(f"s_cmp_lg_u32 s{sW}, 0"); e("s_cbranch_scc1 L_pb")
e(f"s_lshl_b32 s{sT0}, s{sTH}, 7"); e(f"buffer_atomic_add v{vONE}, v{vSIG}, s[{sDBG}:{sDBG+3}], s{sT0} offen sc1")
e("s_branch L_pb")
lab("L_ag"); vm.q=list(q0)
e(f"v_lshrrev_b32 v7, 5, v{vL}"); e(f"v_lshlrev_b32 v7, 4, v7"); e(f"v_add_u32 v7, {W0B}, v7")
passA("g"); e("s_nop 15")
e(f"v_mul_f32 v{vT0}, {f2u(-math.log2(math.e))}, v{A0}"); e(f"v_exp_f32 v{vT0}, v{vT0}"); e("s_nop 0"); e(f"v_add_f32 v{vT0}, 1.0, v{vT0}")
e(f"v_rcp_f32 v{vT0}, v{vT0}"); e(f"v_and_b32 v{vT1}, 31, v{vL}"); e(f"v_lshlrev_b32 v{vT1}, 2, v{vT1}")
e(f"s_lshl_b32 s{sT0}, s{sTT}, 7"); e(f"s_add_u32 s{sT0}, s{sT0}, {WS_G}")
e(f"buffer_store_dword v{vT0}, v{vT1}, s[{sWS}:{sWS+3}], s{sT0} offen sc1")
e("s_branch L_pb")
tail.append("\n".join(L)); L=main; vm.q=qn
lab("L_pb")
ts()
def spin(name,tag,ld,target,two=False):
    def chk():
        if two: return f"  v_readlane_b32 s{sT0}, v{vPOLL}, 0\n  v_readlane_b32 s{sT1}, v{vPOLL}, 1\n  s_min_u32 s{sT0}, s{sT0}, s{sT1}\n  s_cmp_ge_u32 s{sT0}, {target}"
        return f"  v_readfirstlane_b32 s{sT0}, v{vPOLL}\n  s_cmp_ge_u32 s{sT0}, {target}"
    vm.wait(tag); L.append(chk()); e(f"s_cbranch_scc0 L_sp{name}"); lab(f"L_ok{name}")
    tail.append(f"""L_sp{name}:
  s_mov_b32 s69, 0
L_sq{name}:
  {ld}
  s_add_u32 s69, s69, 1
  s_waitcnt vmcnt(0)
  s_cmp_ge_u32 s69, 0x40000
  s_cbranch_scc1 L_ok{name}
{chk()}
  s_cbranch_scc0 L_sq{name}
  s_branch L_ok{name}""")
def gld(tag,dst,va,base,off,p="v"): vm.op(tag,f"global_load_dwordx4 {r(p,dst,4)}, v{va}, s[{base}:{base+1}] offset:{off} sc1")
def setb(b,src,off): return [f"s_add_u32 s{b}, s{src}, {off}", f"s_addc_u32 s{b+1}, s{src+1}, 0"]
def ldkv(kt,f): gld(f"kv{kt}",KV+16*(kt%4)+4*f,vL16,bKV,(kt%2)*4096-4096+f*1024)
def kvinit():
    o=[f"s_lshl_b32 s{sT1}, s{sW}, 16",f"s_add_u32 s{sT1}, s{sT1}, 4096"]+setb(bKV,pWS,f"s{sT1}")
    for kt in range(3):
        if kt==2: o+=setb(bKV,bKV,8192)
        o+=[(lambda kt=kt,f=f: ldkv(kt,f)) for f in range(4)]
    return o
def do(x):
    if callable(x): x()
    else: e(x)
def trB(ks,t):
    for h in range(2): lg.op(f"b{ks}",f"ds_read_b64_tr_b16 {r('v',WF+16*(ks%2)+4*t+2*h,2)}, v{vTRB+t} offset:{((ks%4)//2)*RS+(ks//4)*4096+(ks%2)*2048+h*512}")
ld1=f"buffer_load_dword v{vPOLL}, v{vT3}, s[{sDBG}:{sDBG+3}], 0 offen sc1"
PL=opt("pl",18); PC=opt("pc",23)
vm.wait("wb0"); e("s_barrier"); e(f"v_lshlrev_b32 v{vT3}, 7, v{vL}")
for t in range(4): trB(0,t)
side=[]
for ks in range(28):
    if (ks+1)%4==0 and ks<27:
        vm.wait(f"wb{(ks+1)//4}"); e("s_barrier")
        if ks in (3,11,23): ts("s")
    if ks==PL: side.append(lambda: vm.op("p1",ld1))
    if ks==PC:
        spin("1","p1",ld1,16,True); ts()
        side+=[(lambda h=h: gld("kt",KT+4*h,vL16,pWS,h*1024)) for h in range(2)]+kvinit()
    lg.wait(f"b{ks}")
    for t in range(4):
        mfma(B0+16*t,WF+16*(ks%2)+4*t,4*ks,0 if ks==0 else None,pb="a")
        if ks<27: trB(ks+1,t)
        if side: do(side.pop(0))
while side: do(side.pop(0))
ts()
e(f"s_mul_i32 s{sT0}, s{sTT}, {112*1024}"); e(f"s_lshl_b32 s{sT1}, s68, 12"); e(f"s_add_u32 s{sT0}, s{sT0}, s{sT1}"); e(f"s_add_u32 s{sT0}, s{sT0}, {WS_H}")
e(f"s_add_u32 s{sT1}, s{sT0}, 4096")
e(f"s_mov_b32 s{sT2}, {f2u(math.log2(math.e)/math.sqrt(28))}")
e(f"s_cmp_eq_u32 s{sSP}, 1"); e("s_cbranch_scc1 L_qsp")
for i in range(16): e(f"v_mul_f32 v{A0+i}, s{sT2}, v{A0+i}")
lab("L_qdone")
tail.append("L_qsp:\n  s_nop 7\n"+"".join(f"  v_mul_f32 v{A0+i}, s{sT2}, v{B0+32+i}\n" for i in range(16))+f"  s_mov_b32 s{sT1}, {WS_SZ}\n  s_branch L_qdone")
pack(Q,A0)
for i in (6,7): e(f"v_cndmask_b32 v{Q+i}, v{Q+i}, 0, s[{sUP}:{sUP+1}]")
def mins(m,q):
    e(f"v_sub_f32 v{m}, 0, v{m}"); e(f"v_and_b32 v{vT0}, 0xffff0000, v{m}"); e(f"v_sub_f32 v{m}, v{m}, v{vT0}")
    e(f"v_and_b32 v{vT1}, 0xffff0000, v{m}"); e(f"v_sub_f32 v{m}, v{m}, v{vT1}")
    e(f"v_lshrrev_b32 v{vT0}, 16, v{vT0}"); e(f"v_or_b32 v{vT0}, v{vT0}, v{vT1}"); e(f"v_lshrrev_b32 v{m}, 16, v{m}")
    e(f"v_cndmask_b32 v{q+6}, v{q+6}, v{vT0}, s[{sUP}:{sUP+1}]"); e(f"v_cndmask_b32 v{q+7}, v{q+7}, v{m}, s[{sUP}:{sUP+1}]")
def halfmax(m):
    e(f"v_mov_b32 v{vT0}, v{m}"); e("s_nop 1"); e(f"v_permlane32_swap_b32 v{vT0}, v{m}"); e("s_nop 1"); e(f"v_max_f32 v{m}, v{m}, v{vT0}")
pack(40,B0,True); st2("h",40,sT0)
vm.wait("kt")
mfma(S+16,KT,Q,0); mfma(S+16,KT+4,Q+4)
pack(48,B0+16,True); st2("h",48,sT0,2048)
e(f"s_lshl_b32 s{sT0}, s{sW}, 11"); e(f"s_add_u32 s{sT0}, s{sT0}, {QX}"); e(f"v_add_u32 v{vT3}, s{sT0}, v{vL16}")
e(f"v_max3_f32 v{vT2}, v{S+16}, v{S+17}, v{S+18}")
for i in range(3,15,2): e(f"v_max3_f32 v{vT2}, v{vT2}, v{S+16+i}, v{S+17+i}")
e(f"v_max_f32 v{vT2}, v{vT2}, v{S+31}")
halfmax(vT2); mins(vT2,Q)
e(f"ds_write_b128 v{vT3}, {r('v',Q,4)}"); e(f"ds_write_b128 v{vT3}, {r('v',Q+4,4)} offset:1024")
pack(56,B0+32,True); st2("h",56,sT1); pack(P,B0+48,True); st2("h",P,sT1,2048)
for i in range(1,4):
    e(f"s_add_u32 s{sT0}, s{sW}, {i}"); e(f"s_and_b32 s{sT0}, s{sT0}, 3"); e(f"s_lshl_b32 s{sT0}, s{sT0}, 11"); e(f"s_add_u32 s{sT0}, s{sT0}, {QX}")
    e(f"v_add_u32 v{vT0+i}, s{sT0}, v{vL16}")
e("s_waitcnt lgkmcnt(0)"); e("s_barrier")
for i in range(1,4):
    for h in range(2): e(f"ds_read_b128 {r('v',Q+8*i+4*h,4)}, v{vT0+i} offset:{h*1024}")
lab("L_attn")
e(f"s_and_b32 s{sT0}, s{sTB}, 1"); e(f"s_xor_b32 s{sT1}, s{sT0}, 1")
for u in range(2):
    e(f"s_mul_i32 s{4+u}, s{sT0+u}, {14*1024}"); e(f"s_add_u32 s{4+u}, s{4+u}, s{sHO}")
    e(f"s_mul_i32 s{6+u}, s{sT0+u}, {14*16*896}"); e(f"s_add_u32 s{6+u}, s{6+u}, s{sW2O}")
def dmaw2(step):
    o=[f"s_add_u32 m0, s{sRW}, {(step%14)*2048}"]
    o+= setb(bW2,pW2s,f"s{6+step//14}") if step%14==0 else setb(bW2,bW2,32*896)
    return o+[(lambda i=i: vm.op(f"d{step+i//2}",f"global_load_lds_dwordx4 v{vD3+i}, s[{bW2}:{bW2+1}] offset:{i*1024}")) for i in range(4)]
def dmawo(step):
    hd=(step-28)//2
    o=[f"s_add_u32 m0, s{sRW}, {(step%14)*2048}", f"s_add_u32 s{sT2}, s{sWOO}, {hd*28*896}"]
    return o+[(lambda i=i: vm.op(f"d{step+i//2}",f"buffer_load_dwordx4 v{vD3+i}, s[{sWO}:{sWO+3}], s{sT2} offen offset:{i*1024} lds")) for i in range(4)]
def qk(t,h): mfma(S+16*(t%2),KV+16*((t//4)%4)+4*h,Q+8*(t%4)+4*h,0 if h==0 else None)
def pv(t,h): mfma(O+16*(t%4),KV+16*((t//4)%4)+8+4*h,P+4*h,0 if (t<4 and h==0) else None)
def grp(t,g):
    s=S+16*(t%2)+4*g
    for i in range(4): e(f"v_exp_f32 v{s+i}, v{s+i}")
    for i in range(2): e(f"v_cvt_pk_bf16_f32 v{P+2*g+i}, v{s+2*i}, v{s+2*i+1}")
vm.wait("kv0")
ts()
qk(0,0); qk(0,1)
e(f"v_and_b32 v{vT1}, 31, v{vL}"); e(f"v_lshlrev_b32 v{vT1}, 2, v{vT1}"); e(f"v_mul_u32_u24 v{vT2}, 896, v{vL}")
e(f"s_lshr_b32 s{sT0}, s{sW}, 1"); e(f"s_lshl_b32 s{sT0}, s{sT0}, 7"); e(f"v_xor_b32 v{vT0}, s{sT0}, v{vT1}"); e(f"v_xor_b32 v{vT3}, 0x80, v{vT0}")
e("s_waitcnt lgkmcnt(0)"); e("s_nop 3")
fixed={}
for kt in range(16):
    if kt+3<16:
        if (kt+3)%2==0:
            a=setb(bKV,bKV,8192); fixed[(4*kt,1)]=a[0]+"\n  "+a[1]
        for f in range(4): fixed[(4*kt+1,f)]=(lambda kt=kt,f=f: ldkv(kt+3,f))
    if kt<15: fixed[(4*kt+2,3)]=(lambda kt=kt: vm.wait(f"kv{kt+1}"))
ld2=f"buffer_load_dword v{vPOLL}, v{vZ}, s[{sWS}:{sWS+3}], s{sCNT} offen sc1"
SG=opt("sg",6); D0=opt("d0",2); H0=opt("h0",26)
fifo=[]
def carry(lst):
    o=[]; i=0
    while i<len(lst):
        if isinstance(lst[i],str) and i+1<len(lst) and isinstance(lst[i+1],str) and lst[i+1].startswith("s_addc"): o.append(lst[i]+"\n  "+lst[i+1]); i+=2
        else: o.append(lst[i]); i+=1
    return o
def hloads():
    o=[]
    for ks in range(28):
        k=ks%14
        if k==0: o+=setb(bH,pWS,f"s{4+ks//14}")
        if k==8: o+=setb(bH,bH,8192)
        for u in range(2): o.append(lambda ks=ks,u=u,k=k: gld(f"h{ks}",(ks*2+u)*4,vHU+u,bH,(k%8)*1024-4096,"a"))
    return o
def gloads():
    o=[f"s_lshl_b32 s{sT0}, s{sTB}, 9", f"s_lshl_b32 s{sT1}, s{sTH}, 8", f"s_add_u32 s{sT0}, s{sT0}, s{sT1}", f"s_add_u32 s{sT0}, s{sT0}, {WS_G}",
       f"s_lshl_b32 s{sT1}, s{sTT}, 7", f"s_add_u32 s{sT1}, s{sT1}, {WS_G}"]
    o+=[lambda: vm.op("g",f"buffer_load_dword v{vGO}, v{vT1}, s[{sWS}:{sWS+3}], s{sT1} offen sc1")]
    o+=[(lambda u=u: vm.op("g",f"buffer_load_dword v{vG+u}, v{(vT0,vT3)[u]}, s[{sWS}:{sWS+3}], s{sT0} offen sc1")) for u in range(2)]
    o+=[f"s_add_u32 s{sT2}, s{sWOO}, {64*896}"]
    o+=[(lambda u=u: vm.op("wow",f"buffer_load_dword v7, v{vT2}, s[{sWO}:{sWO+3}], s{(sWOO,sT2)[u]} offen")) for u in range(2)]
    return o
for t in range(64):
    if t in (0,6,8,16,24,28,36,48,63): ts("a")
    if t==SG: fifo=[lambda: vm.wait("h"), lambda: vm.op("s2",f"buffer_atomic_add v{vONE}, v{vSIG}, s[{sWS}:{sWS+3}], s{sCNT} offen sc1")]+fifo
    if t==D0:
        for s in range(0,14,2): fifo+=carry(dmaw2(s))
    if t==H0-5: fifo=[lambda: vm.op("p2",ld2)]+fifo
    if t==H0: fifo+=[lambda: spin("2","p2",ld2,64)]+gloads()+carry(hloads())
    ms=[(lambda: qk(t+1,0)) if t<63 else None,(lambda: qk(t+1,1)) if t<63 else None,(lambda: pv(t-1,1)) if t>0 else None,lambda: pv(t,0)]
    for g in range(4):
        if ms[g]:
            ms[g]()
            if (t,g) in fixed: do(fixed[(t,g)])
            elif fifo: do(fifo.pop(0))
        grp(t,g)
print("fifo left",len(fifo),file=sys.stderr)
while fifo: do(fifo.pop(0))
def tr3(st,t,h):
    d=r('v',WG+8*(st%4)+4*t+2*h,2) if st<28 else r('a',8*(st-28)+4*t+2*h,2)
    lg.op(f"w{st}",f"ds_read_b64_tr_b16 {d}, v{vTR3+t} offset:{(st%14)*2048+h*1024}")
vm.wait("d13"); e("s_nop 0"); pv(63,1)
ts()
for st in range(2):
    for t in range(2):
        for h in range(2): tr3(st,t,h)
red=[]
def A(x): red.append(x)
for i in range(1,4):
    e(f"s_add_u32 s{sT0}, s{sW}, {i}"); e(f"s_and_b32 s{sT0}, s{sT0}, 3"); e(f"s_mul_i32 s{sT0}, s{sT0}, 12288"); e(f"s_add_u32 s{sT0}, s{sT0}, {RED+(i-1)*4096}")
    e(f"v_add_u32 v{vT0+i}, s{sT0}, v{vL16}")
e(f"v_add_f32 v7, v{O+12}, v{O+28}"); e(f"v_add_f32 v7, v7, v{O+44}"); e(f"v_add_f32 v7, v7, v{O+60}")
e(f"v_cmp_ngt_f32 vcc, {f2u(2.0**40 if not FORCE_FB else -1.0)}, v7"); e(f"s_and_b64 vcc, vcc, s[{sUP}:{sUP+1}]")
e(f"s_cselect_b32 s{sT1}, 1.0, 0"); e(f"v_mov_b32 v7, s{sT1}")
for q in range(4): e(f"v_cndmask_b32 v{O+16*q+15}, v{O+16*q+15}, v7, s[{sUP}:{sUP+1}]")
e(f"s_mul_i32 s{sT0}, s{sW}, 12288"); e(f"s_add_u32 s{sT0}, s{sT0}, {RED}"); e(f"v_add_u32 v{vT0}, s{sT0}, v{vL16}")
for i in range(1,4):
    for q in range(4): A([lambda i=i,q=q: lg.op("rw",f"ds_write_b128 v{vT0+i}, {r('v',O+16*i+4*q,4)} offset:{q*1024}")])
A([lambda: lg.wait("rw"),"s_barrier"])
for i in range(0,12,2): A([(lambda i=i+k: lg.op(f"rr{i//4}",f"ds_read_b128 {r('v',O+16+4*i,4)}, v{vT0} offset:{i*1024}")) for k in range(2)])
A([f"s_lshl_b32 s{sT0}, s{sTT}, 15",f"s_lshl_b32 s{sT1}, s{sJ}, 11",f"s_add_u32 s{sT0}, s{sT0}, s{sT1}",f"s_add_u32 s68, s{sT0}, {WS_O}"])
V=[]
for i in range(3): V+=[lambda i=i: lg.wait(f"rr{i}")]+[f"v_add_f32 v{O+k}, v{O+k}, v{O+16+16*i+k}" for k in (12,15,13,14,*range(12))]
V+=[lambda: vm.wait("g"), f"v_readlane_b32 s{sT0}, v{O+15}, 32\n  v_rcp_f32 v{vT0}, v{O+12}\n  s_cmp_lg_u32 s{sT0}, 0\n  s_cbranch_scc1 L_fb\nL_fbok:",
    f"v_mul_f32 v{vT0}, v{vT0}, v{vGO}", f"v_mov_b32 v{vT1}, v{vT0}\n  s_nop 1\n  v_permlane32_swap_b32 v{vT0}, v{vT1}\n  s_nop 1"]
V+=[f"v_mul_f32 v{O+k}, v{O+k}, v{vT1}" for k in range(16)]
V+=[f"v_cvt_pk_bf16_f32 v{Q+i}, v{O+2*i}, v{O+2*i+1}" for i in range(8)]
V+=[f"v_cndmask_b32 v{Q+i}, v{Q+i}, 0, s[{sUP}:{sUP+1}]" for i in (6,7)]
V+=[lambda: st2("o",Q,68), lambda: ts()]
V+=[f"s_lshr_b32 s{sT0}, s{sW}, 1",f"s_lshl_b32 s{sT0}, s{sT0}, 7",f"s_add_u32 s{sT3}, s{sT0}, 128",f"s_add_u32 s{sT3}, s{sT3}, s{sCNT}"]
V+=[f"s_cmp_eq_u32 s{sCB}, 7\n  s_cbranch_scc1 L_idle"]
FG=opt("fg",6)
for i in range(0,len(V),FG): A(V[i:i+FG])
h3=f"buffer_atomic_add v{vONE}, v{vSIG}, s[{sWS}:{sWS+3}], s{sT3} offen sc1"
tail.append(f"L_idle:\n  s_waitcnt vmcnt(0)\n  {h3}\n  s_branch L_fin")
ld3=f"buffer_load_dword v{vPOLL}, v{vZ}, s[{sWS}:{sWS+3}], s68 offen sc1"
SIG=opt("sig",14); P3=opt("p3",21); O0=opt("o0",25)
dq=[]; wor=[(st,t,h) for st in range(28,36) for t in range(2) for h in range(2)]
for st in range(28):
    if st>=1 and st%2==1 and st+13<36: dq+=carry(dmaw2(st+13) if st+13<28 else dmawo(st+13))
    if st==SIG: assert not red; dq=[lambda: (vm.wait("o"), vm.op("sig",h3))]+dq
    if st==P3: dq=[f"s_lshl_b32 s{sT0}, s{sTH}, 7\n  s_add_u32 s68, s{sCNT}, s{sT0}\n  s_add_u32 s68, s68, 128",lambda: vm.op("p3",ld3)]+dq
    if st==O0:
        spin("3","p3",ld3,32); ts()
        dq+=carry(setb(bH,pWS,f"s{sOO}"))+[(lambda s=s,u=u: gld(f"o{u}",OF+(s*2+u)*4,vOU+u,bH,s*1024-4096)) for u in (1,0) for s in range(8)]
    vm.wait(f"h{st}")
    if st+2<28: vm.wait(f"d{st+2}")
    lg.wait(f"w{st}")
    k=0
    for u in (1,0):
        for t in (1,0):
            mfma(AB+32*u+16*t,WG+8*(st%4)+4*t,(st*2+u)*4,0 if st==0 else None,pb="a")
            if st+2<28: tr3(st+2,k//2,k%2)
            if red:
                for x in red.pop(0): do(x)
                if dq and k%2: do(dq.pop(0))
            else:
                for _ in range(2):
                    if dq: do(dq.pop(0))
            k+=1
while dq: do(dq.pop(0))
vm.wait("d35")
for u in range(2): e(f"v_sub_f32 v{vG+u}, 1.0, v{vG+u}")
for i in range(1,4):
    e(f"s_xor_b32 s{sT0}, s{sW}, {i}"); e(f"s_mul_i32 s{sT0}, s{sT0}, {RS}"); e("s_nop 0")
    e(f"v_add_u32 v{vT0+i}, s{sT0}, v{vL16}")
for q in (3,2,1,0):
    for k in range(16):
        if k%2==0: tr3(*wor.pop(0))
        e(f"v_mul_f32 v{AB+16*q+k}, v{vG+q//2}, v{AB+16*q+k}")
e(f"v_add_u32 v{vT0}, s{sRW}, v{vL16}")
lg.all()
fin=[f"v_and_b32 v7, 31, v{vL}",f"v_mul_u32_u24 v7, 896, v7",f"v_lshrrev_b32 v{vPOLL}, 5, v{vL}",f"v_lshl_add_u32 v7, v{vPOLL}, 4, v7",
     f"s_lshl_b32 s{sT0}, s{sTB}, 2",f"s_lshl_b32 s{sT1}, s{sTH}, 1",f"s_add_u32 s{sT0}, s{sT0}, s{sT1}",f"s_lshr_b32 s{sT1}, s{sW}, 1",f"s_add_u32 s{sT0}, s{sT0}, s{sT1}",
     f"s_mul_i32 s{sT0}, s{sT0}, {32*896}",f"s_lshl_b32 s{sT1}, s{sCB}, 7",f"s_add_u32 s{sT0}, s{sT0}, s{sT1}",f"s_and_b32 s{sT1}, s{sW}, 1",f"s_lshl_b32 s{sT1}, s{sT1}, 6",f"s_add_u32 s{sT0}, s{sT0}, s{sT1}"]
for q in (3,2,1,0):
    t,u=q%2,q//2
    vm.wait(f"o{u}")
    for s in range(8):
        mfma(AB+16*q,8*s+4*t,OF+(s*2+u)*4,None,pa="a")
        if q<3:
            if s<2: e("s_nop 4")
            elif s<6: lg.op("fw",f"ds_write_b128 v{vT0}, {r('v',AB+16*(q+1)+4*(s-2),4)} offset:{q*4096+(s-2)*1024}")
        else:
            for _ in range(2):
                if fin: e(fin.pop(0))
ts()
lg.all(); e("s_barrier")
for i in range(12): lg.op(f"fr{i//4}",f"ds_read_b128 {r('v',WG+4*i,4)}, v{vT0+1+i//4} offset:{i*1024}")
for i in range(3):
    lg.wait(f"fr{i}")
    for k in range(16): e(f"v_add_f32 v{AB+k}, v{AB+k}, v{WG+16*i+k}")
pack(Q,AB); e("s_nop 1")
for p in range(2):
    e(f"v_permlane32_swap_b32 v{Q+4*p}, v{Q+4*p+2}"); e(f"v_permlane32_swap_b32 v{Q+4*p+1}, v{Q+4*p+3}")
    e(f"buffer_store_dwordx4 {r('v',Q+4*p,4)}, v7, s[{sOUT}:{sOUT+3}], s{sT0} offen offset:{p*32}")
lab("L_fin")
if TS:
    e("s_waitcnt vmcnt(0)"); ts(); e("s_waitcnt lgkmcnt(0)")
    for i in range(tsn[0]): e(f"v_writelane_b32 v7, s{sTS+2*i}, {i}")
    e(f"s_lshl_b32 s{sT0}, s2, 2"); e(f"s_add_u32 s{sT0}, s{sT0}, s{sW}"); e(f"s_lshl_b32 s{sT0}, s{sT0}, 8"); e(f"s_add_u32 s{sT0}, s{sT0}, {WS_T}")
    e(f"v_lshlrev_b32 v{vT0}, 2, v{vL}"); e(f"buffer_store_dword v7, v{vT0}, s[{sWS}:{sWS+3}], s{sT0} offen")
e("s_endpgm")
for t in tail: L.append(t)
lab("L_fb")
e(f"s_cmp_lg_u32 s{sPASS}, 0"); e("s_cbranch_scc1 L_fbok"); e(f"s_mov_b32 s{sPASS}, 1"); e("s_waitcnt vmcnt(0) lgkmcnt(0)"); e("s_nop 15")
M=P
for q in range(4):
    e(f"v_mov_b32 v{M+q}, 0xff800000")
    for i in (6,7): e(f"v_cndmask_b32 v{Q+8*q+i}, v{Q+8*q+i}, 0, s[{sUP}:{sUP+1}]")
e(f"s_lshl_b32 s{sT3}, s{sW}, 16"); e(f"s_mov_b32 s{sT2}, 16")
lab("L_fbl")
for h in range(2): e(f"buffer_load_dwordx4 {r('v',KT+4*h,4)}, v{vL16}, s[{sWS}:{sWS+3}], s{sT3} offen offset:{h*1024} sc1")
e("s_waitcnt vmcnt(0)")
for q in range(4):
    mfma(S,KT,Q+8*q,0); mfma(S,KT+4,Q+8*q+4); e("s_nop 15")
    for i in range(0,16,2): e(f"v_max3_f32 v{M+q}, v{M+q}, v{S+i}, v{S+i+1}")
e(f"s_add_u32 s{sT3}, s{sT3}, 4096"); e(f"s_sub_u32 s{sT2}, s{sT2}, 1"); e(f"s_cmp_lg_u32 s{sT2}, 0"); e("s_cbranch_scc1 L_fbl")
e("s_barrier")
e(f"v_lshlrev_b32 v{vT2}, 2, v{vL}")
for q in range(4):
    halfmax(M+q)
    e(f"s_add_u32 s{sT0}, s{sW}, {q}"); e(f"s_and_b32 s{sT0}, s{sT0}, 3"); e(f"s_lshl_b32 s{sT0}, s{sT0}, 10"); e(f"s_add_u32 s{sT0}, s{sT0}, {RED}")
    e(f"v_add_u32 v{S+q}, s{sT0}, v{vT2}"); e(f"ds_write_b32 v{S+q}, v{M+q} offset:{q*256}")
e("s_waitcnt lgkmcnt(0)"); e("s_barrier")
for q in range(4):
    for i in range(4): e(f"ds_read_b32 v{S+4+i}, v{S+q} offset:{i*256}")
    e("s_waitcnt lgkmcnt(0)"); e(f"v_max3_f32 v{M+q}, v{S+4}, v{S+5}, v{S+6}"); e(f"v_max_f32 v{M+q}, v{M+q}, v{S+7}")
    mins(M+q,Q+8*q)
for x in kvinit(): do(x)
e("s_waitcnt vmcnt(0)"); e("s_barrier"); e("s_branch L_attn")
lab("L_end"); e("s_endpgm")
L.append(f""".section .rodata,"a"
.p2align 6
.amdhsa_kernel {NAME}_kernel
  .amdhsa_next_free_vgpr 512
  .amdhsa_next_free_sgpr 102
  .amdhsa_accum_offset 256
  .amdhsa_group_segment_fixed_size 0
  .amdhsa_kernarg_size 96
  .amdhsa_user_sgpr_count 2
  .amdhsa_user_sgpr_kernarg_segment_ptr 1
  .amdhsa_system_sgpr_workgroup_id_x 1
.end_amdhsa_kernel""")
out=[a for a in sys.argv[1:] if a.endswith(".s")]
open(out[0] if out else f"cdna_kernels/{NAME}.s","w").write("\n".join(L)+"\n")
```

```python
import sys, math, struct
NAME="gated_mix__grouped_kv_mqa__dense_activation_relu__prompt"
TC = "tc" in sys.argv
TS = "ts" in sys.argv or TC
FORCE_FB = "fb" in sys.argv
import re
DROP=[a[5:] for a in sys.argv if a.startswith("drop=")]
L=[]
def e(s): L.append("  "+s)
def lab(s): L.append(s+":")
def f2u(x): return "0x%08x"%struct.unpack("<I",struct.pack("<f",x))[0]
class VM:
    def __init__(s): s.q=[]; s.seen=set()
    def op(s,tag,txt):
        s.seen.add(tag)
        for d in DROP:
            if re.fullmatch(d,tag): return
        e(txt); s.q.append(tag)
    def n(s,tag):
        assert tag in s.seen, tag
        idx=[i for i,t in enumerate(s.q) if t==tag]
        if not idx: return None
        return len(s.q)-1-idx[-1]
    def wait(s,tag):
        n=s.n(tag)
        if n is None: return
        n=min(n,63); e(f"s_waitcnt vmcnt({n})"); s.q=s.q[len(s.q)-n:] if n else []
    def all(s): e("s_waitcnt vmcnt(0)"); s.q=[]
vm=VM()
class LG(VM):
    def wait(s,tag):
        n=s.n(tag)
        if n is None: return
        n=min(n,15); e(f"s_waitcnt lgkmcnt({n})"); s.q=s.q[len(s.q)-n:] if n else []
    def all(s): e("s_waitcnt lgkmcnt(0)"); s.q=[]
lg=LG()
def opt(name,d):
    v=[a.split("=")[1] for a in sys.argv if a.startswith(name+"=")]
    return int(v[0]) if v else d
def r(p,a,n): return f"{p}[{a}:{a+n-1}]"
def mfma(d,a,b,c=None,pa="v",pb="v"):
    cc = "0" if c==0 and c is not None else r("v",d,16)
    e(f"v_mfma_f32_32x32x16_bf16 {r('v',d,16)}, {r(pa,a,4)}, {r(pb,b,4)}, {cc}")
WS_KV=0; WS_H=0; WS_O=0x70000; WS_G=0x90000; WS_C=0x91000; WS_PAD=0xa0000; WS_T=0x1800000; WS_SZ=0x2000000
RS=28672; W0B=4*RS; QX=147456; XA=0; WBA=65536; W0A=131072; RED=114688
sX,sW0,sWB,sWS,sWO,sOUT,sDBG=8,12,16,20,24,28,32
bKV,bH,bW2,pW2s=36,38,40,42
sTB,sJ,sW,sRW,sST0,sROT,sSTB,sCOLB,sT0,sT1,sT2,sT3,sTT,sPASS,sCNT,sSP,sHO,sW2O,sWOO,sOO,sTH,sCB=range(44,66)
sUP=66; sBK=2; sXB=93; sTS=70; sPR=3
tsn=[0]
TSET=[a[4:] for a in sys.argv if a.startswith("set=")]; TSET=TSET[0] if TSET else "m"
def ts(k="m",idx=None):
    if TS and (TSET in k or k=="*"):
        if idx is not None: tsn[0]=idx
        e(f"{'s_memtime' if TC else 's_memrealtime'} s[{sTS+2*tsn[0]}:{sTS+2*tsn[0]+1}]"); tsn[0]+=1
def srd(d,b,size):
    e(f"s_mov_b32 s{d}, s{b}"); e(f"s_and_b32 s{d+1}, s{b+1}, 0xffff")
    e(f"s_mov_b32 s{d+2}, {size}"); e(f"s_mov_b32 s{d+3}, 0x20000")
vL,vL16,vT0,vT1,vT2,vT3=1,2,3,4,5,6
vXA=8;vXR=12;vW0A=16;vWBA=17;vTR0=21;vTRB=22;vTR3=26;vPOLL=28;vGO=29;vG=30;vD3=240;vHU=244;vOU=246;vONE=248;vSIG=249;vZ=250
WF=32;PK=48;B0=64;A0=128
Q=32;O=64;S=128;P=160;KV=168;KT=232
OF=64;WG=192;AB=128
hdr=open(f"cdna_kernels/{NAME}.s.ref").read().split("; Override")[0]
L.append(hdr.rstrip())
L.append("; @launch grid=(256,1,1) block=(256,1,1) lds=163840")
L.append(f'.amdgcn_target "amdgcn-amd-amdhsa--gfx950"\n.text\n.globl {NAME}_kernel\n.p2align 8\n.type {NAME}_kernel,@function\n{NAME}_kernel:')
e("s_cmp_ge_u32 s2, 256"); e("s_cbranch_scc1 L_end")
ts("*")
e("s_load_dwordx16 s[8:23], s[0:1], 0"); e("s_load_dwordx8 s[92:99], s[0:1], 64")
e(f"v_lshrrev_b32 v{vT0}, 6, v0"); e(f"v_and_b32 v{vL}, 63, v0")
if opt("map",1):
    e(f"s_bfe_u32 s{sT0}, s2, 0x20001"); e(f"v_readfirstlane_b32 s{sW}, v{vT0}")
    e(f"s_lshl_b32 s{sT0}, s{sT0}, 2"); e(f"s_bfe_u32 s{sT1}, s2, 0x20003"); e(f"s_or_b32 s{sTB}, s{sT0}, s{sT1}")
    e(f"s_and_b32 s{sTH}, s2, 1"); e(f"s_lshr_b32 s{sCB}, s2, 5")
else:
    e(f"s_and_b32 s{sT0}, s2, 7"); e(f"v_readfirstlane_b32 s{sW}, v{vT0}")
    e(f"s_lshl_b32 s{sT0}, s{sT0}, 1"); e(f"s_bfe_u32 s{sT1}, s2, 0x10003"); e(f"s_or_b32 s{sTB}, s{sT0}, s{sT1}")
    e(f"s_bfe_u32 s{sTH}, s2, 0x10004"); e(f"s_lshr_b32 s{sCB}, s2, 5")
e(f"s_lshl_b32 s{sJ}, s{sTH}, 3"); e(f"s_or_b32 s{sJ}, s{sJ}, s{sCB}")
e(f"v_lshlrev_b32 v{vL16}, 4, v{vL}")
if TS: e("s_mov_b32 s91, s2")
e(f"s_add_u32 s{sBK}, s{sTB}, 1"); e(f"s_lshl_b32 s{sBK}, s{sBK}, 20")
e(f"s_mul_i32 s{sRW}, s{sW}, {RS}")
e(f"s_lshl_b32 s{sTT}, s{sTB}, 2"); e(f"s_add_u32 s{sTT}, s{sTT}, s{sW}")
e(f"s_lshl_b32 s{sT0}, s{sTB}, 1"); e(f"s_add_u32 s{sT0}, s{sT0}, s{sJ}"); e(f"s_mul_i32 s{sT1}, s{sT0}, 37"); e(f"s_lshr_b32 s{sT1}, s{sT1}, 8")
e(f"s_mul_i32 s{sT1}, s{sT1}, 7"); e(f"s_sub_u32 s{sROT}, s{sT0}, s{sT1}")
if not opt("rot",1): e(f"s_mov_b32 s{sROT}, 0")
e(f"v_lshrrev_b32 v7, 3, v{vL}"); e(f"v_mul_u32_u24 v{vT0}, 896, v7")
e(f"v_and_b32 v{vT1}, 7, v{vL}"); e(f"v_lshrrev_b32 v{vT2}, 4, v{vL}"); e(f"v_xor_b32 v{vT2}, v{vT1}, v{vT2}")
e(f"v_lshl_add_u32 v{vXA}, v{vT2}, 4, v{vT0}")
e(f"v_xor_b32 v{vT2}, 4, v{vT2}"); e(f"v_lshl_add_u32 v{vXA+1}, v{vT2}, 4, v{vT0}")
e(f"v_add_u32 v{vXA+2}, {2*6144}, v{vXA}"); e(f"v_add_u32 v{vXA+3}, {3*6144}, v{vXA+1}"); e(f"v_add_u32 v{vXA+1}, 6144, v{vXA+1}")
e(f"v_bfe_u32 v{vT2}, v{vL}, 4, 1"); e(f"v_lshlrev_b32 v{vT2}, 2, v{vT2}"); e(f"v_xor_b32 v{vT2}, v{vT1}, v{vT2}"); e(f"v_lshlrev_b32 v{vWBA}, 4, v{vT2}")
e(f"v_add_u32 v{vD3}, v{vWBA}, v{vT0}")
e(f"v_lshrrev_b32 v{vT0}, 2, v{vL}"); e(f"v_and_b32 v{vT1}, 3, v{vL}"); e(f"v_lshlrev_b32 v{vT1}, 4, v{vT1}")
e(f"s_cmp_lt_u32 s{sCB}, 1"); e(f"s_cselect_b32 s{sSP}, 1, 0")
ts("i"); e("s_waitcnt lgkmcnt(0)")
ts("si")
pG,pOUT,pDBG,pWS=92,94,96,98
TW=opt("tw",1)
if TW&1:
    for p in (8,10,20,12,14,22,16,pOUT): e(f"s_load_dword s90, s[{p}:{p+1}], 0")
    e(f"s_load_dword s90, s[{pWS}:{pWS+1}], {WS_PAD}"); e(f"s_add_u32 s{sT0}, s{sBK}, {WS_PAD}"); e(f"s_load_dword s90, s[{pWS}:{pWS+1}], s{sT0}")
e("s_mov_b64 s[4:5], s[20:21]"); e("s_mov_b64 s[6:7], s[10:11]"); e(f"s_mov_b64 s[{pW2s}:{pW2s+1}], s[22:23]")
srd(sWO,16,401408)
e("s_mov_b64 s[100:101], s[12:13]"); e(f"s_mov_b32 s{sST0}, 56"); e(f"s_mov_b32 s{sT3}, 25088"); e(f"s_mov_b32 s{sT2}, 0")
e(f"s_cmp_eq_u32 s{sJ}, 0"); e("s_cbranch_scc1 L_w0done")
e("s_mov_b64 s[100:101], s[14:15]")
e(f"s_cmp_eq_u32 s{sJ}, 8"); e("s_cbranch_scc1 L_w0done")
e("s_mov_b64 s[100:101], s[6:7]"); e(f"s_mov_b32 s{sST0}, 896"); e(f"s_mov_b32 s{sT3}, 401408"); e(f"s_mul_i32 s{sT2}, s{sJ}, 56")
lab("L_w0done")
srd(sW0,100,f"s{sT3}"); srd(sX,8,1835008)
e(f"v_mad_u32_u24 v{vW0A}, v{vT0}, s{sST0}, v{vT1}")
e(f"s_lshl_b32 s{sST0}, s{sST0}, 4"); e(f"s_mul_i32 s{sT1}, s{sW}, s{sST0}"); e(f"s_add_u32 s{sT2}, s{sT2}, s{sT1}"); e(f"s_lshl_b32 s{sST0}, s{sST0}, 2")
e(f"s_mul_i32 s{sT3}, s{sTT}, {32*896}")
def rotc(c):
    if c==0: e(f"s_mov_b32 s{sPR}, s{sROT}")
    else: e(f"s_add_u32 s{sPR}, s{sPR}, 1"); e(f"s_cmp_eq_u32 s{sPR}, 7"); e(f"s_cselect_b32 s{sPR}, 0, s{sPR}")
e(f"s_lshl_b32 s{sT0}, s{sCB}, 1"); e(f"s_mul_i32 s{sT1}, s{sTH}, 14"); e(f"s_add_u32 s68, s{sT0}, s{sT1}"); e(f"s_sub_u32 s68, s68, 2")
e(f"s_lshr_b32 s{sT1}, s{sW}, 1"); e(f"s_add_u32 s{sT0}, s68, s{sT1}"); e(f"s_lshl_b32 s{sCOLB}, s{sT0}, 7")
e(f"s_and_b32 s{sT0}, s{sW}, 1"); e(f"s_add_u32 s68, s68, s{sT0}"); e(f"s_mul_i32 s{sT0}, s{sT0}, {32*3584}"); e(f"s_add_u32 s{sCOLB}, s{sCOLB}, s{sT0}")
srd(sWB,4,1605632); e(f"s_mov_b32 s{sSTB}, 3584")
e(f"v_mad_u32_u24 v{vWBA}, v7, s{sSTB}, v{vWBA}")
for i in range(1,4): e(f"v_add_u32 v{vWBA+i}, {8*3584-1024}, v{vWBA+i-1}")
e(f"s_mov_b64 s[100:101], s[{pG}:{pG+1}]")
PD=opt("pd",2)
e(f"s_lshl_b32 s92, s{sW}, 10"); e(f"s_lshl_b32 s{sXB}, s{sW}, 12")
def xdma(c,sweep,wb):
    o=[lambda: rotc(c), f"s_mul_i32 s{sT1}, s{sPR}, s{sST0}\n  s_add_u32 m0, s92, {(W0A+(c%4)*4096) if sweep else (W0B+c*4096)}\n  s_add_u32 s{sT1}, s{sT1}, s{sT2}",
       lambda: vm.op(f"x{c}",f"buffer_load_dwordx4 v{vW0A}, s[{sW0}:{sW0+3}], s{sT1} offen lds"),
       f"s_lshl_b32 s{sT1}, s{sPR}, 7\n  s_add_u32 m0, s{sXB}, {(c%4)*16384 if sweep else c*4096}\n  s_add_u32 s{sT1}, s{sT1}, s{sT3}"]
    o+=[(lambda i=i: vm.op(f"x{c}",f"buffer_load_dwordx4 v{vXA+i}, s[{sX}:{sX+3}], s{sT1} offen offset:{i*1024} lds")) for i in range(4)]
    if wb:
        o+=[f"s_mul_i32 s{sT1}, s{sPR}, {64*3584}\n  s_add_u32 m0, s{sXB}, {WBA+(c%4)*16384}\n  s_add_u32 s{sT1}, s{sT1}, s{sCOLB}"]
        o+=[(lambda i=i: vm.op(f"x{c}",f"buffer_load_dwordx4 v{vWBA+i}, s[{sWB}:{sWB+3}], s{sT1} offen offset:{i*1024} lds")) for i in range(4)]
    return o
def do(x):
    if callable(x): x()
    else: e(x)
tail=[]
ts("i")
e(f"s_cmp_eq_u32 s{sSP}, 1"); e("s_cbranch_scc1 L_i2")
main=L; L=[]; lab("L_i2"); e(f"s_mov_b32 s{sXB}, s{sRW}")
PA=opt("pa",3)
GI=QX+8192
srd(sWB,100,896); e(f"s_mov_b32 m0, {GI}"); e("s_movk_i32 s69, 896")
vm.op("gate",f"buffer_load_dwordx4 v{vL16}, s[{sWB}:{sWB+3}], 0 offen lds")
for c in range(PA):
    for x in xdma(c,False,False): do(x)
srd(sWB,6,401408); e(f"v_mad_u32_u24 v{vWBA}, v{vT0}, s69, v{vT1}")
e(f"s_mul_i32 s{sCOLB}, s{sJ}, 56"); e(f"s_mul_i32 s{sT1}, s{sW}, {16*896}"); e(f"s_add_u32 s{sCOLB}, s{sCOLB}, s{sT1}")
e("s_branch L_i3"); tail.append("\n".join(L)); L=main; q0=list(vm.q)+["pf"]; vm.q=[]
for c in range(PD):
    for i,x in enumerate(xdma(c,True,True)):
        do(x)
        if c==0 and i in (2,7): ts("i")
    ts("i")
lab("L_i3")
e("s_getpc_b64 s[4:5]"); lab("L_pc")
e(f"s_mul_i32 s{sT1}, s{sW}, 8192"); e(f"v_lshlrev_b32 v{vT2}, 7, v{vL}"); e(f"v_add_u32 v{vT2}, s{sT1}, v{vT2}")
e(f"v_min_u32 v{vT2}, L_end-L_pc, v{vT2}")
vm.op("pf",f"global_load_dword v{vPOLL}, v{vT2}, s[4:5]")
qs=list(vm.q)
srd(sWS,pWS,WS_SZ); srd(sOUT,pOUT,1835008); srd(sDBG,pDBG,256)
e(f"s_mov_b32 s{sUP}, 0"); e(f"s_mov_b32 s{sUP+1}, -1")
for i in range(1,4): e(f"v_add_u32 v{vD3+i}, {6144*i}, v{vD3}")
e(f"v_and_b32 v{vT0}, 31, v{vL}"); e(f"v_lshrrev_b32 v{vT1}, 5, v{vL}"); e(f"v_bfe_u32 v{vT2}, v{vL}, 1, 3")
e(f"v_xor_b32 v{vT2}, v{vT1}, v{vT2}"); e(f"v_lshlrev_b32 v{vT0}, 7, v{vT0}"); e(f"v_add_u32 v{vT0}, s{sXB}, v{vT0}")
for s in range(4):
    e(f"v_xor_b32 v{vT3}, {2*s}, v{vT2}"); e(f"v_lshl_add_u32 v{vXR+s}, v{vT3}, 4, v{vT0}"); e(f"v_xor_b32 v{252+s}, 0x1000, v{vXR+s}")
e(f"v_bfe_u32 v{vT0}, v{vL}, 2, 2"); e(f"v_bfe_u32 v{vT2}, v{vL}, 4, 1"); e(f"v_and_b32 v{vT3}, 3, v{vL}")
e(f"v_lshlrev_b32 v{vT3}, 3, v{vT3}"); e(f"v_lshl_add_u32 v{vT3}, v{vT2}, 5, v{vT3}")
e(f"v_lshl_add_u32 v{vT2}, v{vT1}, 3, v{vT0}"); e(f"v_lshl_add_u32 v{vTR0}, v{vT2}, 6, v{vT3}"); e(f"s_cmp_eq_u32 s{sSP}, 1"); e(f"s_cselect_b32 s{sT0}, {W0B-W0A}, 0"); e(f"s_add_u32 s{sT0}, s{sT0}, {W0A}"); e(f"v_mov_b32 v{vTRB+2}, v{vTR0}"); e(f"v_add_u32 v{vTRB+3}, {2*RS}, v{vTR0}"); e(f"v_add_u32 v{vTR0}, s{sT0}, v{vTR0}")
e(f"s_and_b32 s{sT1}, s{sW}, 1"); e(f"s_lshl_b32 s{sT1}, s{sT1}, 13"); e(f"s_add_u32 s{sT1}, s{sT1}, {WBA}")
e(f"v_bfe_u32 v7, v{vL}, 3, 1"); e(f"v_lshl_add_u32 v{vT3}, v7, 6, v{vT3}")
e(f"v_lshl_add_u32 v{vTRB}, v{vT2}, 7, v{vT3}"); e(f"v_add_u32 v{vTRB}, s{sT1}, v{vTRB}"); e(f"v_xor_b32 v{vTRB+1}, 64, v{vTRB}")
e(f"v_lshl_add_u32 v{vT2}, v{vT1}, 2, v{vT0}"); e(f"v_lshl_add_u32 v{vT3}, v{vT2}, 7, v{vT3}")
e(f"s_and_b32 s{sT0}, s{sW}, 1"); e(f"s_lshl_b32 s{sT0}, s{sT0}, 6"); e(f"v_xor_b32 v{vT3}, s{sT0}, v{vT3}"); e(f"v_add_u32 v{vTR3}, s{sRW}, v{vT3}")
e(f"v_xor_b32 v{vT3}, 64, v{vT3}"); e(f"v_add_u32 v{vTR3+1}, s{sRW}, v{vT3}")
e(f"s_lshr_b32 s{sT0}, s{sW}, 1"); e(f"s_xor_b32 s{sT1}, s{sT0}, 1")
for u in range(2):
    e(f"s_mul_i32 s69, s{sT0+u}, {112*1024}"); e(f"v_add_u32 v{vHU+u}, s69, v{vL16}"); e(f"s_lshl_b32 s69, s{sT0+u}, 15"); e(f"v_add_u32 v{vOU+u}, s69, v{vL16}")
e(f"v_mov_b32 v{vONE}, 1"); e(f"v_lshlrev_b32 v{vSIG}, 25, v{vL}"); e(f"v_mov_b32 v{vZ}, 0")
e(f"s_add_u32 s{sCNT}, s{sBK}, {WS_C}")
e(f"s_lshl_b32 s{sT0}, s{sTH}, 1")
e(f"s_mul_i32 s{sHO}, s{sT0}, {112*1024}"); e(f"s_mul_i32 s{sT1}, s{sW}, {28*1024}"); e(f"s_add_u32 s{sHO}, s{sHO}, s{sT1}"); e(f"s_add_u32 s{sHO}, s{sHO}, s{sBK}")
e(f"s_lshl_b32 s{sOO}, s{sT0}, 15"); e(f"s_lshl_b32 s{sT1}, s{sW}, 13"); e(f"s_add_u32 s{sOO}, s{sOO}, s{sT1}"); e(f"s_add_u32 s{sOO}, s{sOO}, {WS_O+4096}"); e(f"s_add_u32 s{sOO}, s{sOO}, s{sBK}")
e(f"s_min_u32 s{sT1}, s{sCB}, 6"); e(f"s_lshl_b32 s{sT1}, s{sT1}, 7"); e(f"s_mul_i32 s{sW2O}, s{sW}, {448*896}"); e(f"s_add_u32 s{sW2O}, s{sW2O}, s{sT1}")
e(f"s_mul_i32 s{sWOO}, s{sW}, {112*896}"); e(f"s_add_u32 s{sWOO}, s{sWOO}, s{sT1}")
e(f"s_mov_b32 s{sPASS}, 0")
if TW&2:
    e(f"s_add_u32 s{sT0}, s{sBK}, {WS_PAD}"); e(f"s_mov_b32 s{sT1}, {WS_PAD}")
    for x in (f"s[{sWS}:{sWS+3}], s{sT0}",f"s[{sWS}:{sWS+3}], s{sT1}",f"s[{sWO}:{sWO+3}], 0",f"s[{sOUT}:{sOUT+3}], 0",f"s[{sDBG}:{sDBG+3}], 0"): e(f"buffer_load_dword v251, v{vSIG}, {x} offen offset:128 sc1")
    e(f"global_load_dword v251, v{vZ}, s[{pW2s}:{pW2s+1}]")
    q0+=["tw"]*6; qs+=["tw"]*6
ts("si")
def wql():
    o=[]
    for c in range(7):
        o+=[(lambda c=c: rotc(c)), f"s_mul_i32 s{sT1}, s{sPR}, {64*896}\n  s_add_u32 m0, s{sRW}, {c*1024}\n  s_add_u32 s{sT1}, s{sT1}, s{sCOLB}",
            lambda: vm.op("wq",f"buffer_load_dwordx4 v{vWBA}, s[{sWB}:{sWB+3}], s{sT1} offen lds")]
    return o
GF=96; NE=opt("ne",1)
def passA(kind):
    e(f"v_lshrrev_b32 v{vT2}, 5, v{vL}"); e(f"v_lshlrev_b32 v{vT2}, 4, v{vT2}"); e(f"v_add_u32 v{vT2}, {GI}, v{vT2}"); e(f"s_mov_b32 s{sSTB}, s{sROT}")
    vm.wait("gate") if PA<2 else None
    for c in range(8):
        side=[]
        if c<7:
            e(f"s_lshl_b32 s69, s{sSTB}, 7"); e(f"v_add_u32 v7, s69, v{vT2}"); e(f"s_add_u32 s{sSTB}, s{sSTB}, 1"); e(f"s_cmp_eq_u32 s{sSTB}, 7"); e(f"s_cselect_b32 s{sSTB}, 0, s{sSTB}")
            vm.wait(f"x{c}")
            if c in (0,1,3,6): ts("s",{0:3,1:4,3:5,6:6}[c])
            if c: lg.all()
            for s in range(4): lg.op(f"x{c}",f"ds_read_b128 {r('a',16*c+4*s,4)}, v{vXR+s} offset:{c*4096}")
            e("s_barrier")
            for s in range(4):
                for h in range(2): lg.op("w",f"ds_read_b64_tr_b16 {r('v',WF+16*(c%2)+4*s+2*h,2)}, v{vTR0} offset:{(4*c+s)*1024+h*256}")
            if kind=="k": side=[(lambda s=s: lg.op("w",f"ds_read_b128 {r('v',GF+16*(c%2)+4*s,4)}, v7 offset:{s*32}")) for s in range(4)]
            if c+PA<7: side+=xdma(c+PA,False,False)
            elif c==7-PA and NE: side+=wql()
        else: lg.all()
        for s in range(4 if c else 0):
            z=0 if (c==1 and s==0) else None; w=WF+16*((c-1)%2)+4*s
            if kind=="v": mfma(B0,16*(c-1)+4*s,w,z,pa="a")
            else: mfma(B0,w,16*(c-1)+4*s,z,pb="a")
            for _ in range(2):
                if side: do(side.pop(0))
            if kind=="k" and c<7: mfma(B0+16,GF+16*((c-1)%2)+4*s,16*(c-1)+4*s,z,pb="a")
            if side: do(side.pop(0))
        while side: do(side.pop(0))
def pack(dst,src,relu=False):
    for i in range(8): e(f"v_cvt_pk_bf16_f32 v{dst+i}, v{src+2*i}, v{src+2*i+1}")
    if relu:
        for i in range(8): e(f"v_pk_max_i16 v{dst+i}, v{dst+i}, 0")
def st2(tag,src,soff,off=0):
    for h in range(2): vm.op(tag,f"buffer_store_dwordx4 {r('v',src+4*h,4)}, v{vL16}, s[{sWS}:{sWS+3}], s{soff} offen offset:{off+h*1024} sc1")
e(f"s_cmp_eq_u32 s{sSP}, 1"); e("s_cbranch_scc1 L_sp")
main=L; L=[]
lab("L_sp"); e(f"s_cmp_eq_u32 s{sJ}, 8"); e("s_cbranch_scc1 L_av")
lab("L_ak"); vm.q=list(q0); passA("k")
e(f"v_lshlrev_b32 v{vT0}, 7, v{vL}"); e(f"v_cmp_gt_u32 vcc, 1, v{vL}"); e(f"v_mov_b32 v{vT2}, {WS_SZ}"); e(f"s_lshl_b32 s{sT0}, s{sTT}, 12")
e(f"v_cndmask_b32 v{vT2}, v{vT2}, v{vT0}, vcc")
e(f"buffer_store_dword v{vZ}, v{vT2}, s[{sWS}:{sWS+3}], s{sCNT} offen sc1")
e(f"v_mov_b32 v{vT0}, 0x3f803f80"); e(f"v_mov_b32 v{vT1}, 0x00003f80"); e("s_nop 7")
pack(PK,B0)
e(f"v_cndmask_b32 v{PK+6}, v{PK+6}, v{vT0}, s[{sUP}:{sUP+1}]"); e(f"v_cndmask_b32 v{PK+7}, v{PK+7}, v{vT1}, s[{sUP}:{sUP+1}]")
st2("a",PK,sT0)
for s_ in range(4): mfma(B0+16,GF+4*s_,96+4*s_,None,pb="a")
e(f"v_and_b32 v{vT1}, 31, v{vL}"); e(f"v_lshlrev_b32 v{vT1}, 2, v{vT1}")
e(f"s_lshl_b32 s{sT0}, s{sW}, 7"); e(f"s_add_u32 s{sT0}, s{sT0}, {WS_G}"); e(f"s_add_u32 s{sT0}, s{sT0}, s{sBK}"); e("s_nop 7")
e(f"v_mul_f32 v{vT0}, {f2u(-math.log2(math.e))}, v{B0+16}"); e(f"v_exp_f32 v{vT0}, v{vT0}"); e("s_nop 0"); e(f"v_add_f32 v{vT0}, 1.0, v{vT0}")
e(f"v_rcp_f32 v{vT0}, v{vT0}"); e("s_nop 0")
e(f"buffer_store_dword v{vT0}, v{vT1}, s[{sWS}:{sWS+3}], s{sT0} offen sc1")
e("s_branch L_akv")
lab("L_av"); vm.q=list(q0); passA("v")
e(f"v_and_b32 v{vT0}, 31, v{vL}"); e(f"v_mov_b32 v{vT1}, 0x3f803f80"); e(f"v_cmp_eq_u32 vcc, 28, v{vT0}"); e("s_nop 1")
e(f"v_cndmask_b32 v{vT1}, 0, v{vT1}, vcc"); e(f"v_cmp_gt_u32 vcc, 28, v{vT0}"); e("s_nop 7")
pack(PK,B0)
for i in range(8): e(f"v_cndmask_b32 v{PK+i}, v{vT1}, v{PK+i}, vcc")
e(f"s_lshl_b32 s{sT0}, s{sTT}, 12"); e(f"s_add_u32 s{sT0}, s{sT0}, 2048")
st2("a",PK,sT0)
lab("L_akv")
if not NE:
    for x in wql(): do(x)
vm.wait("a"); e("s_barrier"); e(f"v_mov_b32 v{vT0}, 1"); e(f"v_lshlrev_b32 v{vT3}, 8, v0")
vm.op("at",f"buffer_atomic_add v{vT0}, v{vT3}, s[{sDBG}:{sDBG+3}], 0 offen sc0 sc1")
if opt("mw",1):
    e(f"s_lshl_b32 s{sT0}, s{sTT}, 1"); e(f"s_add_u32 s{sT0}, s{sT0}, s{sTH}"); e(f"s_mul_i32 s{sT1}, s{sT0}, {98*128}"); e(f"s_mul_i32 s{sT0}, s{sT0}, {25*128}")
    e(f"v_lshlrev_b32 v{vT1}, 7, v{vL}"); e(f"v_add_u32 v{vT2}, s{sT1}, v{vT1}")
    vm.op("mw",f"global_load_dword v251, v{vT2}, s[{pW2s}:{pW2s+1}]")
    e(f"v_min_u32 v7, {33*128}, v{vT1}"); e(f"s_add_u32 s{sT1}, s{sT1}, 8192"); e(f"v_add_u32 v7, s{sT1}, v7"); e(f"v_min_u32 v{vT1}, {24*128}, v{vT1}")
    vm.op("mw",f"global_load_dword v251, v7, s[{pW2s}:{pW2s+1}]")
    vm.op("mw",f"buffer_load_dword v251, v{vT1}, s[{sWO}:{sWO+3}], s{sT0} offen")
ts("s",7); ts("m",1)
def spin(name,tag,ld,target,two=False):
    def chk():
        return f"  v_readfirstlane_b32 s{sT0}, v{vPOLL}\n  s_cmp_ge_u32 s{sT0}, {target}"
    vm.wait(tag); L.append(chk()); e(f"s_cbranch_scc0 L_sp{name}"); lab(f"L_ok{name}")
    tail.append(f"""L_sp{name}:
  s_mov_b32 s69, 0
{f"  s_cmp_lg_u32 s{sW}, 0"+chr(10)+f"  s_cbranch_scc1 L_ok{name}" if two else ""}
L_sq{name}:
  s_sleep {opt("slp",4)}
  {ld}
  s_add_u32 s69, s69, 1
  s_waitcnt vmcnt(0)
  s_cmp_ge_u32 s69, 0x40000
  s_cbranch_scc1 L_ok{name}
{chk()}
  s_cbranch_scc0 L_sq{name}
  s_branch L_ok{name}""")
def gld(tag,dst,va,base,off,p="v"): vm.op(tag,f"global_load_dwordx4 {r(p,dst,4)}, v{va}, s[{base}:{base+1}] offset:{off} sc1")
def setb(b,src,off): return [f"s_add_u32 s{b}, s{src}, {off}", f"s_addc_u32 s{b+1}, s{src+1}, 0"]
def ldkv(kt,f): gld(f"kv{kt}",KV+16*(kt%4)+4*f,vL16,bKV,(kt%2)*4096-4096+f*1024)
def kvinit():
    o=[f"s_lshl_b32 s{sT1}, s{sW}, 16",f"s_add_u32 s{sT1}, s{sT1}, 4096"]+setb(bKV,pWS,f"s{sT1}")
    for kt in range(3):
        if kt==2: o+=setb(bKV,bKV,8192)
        o+=[(lambda kt=kt,f=f: ldkv(kt,f)) for f in range(4)]
    return o
ld1=f"buffer_load_dword v{vPOLL}, v{vT3}, s[{sDBG}:{sDBG+3}], 0 offen offset:128 sc1"
PL=opt("pl",18); PC=opt("pc",23)
def h1c(ks,nm):
    if ks==PC: spin(nm,"p1",ld1,1,True)
def h1(ks,side,nm):
    if ks==PL: side.insert(0,lambda: vm.op("p1",ld1))
    if ks==PC:
        assert not side
        ts("m",2)
        side+=[(lambda h=h: gld("kt",KT+4*h,vL16,pWS,h*1024)) for h in range(2)]+kvinit()
def trQ(c):
    for s_ in range(4):
        for h in range(2): lg.op(f"q{c}",f"ds_read_b64_tr_b16 {r('v',WF+16*(c%2)+4*s_+2*h,2)}, v{vTRB+2+s_//2} offset:{(s_%2)*RS+c*1024+h*256}")
if not NE: vm.wait("wq"); e("s_barrier")
trQ(0)
for c in range(7):
    lg.all()
    if c<6: trQ(c+1)
    if c==opt("ac",3):
        vm.wait("at"); e(f"v_readfirstlane_b32 s{sT0}, v{vT0}"); e(f"s_cmp_lg_u32 s{sT0}, 31"); e("s_cbranch_scc1 L_nogo")
        e(f"buffer_store_dword v{vONE}, v{vT3}, s[{sDBG}:{sDBG+3}], 0 offen offset:128 sc1")
        lab("L_nogo")
    for s_ in range(4): mfma(A0,WF+16*(c%2)+4*s_,16*c+4*s_,0 if c+s_==0 else None,pb="a")
vm.op("p1",ld1); h1c(PC,"1b"); e("s_barrier"); side=[]; h1(PC,side,"1b")
while side: do(side.pop(0))
e("s_branch L_join"); tail.append("\n".join(L)); L=main; vm.q=qs
W0F=48; XF=144
def rdS(ks,t):
    c,s_=divmod(ks,4); sl=c%4
    if t==0:
        for h in range(2): lg.op(f"s{ks}",f"ds_read_b64_tr_b16 {r('v',W0F+4*(ks%2)+2*h,2)}, v{vTR0} offset:{sl*4096+s_*1024+h*256}")
    elif t<3: lg.op(f"s{ks}",f"ds_read_b128 {r('v',XF+8*(ks%2)+4*(t-1),4)}, v{(vXR,252)[t-1]+s_} offset:{sl*16384}")
    else:
        for h in range(2): lg.op(f"s{ks}",f"ds_read_b64_tr_b16 {r('v',WF+8*(ks%2)+4*(t-3)+2*h,2)}, v{vTRB+t-3} offset:{sl*16384+s_*2048+h*512}")
vm.wait("x0"); ts("i"); ts("s",3); e("s_barrier"); e(f"v_lshlrev_b32 v{vT3}, 8, v0"); ts("m",1)
for t in range(5): rdS(0,t)
side=xdma(PD,True,True)
for ks in range(28):
    lg.wait(f"s{ks}")
    if (ks+1)%4==0 and ks<27:
        c=(ks+1)//4
        while side and c+PD<=7: do(side.pop(0))
        vm.wait(f"x{c}"); h1c(ks,"1"); e("s_barrier")
        if c in (1,3,5,6): ts("s",{1:4,3:5,5:6,6:7}[c])
        if c+PD<7: side+=xdma(c+PD,True,True)
    h1(ks,side,"1")
    for t in range(5):
        z=0 if ks==0 else None
        if t==0: mfma(A0,W0F+4*(ks%2),XF+8*(ks%2),z)
        else: mfma(B0+16*(t-1),WF+8*(ks%2)+4*((t-1)%2),XF+8*(ks%2)+4*((t-1)//2),z)
        if ks<27: rdS(ks+1,(3,4,0,1,2)[t])
        if side and (t>1 or ks>=PC): do(side.pop(0))
        if side and t==4: do(side.pop(0))
while side: do(side.pop(0))
lab("L_join")
ts("m",3); ts("s",8)
e(f"s_mul_i32 s{sT0}, s{sW}, {112*1024}"); e(f"s_lshl_b32 s{sT1}, s68, 12"); e(f"s_add_u32 s{sT0}, s{sT0}, s{sT1}"); e(f"s_add_u32 s{sT0}, s{sT0}, s{sBK}")
e(f"s_bitcmp0_b32 s{sW}, 0"); e(f"s_cselect_b32 s{sT1}, 1, -1"); e(f"s_mul_i32 s{sT1}, s{sT1}, {112*1024}"); e(f"s_add_u32 s{sT1}, s{sT1}, s{sT0}")
e(f"s_cmp_eq_u32 s{sSP}, 1"); e(f"s_cselect_b32 s{sT0}, {WS_SZ}, s{sT0}"); e(f"s_cselect_b32 s{sT1}, {WS_SZ}, s{sT1}")
e(f"s_mov_b32 s{sT2}, {f2u(math.log2(math.e)/math.sqrt(28))}")
for i in range(4): e(f"v_mov_b32 v{252+i}, -1")
e(f"s_lshl_b32 s68, s{sW}, 15"); e(f"s_lshl_b32 s69, s{sJ}, 11"); e(f"s_add_u32 s68, s68, s69"); e(f"s_add_u32 s68, s68, {WS_O}"); e(f"s_add_u32 s68, s68, s{sBK}")
for h in range(2): vm.op("h",f"buffer_store_dwordx4 v[252:255], v{vL16}, s[{sWS}:{sWS+3}], s68 offen offset:{h*1024} sc1")
for i in range(16): e(f"v_mul_f32 v{A0+i}, s{sT2}, v{A0+i}")
pack(Q,A0)
for i in (6,7): e(f"v_cndmask_b32 v{Q+i}, v{Q+i}, 0, s[{sUP}:{sUP+1}]")
def mins(m,q):
    e(f"v_sub_f32 v{m}, 0, v{m}"); e(f"v_and_b32 v{vT0}, 0xffff0000, v{m}"); e(f"v_sub_f32 v{m}, v{m}, v{vT0}")
    e(f"v_and_b32 v{vT1}, 0xffff0000, v{m}"); e(f"v_sub_f32 v{m}, v{m}, v{vT1}")
    e(f"v_lshrrev_b32 v{vT0}, 16, v{vT0}"); e(f"v_or_b32 v{vT0}, v{vT0}, v{vT1}"); e(f"v_lshrrev_b32 v{m}, 16, v{m}")
    e(f"v_cndmask_b32 v{q+6}, v{q+6}, v{vT0}, s[{sUP}:{sUP+1}]"); e(f"v_cndmask_b32 v{q+7}, v{q+7}, v{m}, s[{sUP}:{sUP+1}]")
def halfmax(m):
    e(f"v_mov_b32 v{vT0}, v{m}"); e("s_nop 1"); e(f"v_permlane32_swap_b32 v{vT0}, v{m}"); e("s_nop 1"); e(f"v_max_f32 v{m}, v{m}, v{vT0}")
pack(40,B0,True); st2("h",40,sT0)
vm.wait("kt")
mfma(S+16,KT,Q,0); mfma(S+16,KT+4,Q+4)
pack(48,B0+16,True); st2("h",48,sT0,2048)
e(f"s_lshl_b32 s{sT0}, s{sW}, 11"); e(f"s_add_u32 s{sT0}, s{sT0}, {QX}"); e(f"v_add_u32 v{vT3}, s{sT0}, v{vL16}")
e(f"v_max3_f32 v{vT2}, v{S+16}, v{S+17}, v{S+18}")
for i in range(3,15,2): e(f"v_max3_f32 v{vT2}, v{vT2}, v{S+16+i}, v{S+17+i}")
e(f"v_max_f32 v{vT2}, v{vT2}, v{S+31}")
halfmax(vT2); mins(vT2,Q)
e(f"ds_write_b128 v{vT3}, {r('v',Q,4)}"); e(f"ds_write_b128 v{vT3}, {r('v',Q+4,4)} offset:1024")
pack(56,B0+32,True); st2("h",56,sT1); pack(P,B0+48,True); st2("h",P,sT1,2048)
for i in range(1,4):
    e(f"s_add_u32 s{sT0}, s{sW}, {i}"); e(f"s_and_b32 s{sT0}, s{sT0}, 3"); e(f"s_lshl_b32 s{sT0}, s{sT0}, 11"); e(f"s_add_u32 s{sT0}, s{sT0}, {QX}")
    e(f"v_add_u32 v{vT0+i}, s{sT0}, v{vL16}")
e("s_waitcnt lgkmcnt(0)"); e("s_barrier")
for i in range(1,4):
    for h in range(2): e(f"ds_read_b128 {r('v',Q+8*i+4*h,4)}, v{vT0+i} offset:{h*1024}")
lab("L_attn")
for x in setb(4,pWS,f"s{sHO}")+setb(6,pW2s,f"s{sW2O}"): e(x)
def rotg(g,pr):
    if g==0: return [f"s_mov_b32 s{pr}, s{sROT}"]
    return [f"s_add_u32 s{pr}, s{pr}, 1", f"s_cmp_eq_u32 s{pr}, 7\n  s_cselect_b32 s{pr}, 0, s{pr}"]
def dmaw2(step):
    o=[f"s_add_u32 m0, s{sRW}, {(step%14)*2048}"]
    o+= rotg(step//4,8)+[f"s_mul_i32 s9, s8, {64*896}"]+setb(bW2,6,"s9") if step%4==0 else setb(bW2,bW2,32*896)
    return o+[(lambda i=i: vm.op(f"d{step+i//2}",f"global_load_lds_dwordx4 v{vD3+i}, s[{bW2}:{bW2+1}] offset:{i*1024}")) for i in range(4)]
def dmawo(step):
    hd=(step-28)//2
    o=[f"s_add_u32 m0, s{sRW}, {(step%14)*2048}", f"s_add_u32 s{sT2}, s{sWOO}, {hd*28*896}"]
    return o+[(lambda i=i: vm.op(f"d{step+i//2}",f"buffer_load_dwordx4 v{vD3+i}, s[{sWO}:{sWO+3}], s{sT2} offen offset:{i*1024} lds")) for i in range(4)]
def qk(t,h): mfma(S+16*(t%2),KV+16*((t//4)%4)+4*h,Q+8*(t%4)+4*h,0 if h==0 else None)
def pv(t,h): mfma(O+16*(t%4),KV+16*((t//4)%4)+8+4*h,P+4*h,0 if (t<4 and h==0) else None)
def grp(t,g):
    s=S+16*(t%2)+4*g
    for i in range(4): e(f"v_exp_f32 v{s+i}, v{s+i}")
    for i in range(2): e(f"v_cvt_pk_bf16_f32 v{P+2*g+i}, v{s+2*i}, v{s+2*i+1}")
vm.wait("kv0")
ts()
qk(0,0); qk(0,1)
e(f"v_and_b32 v{vT1}, 31, v{vL}"); e(f"v_lshlrev_b32 v{vT1}, 2, v{vT1}"); e(f"v_mul_u32_u24 v{vT2}, 896, v{vL}")
e(f"s_lshr_b32 s{sT0}, s{sW}, 1"); e(f"s_lshl_b32 s{sT0}, s{sT0}, 7"); e(f"v_xor_b32 v{vT0}, s{sT0}, v{vT1}"); e(f"v_xor_b32 v{vT3}, 0x80, v{vT0}")
e("s_waitcnt lgkmcnt(0)"); e("s_nop 3")
fixed={}
for kt in range(16):
    if kt+3<16:
        if (kt+3)%2==0:
            a=setb(bKV,bKV,8192); fixed[(4*kt,1)]=a[0]+"\n  "+a[1]
        for f in range(4): fixed[(4*kt+1,f)]=(lambda kt=kt,f=f: ldkv(kt+3,f))
    if kt<15: fixed[(4*kt+2,3)]=(lambda kt=kt: vm.wait(f"kv{kt+1}"))
ld2=f"buffer_load_dword v{vPOLL}, v{vZ}, s[{sWS}:{sWS+3}], s{sCNT} offen sc1"
SG=opt("sg",16); D0=opt("d0",4); H0=opt("h0",30)
fifo=[]
def carry(lst):
    o=[]; i=0
    while i<len(lst):
        if isinstance(lst[i],str) and i+1<len(lst) and isinstance(lst[i+1],str) and lst[i+1].startswith("s_addc"): o.append(lst[i]+"\n  "+lst[i+1]); i+=2
        else: o.append(lst[i]); i+=1
    return o
def pace(lst,t0,t1):
    n=sum(callable(x) for x in lst); o=[]; i=0
    for x in lst:
        if callable(x): o.append((4*t0+int(i*4*(t1-t0)/n),x)); i+=1
        else: o.append((0,x))
    return o
def hloads():
    o=[]
    for ks in range(28):
        if ks%4==0: o+=rotg(ks//4,10)+["s_lshl_b32 s11, s10, 12"]+setb(bH,4,"s11")
        for u in range(2): o.append(lambda ks=ks,u=u: gld(f"h{ks}",(ks*2+u)*4,vHU+u,bH,(ks%4)*1024,"a"))
    return o
def gloads():
    o=[f"s_add_u32 s{sT2}, s{sBK}, {WS_G}", f"s_lshl_b32 s{sT0}, s{sTH}, 8", f"s_add_u32 s{sT0}, s{sT0}, s{sT2}",
       f"s_lshl_b32 s{sT1}, s{sW}, 7", f"s_add_u32 s{sT1}, s{sT1}, s{sT2}"]
    o+=[lambda: vm.op("g",f"buffer_load_dword v{vGO}, v{vT1}, s[{sWS}:{sWS+3}], s{sT1} offen sc1")]
    o+=[(lambda u=u: vm.op("g",f"buffer_load_dword v{vG+u}, v{(vT0,vT3)[u]}, s[{sWS}:{sWS+3}], s{sT0} offen sc1")) for u in range(2)]
    return o
NP=6; NB=5
def wloc(st):
    if st<4: return ("a",224+8*st)
    if st<NP: return ("v",8+8*(st-4))
    if st<28: return ("v",WG+8*((st-NP)%NB))
    return ("a",8*(st-28))
def tr3(st,t,h):
    p,b_=wloc(st)
    lg.op(f"w{st}",f"ds_read_b64_tr_b16 {r(p,b_+4*t+2*h,2)}, v{vTR3+t} offset:{(st%14)*2048+h*1024}")
def early():
    o=[]
    for s2 in range(0,NP,2):
        o+=[lambda s2=s2: vm.wait(f"d{s2+1}")]+[(lambda st=st,t=t,h=h: tr3(st,t,h)) for st in (s2,s2+1) for t in range(2) for h in range(2)]
        x=carry(dmaw2(14+s2)); o+=x[:-4]+[lambda s2=s2: lg.wait(f"w{s2+1}")]+x[-4:]
    return o
for t in range(64):
    if t in (0,6,8,16,24,28,36,48,63): ts("a")
    if t==SG: fifo=[(0,lambda: vm.wait("h")), (0,lambda: vm.op("s2",f"buffer_atomic_add v{vONE}, v{vSIG}, s[{sWS}:{sWS+3}], s{sCNT} offen sc1"))]+fifo
    if t==D0: fifo+=pace(sum([carry(dmaw2(s)) for s in range(0,14,2)],[]),D0,opt("d1",17))+pace(early(),opt("d1",17),H0-1)
    if t==H0-5: fifo=[(0,lambda: vm.op("p2",ld2))]+fifo
    if t==H0: fifo+=pace([lambda: spin("2","p2",ld2,64)]+carry(hloads())+gloads(),H0,opt("h1",62))
    ms=[(lambda: qk(t+1,0)) if t<63 else None,(lambda: qk(t+1,1)) if t<63 else None,(lambda: pv(t-1,1)) if t>0 else None,lambda: pv(t,0)]
    for g in range(4):
        if ms[g]:
            ms[g]()
            if (t,g) in fixed: do(fixed[(t,g)])
            elif fifo and fifo[0][0]<=4*t+g: do(fifo.pop(0)[1])
        grp(t,g)
print("fifo left",len(fifo),file=sys.stderr)
while fifo: do(fifo.pop(0)[1])
e("s_nop 1"); pv(63,1)
ts()
red=[]
def A(x): red.append(x)
for i in range(1,4):
    e(f"s_add_u32 s{sT0}, s{sW}, {i}"); e(f"s_and_b32 s{sT0}, s{sT0}, 3"); e(f"s_mul_i32 s{sT0}, s{sT0}, 12288"); e(f"s_add_u32 s{sT0}, s{sT0}, {RED+(i-1)*4096}")
    e(f"v_add_u32 v{vT0+i}, s{sT0}, v{vL16}")
e(f"v_add_f32 v7, v{O+12}, v{O+28}"); e(f"v_add_f32 v7, v7, v{O+44}"); e(f"v_add_f32 v7, v7, v{O+60}")
e(f"v_cmp_ngt_f32 vcc, {f2u(2.0**40 if not FORCE_FB else -1.0)}, v7"); e(f"s_and_b64 vcc, vcc, s[{sUP}:{sUP+1}]")
e(f"s_cselect_b32 s{sT1}, 1.0, 0"); e(f"v_mov_b32 v7, s{sT1}")
for q in range(4): e(f"v_cndmask_b32 v{O+16*q+15}, v{O+16*q+15}, v7, s[{sUP}:{sUP+1}]")
e(f"s_mul_i32 s{sT0}, s{sW}, 12288"); e(f"s_add_u32 s{sT0}, s{sT0}, {RED}"); e(f"v_add_u32 v{vT0}, s{sT0}, v{vL16}")
for i in range(1,4):
    for q in range(4): A([lambda i=i,q=q: lg.op("rw",f"ds_write_b128 v{vT0+i}, {r('v',O+16*i+4*q,4)} offset:{q*1024}")])
A([lambda: lg.wait("rw"),"s_barrier"])
for i in range(0,12,2): A([(lambda i=i+k: lg.op(f"rr{i//4}",f"ds_read_b128 {r('v',O+16+4*i,4)}, v{vT0} offset:{i*1024}")) for k in range(2)])
V=[]
for i in range(3): V+=[lambda i=i: lg.wait(f"rr{i}")]+[f"v_add_f32 v{O+k}, v{O+k}, v{O+16+16*i+k}" for k in (12,15,13,14,*range(12))]
V+=[lambda: vm.wait("g"), f"v_readlane_b32 s{sT0}, v{O+15}, 32\n  v_rcp_f32 v{vT0}, v{O+12}\n  s_cmp_lg_u32 s{sT0}, 0\n  s_cbranch_scc1 L_fb\nL_fbok:",
    f"v_mul_f32 v{vT0}, v{vT0}, v{vGO}", f"v_mov_b32 v{vT1}, v{vT0}\n  s_nop 1\n  v_permlane32_swap_b32 v{vT0}, v{vT1}\n  s_nop 1"]
V+=[f"v_mul_f32 v{O+k}, v{O+k}, v{vT1}" for k in range(16)]
V+=[f"v_cvt_pk_bf16_f32 v{Q+i}, v{O+2*i}, v{O+2*i+1}" for i in range(8)]
V+=[f"v_cndmask_b32 v{Q+i}, v{Q+i}, 0, s[{sUP}:{sUP+1}]" for i in (6,7)]
V+=[lambda: st2("o",Q,68), lambda: ts()]
V+=[f"s_cmp_eq_u32 s{sCB}, 7\n  s_cbranch_scc1 L_idle"]
tail.append("L_idle:\n  s_waitcnt vmcnt(0) lgkmcnt(0)\n  s_branch L_fin")
FG=opt("fg",6)
for i in range(0,len(V),FG): A(V[i:i+FG])
O0=opt("o0",19); R0=opt("r0",3)
dq=[]; rq=[(st,t,h) for st in range(NP,36) for t in range(2) for h in range(2)]; nd=14+NP
old=[(lambda s=s,u=u: gld(f"o{u}",OF+(s*2+u)*4,vOU+u,bH,s*1024-4096)) for u in (1,0) for s in range(8)]
def canread(x,st):
    return f"d{x}" in vm.seen and (x-NB<max(st,NP) if x<28 else st>=8)
for st in range(28):
    if st in (0,4,10,16,22): ts("p")
    if st==O0: assert not red; dq=carry(setb(bH,pWS,f"s{sOO}"))+old+dq
    vm.wait(f"h{st}")
    assert not rq or rq[0][0]>st
    lg.wait(f"w{st}")
    k=0
    for u in (1,0):
        for t in (1,0):
            p,b_=wloc(st)
            mfma(AB+32*u+16*t,b_+4*t,(st*2+u)*4,0 if st==0 else None,pa=p,pb="a")
            for _ in range(0 if st<R0 else (1 if red else 2)):
                if rq and canread(rq[0][0],st) and (rq[0][0]<=st+2 or vm.n(f"d{rq[0][0]}") is None or vm.n(f"d{rq[0][0]}")>=opt("dl",8)):
                    vm.wait(f"d{rq[0][0]}"); tr3(*rq.pop(0))
            if nd<36 and (not rq or rq[0][0]>nd-13) and lg.n(f"w{nd-13}")!=0:
                x=carry(dmaw2(nd) if nd<28 else dmawo(nd)); dq+=x[:-4]+[lambda nd=nd: lg.wait(f"w{nd-13}")]+x[-4:]; nd+=2
            if red:
                for x in red.pop(0): do(x)
            for _ in range(1 if red else 2):
                if dq: do(dq.pop(0))
            k+=1
print("left dq",len(dq),"rq",len(rq),"nd",nd,file=sys.stderr); assert nd==36
while dq: do(dq.pop(0))
while rq: vm.wait(f"d{rq[0][0]}"); tr3(*rq.pop(0))
for u in range(2): e(f"v_sub_f32 v{vG+u}, 1.0, v{vG+u}")
for i in range(1,4):
    e(f"s_xor_b32 s{sT0}, s{sW}, {i}"); e(f"s_mul_i32 s{sT0}, s{sT0}, {RS}")
    e(f"v_add_u32 v{vT0+i}, s{sT0}, v{vL16}")
e(f"v_add_u32 v{vT0}, s{sRW}, v{vL16}"); e("s_mov_b32 s69, 0")
def scl(q): return [f"v_mul_f32 v{AB+16*q+k}, v{vG+q//2}, v{AB+16*q+k}" for k in range(16)]
ts("p")
for x in scl(3): e(x)
lab("L_ochk"); vm.all()
e(f"v_max3_u32 v7, v{OF}, v{OF+1}, v{OF+2}"); e(f"v_max3_u32 v{vPOLL}, v{OF+3}, v{OF+4}, v{OF+5}")
for i in range(6,62,4): e(f"v_max3_u32 v7, v7, v{OF+i}, v{OF+i+1}"); e(f"v_max3_u32 v{vPOLL}, v{vPOLL}, v{OF+i+2}, v{OF+i+3}")
e(f"v_max3_u32 v7, v7, v{OF+62}, v{OF+63}"); e(f"v_max_u32 v7, v7, v{vPOLL}"); e(f"v_cmp_eq_u32 vcc, -1, v7"); lg.all(); e("s_cbranch_vccnz L_oretry"); lab("L_ook")
main=L; L=[]; lab("L_oretry"); e("s_add_u32 s69, s69, 1"); e("s_cmp_ge_u32 s69, 0x10000"); e("s_cbranch_scc1 L_ook")
for x in old: x()
e("s_branch L_ochk"); tail.append("\n".join(L)); L=main; vm.q=[]
ts("mp")
fin=[f"v_and_b32 v7, 31, v{vL}",f"v_mul_u32_u24 v7, 896, v7",f"v_lshrrev_b32 v{vPOLL}, 5, v{vL}",f"v_lshl_add_u32 v7, v{vPOLL}, 4, v7",
     f"s_lshl_b32 s{sT0}, s{sTB}, 2",f"s_lshl_b32 s{sT1}, s{sTH}, 1",f"s_add_u32 s{sT0}, s{sT0}, s{sT1}",f"s_lshr_b32 s{sT1}, s{sW}, 1",f"s_add_u32 s{sT0}, s{sT0}, s{sT1}",
     f"s_mul_i32 s{sT0}, s{sT0}, {32*896}",f"s_lshl_b32 s{sT1}, s{sCB}, 7",f"s_add_u32 s{sT0}, s{sT0}, s{sT1}",f"s_and_b32 s{sT1}, s{sW}, 1",f"s_lshl_b32 s{sT1}, s{sT1}, 6",f"s_add_u32 s{sT0}, s{sT0}, s{sT1}"]
for q in (3,2,1,0):
    t,u=q%2,q//2
    sc=scl(q-1) if q>0 else []
    for s in range(8):
        mfma(AB+16*q,8*s+4*t,OF+(s*2+u)*4,None,pa="a")
        if q>0:
            if s>=3 and s<7 and q<3: lg.op("fw",f"ds_write_b128 v{vT0}, {r('v',AB+16*(q+1)+4*(s-3),4)} offset:{q*4096+(s-3)*1024}")
            for _ in range(4 if s<4 else 2):
                if s<4: e(sc.pop(0))
                elif fin: e(fin.pop(0))
        else:
            if s<2: e("s_nop 4")
            elif s<4:
                for k in range(2): lg.op("fw",f"ds_write_b128 v{vT0}, {r('v',AB+16+8*(s-2)+4*k,4)} offset:{(2*(s-2)+k)*1024}")
            elif s==5: lg.all(); e("s_barrier")
            if s>=5:
                for i in range(4*(s-5),4*(s-4)): lg.op(f"fr{i//4}",f"ds_read_b128 {r('v',WG+4*i,4)}, v{vT0+1+i//4} offset:{i*1024}")
ts("mp")
lg.wait("fr1")
for k in range(16): e(f"v_add_f32 v{WG+k}, v{WG+k}, v{WG+16+k}")
lg.wait("fr2")
for k in range(16): e(f"v_add_f32 v{AB+k}, v{AB+k}, v{WG+32+k}")
for k in range(16): e(f"v_add_f32 v{AB+k}, v{AB+k}, v{WG+k}")
pack(Q,AB); e("s_nop 1")
for p in range(2):
    e(f"v_permlane32_swap_b32 v{Q+4*p}, v{Q+4*p+2}"); e(f"v_permlane32_swap_b32 v{Q+4*p+1}, v{Q+4*p+3}")
    e(f"buffer_store_dwordx4 {r('v',Q+4*p,4)}, v7, s[{sOUT}:{sOUT+3}], s{sT0} offen offset:{p*32}")
ts("p"); lab("L_fin")
if TS:
    e("s_waitcnt vmcnt(0)"); ts(); e("s_waitcnt lgkmcnt(0)")
    for i in range(tsn[0]): e(f"v_writelane_b32 v7, s{sTS+2*i}, {i}")
    e(f"s_lshl_b32 s{sT0}, s91, 2"); e(f"s_add_u32 s{sT0}, s{sT0}, s{sW}"); e(f"s_lshl_b32 s{sT0}, s{sT0}, 8"); e(f"s_add_u32 s{sT0}, s{sT0}, {WS_T}")
    e(f"v_lshlrev_b32 v{vT0}, 2, v{vL}"); e(f"buffer_store_dword v7, v{vT0}, s[{sWS}:{sWS+3}], s{sT0} offen")
e("s_endpgm")
for t in tail: L.append(t)
lab("L_fb")
e(f"s_cmp_lg_u32 s{sPASS}, 0"); e("s_cbranch_scc1 L_fbok"); e(f"s_mov_b32 s{sPASS}, 1"); e("s_waitcnt vmcnt(0) lgkmcnt(0)"); e("s_nop 15")
M=P
for q in range(4):
    e(f"v_mov_b32 v{M+q}, 0xff800000")
    for i in (6,7): e(f"v_cndmask_b32 v{Q+8*q+i}, v{Q+8*q+i}, 0, s[{sUP}:{sUP+1}]")
e(f"s_lshl_b32 s{sT3}, s{sW}, 16"); e(f"s_mov_b32 s{sT2}, 16")
lab("L_fbl")
for h in range(2): e(f"buffer_load_dwordx4 {r('v',KT+4*h,4)}, v{vL16}, s[{sWS}:{sWS+3}], s{sT3} offen offset:{h*1024} sc1")
e("s_waitcnt vmcnt(0)")
for q in range(4):
    mfma(S,KT,Q+8*q,0); mfma(S,KT+4,Q+8*q+4); e("s_nop 15")
    for i in range(0,16,2): e(f"v_max3_f32 v{M+q}, v{M+q}, v{S+i}, v{S+i+1}")
e(f"s_add_u32 s{sT3}, s{sT3}, 4096"); e(f"s_sub_u32 s{sT2}, s{sT2}, 1"); e(f"s_cmp_lg_u32 s{sT2}, 0"); e("s_cbranch_scc1 L_fbl")
e("s_barrier")
e(f"v_lshlrev_b32 v{vT2}, 2, v{vL}")
for q in range(4):
    halfmax(M+q)
    e(f"s_add_u32 s{sT0}, s{sW}, {q}"); e(f"s_and_b32 s{sT0}, s{sT0}, 3"); e(f"s_lshl_b32 s{sT0}, s{sT0}, 10"); e(f"s_add_u32 s{sT0}, s{sT0}, {RED}")
    e(f"v_add_u32 v{S+q}, s{sT0}, v{vT2}"); e(f"ds_write_b32 v{S+q}, v{M+q} offset:{q*256}")
e("s_waitcnt lgkmcnt(0)"); e("s_barrier")
for q in range(4):
    for i in range(4): e(f"ds_read_b32 v{S+4+i}, v{S+q} offset:{i*256}")
    e("s_waitcnt lgkmcnt(0)"); e(f"v_max3_f32 v{M+q}, v{S+4}, v{S+5}, v{S+6}"); e(f"v_max_f32 v{M+q}, v{M+q}, v{S+7}")
    mins(M+q,Q+8*q)
for x in kvinit(): do(x)
e("s_waitcnt vmcnt(0)"); e("s_barrier"); e("s_branch L_attn")
lab("L_end"); e("s_endpgm")
L.append(f""".section .rodata,"a"
.p2align 6
.amdhsa_kernel {NAME}_kernel
  .amdhsa_next_free_vgpr 512
  .amdhsa_next_free_sgpr 102
  .amdhsa_accum_offset 256
  .amdhsa_group_segment_fixed_size 0
  .amdhsa_kernarg_size 96
  .amdhsa_user_sgpr_count 2
  .amdhsa_user_sgpr_kernarg_segment_ptr 1
  .amdhsa_system_sgpr_workgroup_id_x 1
.end_amdhsa_kernel""")
out=[a for a in sys.argv[1:] if a.endswith(".s")]
open(out[0] if out else f"cdna_kernels/{NAME}.s","w").write("\n".join(L)+"\n")
```

```python
import sys, math, struct
NAME="gated_mix__grouped_kv_mqa__dense_activation_relu__prompt"
TC = "tc" in sys.argv
TS = "ts" in sys.argv or TC
FORCE_FB = "fb" in sys.argv
import re
DROP=[a[5:] for a in sys.argv if a.startswith("drop=")]
L=[]
def e(s): L.append("  "+s)
def lab(s): L.append(s+":")
def f2u(x): return "0x%08x"%struct.unpack("<I",struct.pack("<f",x))[0]
class VM:
    def __init__(s): s.q=[]; s.seen=set()
    def op(s,tag,txt):
        s.seen.add(tag)
        for d in DROP:
            if re.fullmatch(d,tag): return
        e(txt); s.q.append(tag)
    def n(s,tag):
        assert tag in s.seen, tag
        idx=[i for i,t in enumerate(s.q) if t==tag]
        if not idx: return None
        return len(s.q)-1-idx[-1]
    def wait(s,tag):
        n=s.n(tag)
        if n is None: return
        n=min(n,63); e(f"s_waitcnt vmcnt({n})"); s.q=s.q[len(s.q)-n:] if n else []
    def all(s): e("s_waitcnt vmcnt(0)"); s.q=[]
vm=VM()
class LG(VM):
    def wait(s,tag):
        n=s.n(tag)
        if n is None: return
        n=min(n,15); e(f"s_waitcnt lgkmcnt({n})"); s.q=s.q[len(s.q)-n:] if n else []
    def all(s): e("s_waitcnt lgkmcnt(0)"); s.q=[]
lg=LG()
def opt(name,d):
    v=[a.split("=")[1] for a in sys.argv if a.startswith(name+"=")]
    return int(v[0]) if v else d
def r(p,a,n): return f"{p}[{a}:{a+n-1}]"
def mfma(d,a,b,c=None,pa="v",pb="v"):
    cc = "0" if c==0 and c is not None else r("v",d,16)
    e(f"v_mfma_f32_32x32x16_bf16 {r('v',d,16)}, {r(pa,a,4)}, {r(pb,b,4)}, {cc}")
WS_KV=0; WS_H=0; WS_O=0x70000; WS_G=0x90000; WS_C=0x91000; WS_PAD=0xa0000; WS_T=0x1800000; WS_SZ=0x2000000
RS=28672; W0B=4*RS; QX=147456; XA=0; WBA=65536; W0A=131072; RED=114688
sX,sW0,sWB,sWS,sWO,sOUT,sDBG=8,12,16,20,24,28,32
bKV,bH,bW2,pW2s=36,38,40,42
sTB,sJ,sW,sRW,sST0,sROT,sSTB,sCOLB,sT0,sT1,sT2,sT3,sTT,sPASS,sCNT,sSP,sHO,sW2O,sWOO,sOO,sTH,sCB=range(44,66)
sUP=66; sBK=2; sXB=93; sTS=70; sPR=3
tsn=[0]
TSET=[a[4:] for a in sys.argv if a.startswith("set=")]; TSET=TSET[0] if TSET else "m"
def ts(k="m",idx=None):
    if TS and (TSET in k or k=="*"):
        if idx is not None: tsn[0]=idx
        e(f"{'s_memtime' if TC else 's_memrealtime'} s[{sTS+2*tsn[0]}:{sTS+2*tsn[0]+1}]"); tsn[0]+=1
def srd(d,b,size):
    e(f"s_mov_b32 s{d}, s{b}"); e(f"s_and_b32 s{d+1}, s{b+1}, 0xffff")
    e(f"s_mov_b32 s{d+2}, {size}"); e(f"s_mov_b32 s{d+3}, 0x20000")
vL,vL16,vT0,vT1,vT2,vT3=1,2,3,4,5,6
vXA=8;vXR=12;vW0A=16;vWBA=17;vTR0=21;vTRB=22;vTR3=26;vPOLL=28;vGO=29;vG=30;vD3=240;vHU=244;vOU=246;vONE=248;vSIG=249;vZ=250
WF=32;PK=48;B0=64;A0=128
Q=32;O=64;S=128;P=160;KV=168;KT=232
OF=64;WG=192;AB=128
hdr=open(f"cdna_kernels/{NAME}.s.ref").read().split("; Override")[0]
L.append(hdr.rstrip())
L.append("; @launch grid=(256,1,1) block=(256,1,1) lds=163840")
L.append(f'.amdgcn_target "amdgcn-amd-amdhsa--gfx950"\n.text\n.globl {NAME}_kernel\n.p2align 8\n.type {NAME}_kernel,@function\n{NAME}_kernel:')
e("s_cmp_ge_u32 s2, 256"); e("s_cbranch_scc1 L_end")
ts("*")
e("s_load_dwordx16 s[8:23], s[0:1], 0"); e("s_load_dwordx8 s[92:99], s[0:1], 64")
e(f"v_lshrrev_b32 v{vT0}, 6, v0"); e(f"v_and_b32 v{vL}, 63, v0")
if opt("map",1):
    e(f"s_bfe_u32 s{sT0}, s2, 0x20001"); e(f"v_readfirstlane_b32 s{sW}, v{vT0}")
    e(f"s_lshl_b32 s{sT0}, s{sT0}, 2"); e(f"s_bfe_u32 s{sT1}, s2, 0x20003"); e(f"s_or_b32 s{sTB}, s{sT0}, s{sT1}")
    e(f"s_and_b32 s{sTH}, s2, 1"); e(f"s_lshr_b32 s{sCB}, s2, 5")
else:
    e(f"s_and_b32 s{sT0}, s2, 7"); e(f"v_readfirstlane_b32 s{sW}, v{vT0}")
    e(f"s_lshl_b32 s{sT0}, s{sT0}, 1"); e(f"s_bfe_u32 s{sT1}, s2, 0x10003"); e(f"s_or_b32 s{sTB}, s{sT0}, s{sT1}")
    e(f"s_bfe_u32 s{sTH}, s2, 0x10004"); e(f"s_lshr_b32 s{sCB}, s2, 5")
e(f"s_lshl_b32 s{sJ}, s{sTH}, 3"); e(f"s_or_b32 s{sJ}, s{sJ}, s{sCB}")
e(f"v_lshlrev_b32 v{vL16}, 4, v{vL}")
if TS: e("s_mov_b32 s91, s2")
e(f"s_add_u32 s{sBK}, s{sTB}, 1"); e(f"s_lshl_b32 s{sBK}, s{sBK}, 20")
e(f"s_mul_i32 s{sRW}, s{sW}, {RS}")
e(f"s_lshl_b32 s{sTT}, s{sTB}, 2"); e(f"s_add_u32 s{sTT}, s{sTT}, s{sW}")
e(f"s_lshl_b32 s{sT0}, s{sTB}, 1"); e(f"s_add_u32 s{sT0}, s{sT0}, s{sJ}"); e(f"s_mul_i32 s{sT1}, s{sT0}, 37"); e(f"s_lshr_b32 s{sT1}, s{sT1}, 8")
e(f"s_mul_i32 s{sT1}, s{sT1}, 7"); e(f"s_sub_u32 s{sROT}, s{sT0}, s{sT1}")
if not opt("rot",1): e(f"s_mov_b32 s{sROT}, 0")
e(f"v_lshrrev_b32 v7, 3, v{vL}"); e(f"v_mul_u32_u24 v{vT0}, 896, v7")
e(f"v_and_b32 v{vT1}, 7, v{vL}"); e(f"v_lshrrev_b32 v{vT2}, 4, v{vL}"); e(f"v_xor_b32 v{vT2}, v{vT1}, v{vT2}")
e(f"v_lshl_add_u32 v{vXA}, v{vT2}, 4, v{vT0}")
e(f"v_xor_b32 v{vT2}, 4, v{vT2}"); e(f"v_lshl_add_u32 v{vXA+1}, v{vT2}, 4, v{vT0}")
e(f"v_add_u32 v{vXA+2}, {2*6144}, v{vXA}"); e(f"v_add_u32 v{vXA+3}, {3*6144}, v{vXA+1}"); e(f"v_add_u32 v{vXA+1}, 6144, v{vXA+1}")
e(f"v_bfe_u32 v{vT2}, v{vL}, 4, 1"); e(f"v_lshlrev_b32 v{vT2}, 2, v{vT2}"); e(f"v_xor_b32 v{vT2}, v{vT1}, v{vT2}"); e(f"v_lshlrev_b32 v{vWBA}, 4, v{vT2}")
e(f"v_add_u32 v{vD3}, v{vWBA}, v{vT0}")
e(f"v_lshrrev_b32 v{vT0}, 2, v{vL}"); e(f"v_and_b32 v{vT1}, 3, v{vL}"); e(f"v_lshlrev_b32 v{vT1}, 4, v{vT1}")
e(f"s_cmp_lt_u32 s{sCB}, 1"); e(f"s_cselect_b32 s{sSP}, 1, 0")
ts("i"); e("s_waitcnt lgkmcnt(0)")
ts("si")
pG,pOUT,pDBG,pWS=92,94,96,98
TW=opt("tw",1)
if TW&1:
    for p in (8,10,20,12,14,22,16,pOUT): e(f"s_load_dword s90, s[{p}:{p+1}], 0")
    e(f"s_load_dword s90, s[{pWS}:{pWS+1}], {WS_PAD}"); e(f"s_add_u32 s{sT0}, s{sBK}, {WS_PAD}"); e(f"s_load_dword s90, s[{pWS}:{pWS+1}], s{sT0}")
e("s_mov_b64 s[4:5], s[20:21]"); e("s_mov_b64 s[6:7], s[10:11]"); e(f"s_mov_b64 s[{pW2s}:{pW2s+1}], s[22:23]")
srd(sWO,16,401408)
e("s_mov_b64 s[100:101], s[12:13]"); e(f"s_mov_b32 s{sST0}, 56"); e(f"s_mov_b32 s{sT3}, 25088"); e(f"s_mov_b32 s{sT2}, 0")
e(f"s_cmp_eq_u32 s{sJ}, 0"); e("s_cbranch_scc1 L_w0done")
e("s_mov_b64 s[100:101], s[14:15]")
e(f"s_cmp_eq_u32 s{sJ}, 8"); e("s_cbranch_scc1 L_w0done")
e("s_mov_b64 s[100:101], s[6:7]"); e(f"s_mov_b32 s{sST0}, 896"); e(f"s_mov_b32 s{sT3}, 401408"); e(f"s_mul_i32 s{sT2}, s{sJ}, 56")
lab("L_w0done")
srd(sW0,100,f"s{sT3}"); srd(sX,8,1835008)
e(f"v_mad_u32_u24 v{vW0A}, v{vT0}, s{sST0}, v{vT1}")
e(f"s_lshl_b32 s{sST0}, s{sST0}, 4"); e(f"s_mul_i32 s{sT1}, s{sW}, s{sST0}"); e(f"s_add_u32 s{sT2}, s{sT2}, s{sT1}"); e(f"s_lshl_b32 s{sST0}, s{sST0}, 2")
e(f"s_mul_i32 s{sT3}, s{sTT}, {32*896}")
def rotc(c):
    if c==0: e(f"s_mov_b32 s{sPR}, s{sROT}")
    else: e(f"s_add_u32 s{sPR}, s{sPR}, 1"); e(f"s_cmp_eq_u32 s{sPR}, 7"); e(f"s_cselect_b32 s{sPR}, 0, s{sPR}")
e(f"s_lshl_b32 s{sT0}, s{sCB}, 1"); e(f"s_mul_i32 s{sT1}, s{sTH}, 14"); e(f"s_add_u32 s68, s{sT0}, s{sT1}"); e(f"s_sub_u32 s68, s68, 2")
e(f"s_lshr_b32 s{sT1}, s{sW}, 1"); e(f"s_add_u32 s{sT0}, s68, s{sT1}"); e(f"s_lshl_b32 s{sCOLB}, s{sT0}, 7")
e(f"s_and_b32 s{sT0}, s{sW}, 1"); e(f"s_add_u32 s68, s68, s{sT0}"); e(f"s_mul_i32 s{sT0}, s{sT0}, {32*3584}"); e(f"s_add_u32 s{sCOLB}, s{sCOLB}, s{sT0}")
srd(sWB,4,1605632); e(f"s_mov_b32 s{sSTB}, 3584")
e(f"v_mad_u32_u24 v{vWBA}, v7, s{sSTB}, v{vWBA}")
for i in range(1,4): e(f"v_add_u32 v{vWBA+i}, {8*3584-1024}, v{vWBA+i-1}")
e(f"s_mov_b64 s[100:101], s[{pG}:{pG+1}]")
PD=opt("pd",2)
e(f"s_lshl_b32 s92, s{sW}, 10"); e(f"s_lshl_b32 s{sXB}, s{sW}, 12")
W7=opt("w7",0)
def xdma(c,sweep,wb):
    o=xdma_(c,sweep,wb)
    return o[:1]+o[3:] if sweep and PD<=c<W7 else o
def xdma_(c,sweep,wb):
    o=[lambda: rotc(c), f"s_mul_i32 s{sT1}, s{sPR}, s{sST0}\n  s_add_u32 m0, s92, {(W0A+(c if W7 else c%4)*4096) if sweep else (W0B+c*4096)}\n  s_add_u32 s{sT1}, s{sT1}, s{sT2}",
       lambda: vm.op(f"x{c}",f"buffer_load_dwordx4 v{vW0A}, s[{sW0}:{sW0+3}], s{sT1} offen lds"),
       f"s_lshl_b32 s{sT1}, s{sPR}, 7\n  s_add_u32 m0, s{sXB}, {(c%4)*16384 if sweep else c*4096}\n  s_add_u32 s{sT1}, s{sT1}, s{sT3}"]
    o+=[(lambda i=i: vm.op(f"x{c}",f"buffer_load_dwordx4 v{vXA+i}, s[{sX}:{sX+3}], s{sT1} offen offset:{i*1024} lds")) for i in range(4)]
    if wb:
        o+=[f"s_mul_i32 s{sT1}, s{sPR}, {64*3584}\n  s_add_u32 m0, s{sXB}, {WBA+(c%4)*16384}\n  s_add_u32 s{sT1}, s{sT1}, s{sCOLB}"]
        o+=[(lambda i=i: vm.op(f"x{c}",f"buffer_load_dwordx4 v{vWBA+i}, s[{sWB}:{sWB+3}], s{sT1} offen offset:{i*1024} lds")) for i in range(4)]
    return o
def do(x):
    if callable(x): x()
    else: e(x)
tail=[]
ts("i")
e(f"s_cmp_eq_u32 s{sSP}, 1"); e("s_cbranch_scc1 L_i2")
main=L; L=[]; lab("L_i2"); e(f"s_mov_b32 s{sXB}, s{sRW}")
PA=opt("pa",3)
GI=QX+8192
srd(sWB,100,896); e(f"s_mov_b32 m0, {GI}"); e("s_movk_i32 s69, 896")
vm.op("gate",f"buffer_load_dwordx4 v{vL16}, s[{sWB}:{sWB+3}], 0 offen lds")
GFL=opt("gf",2); PW=opt("pw",1)*GFL; NR=opt("nr",32); FL=0x80000; vFP=160; vFS=161; vT8=162
for c in range(-1,PA):
    for x in (xdma(c,False,False) if c>=0 else []): do(x)
    if GFL==1 and c==opt("zc",0):
        srd(sWS,pWS,WS_SZ); e(f"s_lshl1_add_u32 s{sT1}, s{sTB}, s{sTH}"); e(f"s_lshl2_add_u32 s{sT1}, s{sT1}, {FL}")
        e(f"v_mul_u32_u24 v{vFS}, 0x1100, v0"); e(f"v_add_u32 v{vFS}, s{sT1}, v{vFS}"); e(f"v_mov_b32 v{vFP}, {WS_SZ}"); e(f"v_cmp_gt_u32 vcc, {NR}, v0")
        e(f"v_mov_b32 v{vT8+1}, 0"); e(f"v_cndmask_b32 v{vFS}, v{vFP}, v{vFS}, vcc")
        vm.op("z",f"buffer_store_dword v{vT8+1}, v{vFS}, s[{sWS}:{sWS+3}], 0 offen sc1")
srd(sWB,6,401408); e(f"v_mad_u32_u24 v{vWBA}, v{vT0}, s69, v{vT1}")
e(f"s_mul_i32 s{sCOLB}, s{sJ}, 56"); e(f"s_mul_i32 s{sT1}, s{sW}, {16*896}"); e(f"s_add_u32 s{sCOLB}, s{sCOLB}, s{sT1}")
e("s_branch L_i3"); tail.append("\n".join(L)); L=main; q0=list(vm.q)+["pf"]; vm.q=[]
def zer(nm,f):
    global L
    e(f"s_lshl2_add_u32 s{sT1}, s{sCB}, s{sW}"); e(f"s_cmp_eq_u32 s{sT1}, 28"); e(f"s_cbranch_scc1 L_{nm}"); lab(f"L_{nm}r")
    m=L; L=[]; lab(f"L_{nm}"); f(); e(f"s_branch L_{nm}r"); tail.append("\n".join(L)); L=m
def z1():
    srd(sWS,pWS,WS_SZ); e(f"s_lshl1_add_u32 s{sT1}, s{sTB}, s{sTH}"); e(f"s_mul_i32 s{sT1}, s{sT1}, 0x1100"); e(f"s_add_u32 s{sT1}, s{sT1}, {FL}")
    e(f"v_and_b32 v{vFS}, 31, v0"); e(f"v_lshlrev_b32 v{vFS}, 2, v{vFS}"); e(f"v_mov_b32 v{vT8+1}, 0")
    e(f"buffer_store_dword v{vT8+1}, v{vFS}, s[{sWS}:{sWS+3}], s{sT1} offen sc1")
ZE=opt("ze",1)
def z2():
    if ZE: srd(sDBG,pDBG,256); e(f"v_mov_b32 v{vONE}, 1"); e(f"s_waitcnt vmcnt({len(vm.q)})")
    e(f"v_lshlrev_b32 v{vT8+2}, 7, v0"); e(f"buffer_atomic_add v{vONE}, v{vT8+2}, s[{sDBG}:{sDBG+3}], 0 offen sc1")
if GFL==2: assert NR==32; zer("z1",z1)
for c in range(PD):
    for i,x in enumerate(xdma(c,True,True)):
        do(x)
        if c==0 and i in (2,7): ts("i")
    ts("i")
    if GFL==2 and ZE==c+1: zer("z2",z2)
if W7>PD:
    e(f"s_mov_b32 s69, s{sPR}")
    for c in range(PD,W7):
        for x in xdma_(c,True,True)[:3]: do(x)
    e(f"s_mov_b32 s{sPR}, s69")
lab("L_i3")
e("s_getpc_b64 s[4:5]"); lab("L_pc")
e(f"s_mul_i32 s{sT1}, s{sW}, 8192"); e(f"v_lshlrev_b32 v{vT2}, 7, v{vL}"); e(f"v_add_u32 v{vT2}, s{sT1}, v{vT2}")
e(f"v_min_u32 v{vT2}, L_end-L_pc, v{vT2}")
vm.op("pf",f"global_load_dword v{vPOLL}, v{vT2}, s[4:5]")
qs=list(vm.q)
srd(sWS,pWS,WS_SZ); srd(sOUT,pOUT,1835008); srd(sDBG,pDBG,256)
e(f"s_mov_b32 s{sUP}, 0"); e(f"s_mov_b32 s{sUP+1}, -1")
for i in range(1,4): e(f"v_add_u32 v{vD3+i}, {6144*i}, v{vD3}")
e(f"v_and_b32 v{vT0}, 31, v{vL}"); e(f"v_lshrrev_b32 v{vT1}, 5, v{vL}"); e(f"v_bfe_u32 v{vT2}, v{vL}, 1, 3")
e(f"v_xor_b32 v{vT2}, v{vT1}, v{vT2}"); e(f"v_lshlrev_b32 v{vT0}, 7, v{vT0}"); e(f"v_add_u32 v{vT0}, s{sXB}, v{vT0}")
for s in range(4):
    e(f"v_xor_b32 v{vT3}, {2*s}, v{vT2}"); e(f"v_lshl_add_u32 v{vXR+s}, v{vT3}, 4, v{vT0}"); e(f"v_xor_b32 v{252+s}, 0x1000, v{vXR+s}")
e(f"v_bfe_u32 v{vT0}, v{vL}, 2, 2"); e(f"v_bfe_u32 v{vT2}, v{vL}, 4, 1"); e(f"v_and_b32 v{vT3}, 3, v{vL}")
e(f"v_lshlrev_b32 v{vT3}, 3, v{vT3}"); e(f"v_lshl_add_u32 v{vT3}, v{vT2}, 5, v{vT3}")
e(f"v_lshl_add_u32 v{vT2}, v{vT1}, 3, v{vT0}"); e(f"v_lshl_add_u32 v{vTR0}, v{vT2}, 6, v{vT3}"); e(f"s_cmp_eq_u32 s{sSP}, 1"); e(f"s_cselect_b32 s{sT0}, {W0B-W0A}, 0"); e(f"s_add_u32 s{sT0}, s{sT0}, {W0A}"); e(f"v_mov_b32 v{vTRB+2}, v{vTR0}"); e(f"v_add_u32 v{vTRB+3}, {2*RS}, v{vTR0}"); e(f"v_add_u32 v{vTR0}, s{sT0}, v{vTR0}")
e(f"s_and_b32 s{sT1}, s{sW}, 1"); e(f"s_lshl_b32 s{sT1}, s{sT1}, 13"); e(f"s_add_u32 s{sT1}, s{sT1}, {WBA}")
e(f"v_bfe_u32 v7, v{vL}, 3, 1"); e(f"v_lshl_add_u32 v{vT3}, v7, 6, v{vT3}")
e(f"v_lshl_add_u32 v{vTRB}, v{vT2}, 7, v{vT3}"); e(f"v_add_u32 v{vTRB}, s{sT1}, v{vTRB}"); e(f"v_xor_b32 v{vTRB+1}, 64, v{vTRB}")
e(f"v_lshl_add_u32 v{vT2}, v{vT1}, 2, v{vT0}"); e(f"v_lshl_add_u32 v{vT3}, v{vT2}, 7, v{vT3}")
e(f"s_and_b32 s{sT0}, s{sW}, 1"); e(f"s_lshl_b32 s{sT0}, s{sT0}, 6"); e(f"v_xor_b32 v{vT3}, s{sT0}, v{vT3}"); e(f"v_add_u32 v{vTR3}, s{sRW}, v{vT3}")
e(f"v_xor_b32 v{vT3}, 64, v{vT3}"); e(f"v_add_u32 v{vTR3+1}, s{sRW}, v{vT3}")
e(f"s_lshr_b32 s{sT0}, s{sW}, 1"); e(f"s_xor_b32 s{sT1}, s{sT0}, 1")
for u in range(2):
    e(f"s_mul_i32 s69, s{sT0+u}, {112*1024}"); e(f"v_add_u32 v{vHU+u}, s69, v{vL16}"); e(f"s_lshl_b32 s69, s{sT0+u}, 15"); e(f"v_add_u32 v{vOU+u}, s69, v{vL16}")
e(f"v_mov_b32 v{vONE}, 1"); e(f"v_lshlrev_b32 v{vSIG}, 25, v{vL}"); e(f"v_mov_b32 v{vZ}, 0")
e(f"s_add_u32 s{sCNT}, s{sBK}, {WS_C}")
e(f"s_lshl_b32 s{sT0}, s{sTH}, 1")
e(f"s_mul_i32 s{sHO}, s{sT0}, {112*1024}"); e(f"s_mul_i32 s{sT1}, s{sW}, {28*1024}"); e(f"s_add_u32 s{sHO}, s{sHO}, s{sT1}"); e(f"s_add_u32 s{sHO}, s{sHO}, s{sBK}")
e(f"s_lshl_b32 s{sOO}, s{sT0}, 15"); e(f"s_lshl_b32 s{sT1}, s{sW}, 13"); e(f"s_add_u32 s{sOO}, s{sOO}, s{sT1}"); e(f"s_add_u32 s{sOO}, s{sOO}, {WS_O+4096}"); e(f"s_add_u32 s{sOO}, s{sOO}, s{sBK}")
e(f"s_min_u32 s{sT1}, s{sCB}, 6"); e(f"s_lshl_b32 s{sT1}, s{sT1}, 7"); e(f"s_mul_i32 s{sW2O}, s{sW}, {448*896}"); e(f"s_add_u32 s{sW2O}, s{sW2O}, s{sT1}")
e(f"s_mul_i32 s{sWOO}, s{sW}, {112*896}"); e(f"s_add_u32 s{sWOO}, s{sWOO}, s{sT1}")
e(f"s_mov_b32 s{sPASS}, 0")
if GFL:
    e(f"s_lshl1_add_u32 s{sT1}, s{sTB}, s{sTH}"); e(f"s_lshl_b32 s{sT0}, s{sCB}, 5"); e(f"s_add_u32 s{sT1}, s{sT1}, s{sT0}"); e(f"s_and_b32 s{sT1}, s{sT1}, {NR-1}")
    e(f"s_mul_i32 s{sT1}, s{sT1}, 0x1100"); e(f"s_add_u32 s{sT1}, s{sT1}, {FL}");
    if not PW: e(f"s_cmp_eq_u32 s{sW}, 0"); e(f"s_cselect_b32 s{sT1}, s{sT1}, {WS_SZ}")
    e(f"v_and_b32 v{vFP}, 31, v0"); e(f"v_lshl_add_u32 v{vFP}, v{vFP}, 2, s{sT1}"); e(f"v_lshlrev_b32 v{vT8}, 8, v0")
if TW&2:
    e(f"s_add_u32 s{sT0}, s{sBK}, {WS_PAD}"); e(f"s_mov_b32 s{sT1}, {WS_PAD}")
    for x in (f"s[{sWS}:{sWS+3}], s{sT0}",f"s[{sWS}:{sWS+3}], s{sT1}",f"s[{sWO}:{sWO+3}], 0",f"s[{sOUT}:{sOUT+3}], 0",f"s[{sDBG}:{sDBG+3}], 0"): e(f"buffer_load_dword v251, v{vSIG}, {x} offen offset:128 sc1")
    e(f"global_load_dword v251, v{vZ}, s[{pW2s}:{pW2s+1}]")
    q0+=["tw"]*6; qs+=["tw"]*6
ts("si")
def wql():
    o=[]
    for c in range(7):
        o+=[(lambda c=c: rotc(c)), f"s_mul_i32 s{sT1}, s{sPR}, {64*896}\n  s_add_u32 m0, s{sRW}, {c*1024}\n  s_add_u32 s{sT1}, s{sT1}, s{sCOLB}",
            lambda: vm.op("wq",f"buffer_load_dwordx4 v{vWBA}, s[{sWB}:{sWB+3}], s{sT1} offen lds")]
    return o
GF=96; NE=opt("ne",1)
ld0b=f"buffer_load_dword v{vPOLL}, v{vT8}, s[{sDBG}:{sDBG+3}], 0 offen offset:128 sc1"
def passA(kind):
    if GFL==2:
        e(f"s_lshl1_add_u32 s{sT1}, s{sTB}, s{sTH}"); e(f"s_lshl2_add_u32 s{sT1}, s{sT1}, {FL}")
        e(f"v_mul_u32_u24 v{vFS}, 0x1100, v0"); e(f"v_add_u32 v{vFS}, s{sT1}, v{vFS}"); e(f"v_mov_b32 v{vT8+1}, {WS_SZ}"); e(f"v_cmp_gt_u32 vcc, {NR}, v0")
        e("s_nop 0"); e(f"v_cndmask_b32 v{vFS}, v{vT8+1}, v{vFS}, vcc")
    e(f"v_lshrrev_b32 v{vT2}, 5, v{vL}"); e(f"v_lshlrev_b32 v{vT2}, 4, v{vT2}"); e(f"v_add_u32 v{vT2}, {GI}, v{vT2}"); e(f"s_mov_b32 s{sSTB}, s{sROT}")
    vm.wait("gate") if PA<2 else None
    for c in range(8):
        side=[]
        if c<7:
            e(f"s_lshl_b32 s69, s{sSTB}, 7"); e(f"v_add_u32 v7, s69, v{vT2}"); e(f"s_add_u32 s{sSTB}, s{sSTB}, 1"); e(f"s_cmp_eq_u32 s{sSTB}, 7"); e(f"s_cselect_b32 s{sSTB}, 0, s{sSTB}")
            vm.wait(f"x{c}")
            if GFL==2 and c==opt("zp",5): vm.op("p0",ld0b)
            if GFL==1 and c==opt("zc",0)+1: vm.wait("z"); vm.op("za",f"buffer_atomic_add v{vONE}, v{vT8}, s[{sDBG}:{sDBG+3}], 0 offen sc1")
            if c in (0,1,3,6): ts("s",{0:3,1:4,3:5,6:6}[c])
            if c: lg.all()
            for s in range(4): lg.op(f"x{c}",f"ds_read_b128 {r('a',16*c+4*s,4)}, v{vXR+s} offset:{c*4096}")
            e("s_barrier")
            for s in range(4):
                for h in range(2): lg.op("w",f"ds_read_b64_tr_b16 {r('v',WF+16*(c%2)+4*s+2*h,2)}, v{vTR0} offset:{(4*c+s)*1024+h*256}")
            if kind=="k": side=[(lambda s=s: lg.op("w",f"ds_read_b128 {r('v',GF+16*(c%2)+4*s,4)}, v7 offset:{s*32}")) for s in range(4)]
            if c+PA<7: side+=xdma(c+PA,False,False)
            elif c==7-PA and NE: side+=wql()
        else: lg.all()
        for s in range(4 if c else 0):
            z=0 if (c==1 and s==0) else None; w=WF+16*((c-1)%2)+4*s
            if kind=="v": mfma(B0,16*(c-1)+4*s,w,z,pa="a")
            else: mfma(B0,w,16*(c-1)+4*s,z,pb="a")
            for _ in range(2):
                if side: do(side.pop(0))
            if kind=="k" and c<7: mfma(B0+16,GF+16*((c-1)%2)+4*s,16*(c-1)+4*s,z,pb="a")
            if side: do(side.pop(0))
        while side: do(side.pop(0))
def pack(dst,src,relu=False):
    for i in range(8): e(f"v_cvt_pk_bf16_f32 v{dst+i}, v{src+2*i}, v{src+2*i+1}")
    if relu:
        for i in range(8): e(f"v_pk_max_i16 v{dst+i}, v{dst+i}, 0")
def st2(tag,src,soff,off=0):
    for h in range(2): vm.op(tag,f"buffer_store_dwordx4 {r('v',src+4*h,4)}, v{vL16}, s[{sWS}:{sWS+3}], s{soff} offen offset:{off+h*1024} sc1")
e(f"s_cmp_eq_u32 s{sSP}, 1"); e("s_cbranch_scc1 L_sp")
main=L; L=[]
lab("L_sp"); e(f"s_cmp_eq_u32 s{sJ}, 8"); e("s_cbranch_scc1 L_av")
lab("L_ak"); vm.q=list(q0); passA("k")
e(f"v_lshlrev_b32 v{vT0}, 7, v{vL}"); e(f"v_cmp_gt_u32 vcc, 1, v{vL}"); e(f"v_mov_b32 v{vT2}, {WS_SZ}"); e(f"s_lshl_b32 s{sT0}, s{sTT}, 12")
e(f"v_cndmask_b32 v{vT2}, v{vT2}, v{vT0}, vcc")
e(f"buffer_store_dword v{vZ}, v{vT2}, s[{sWS}:{sWS+3}], s{sCNT} offen sc1")
e(f"v_mov_b32 v{vT0}, 0x3f803f80"); e(f"v_mov_b32 v{vT1}, 0x00003f80"); e("s_nop 7")
pack(PK,B0)
e(f"v_cndmask_b32 v{PK+6}, v{PK+6}, v{vT0}, s[{sUP}:{sUP+1}]"); e(f"v_cndmask_b32 v{PK+7}, v{PK+7}, v{vT1}, s[{sUP}:{sUP+1}]")
st2("a",PK,sT0)
for s_ in range(4): mfma(B0+16,GF+4*s_,96+4*s_,None,pb="a")
e(f"v_and_b32 v{vT1}, 31, v{vL}"); e(f"v_lshlrev_b32 v{vT1}, 2, v{vT1}")
e(f"s_lshl_b32 s{sT0}, s{sW}, 7"); e(f"s_add_u32 s{sT0}, s{sT0}, {WS_G}"); e(f"s_add_u32 s{sT0}, s{sT0}, s{sBK}"); e("s_nop 7")
e(f"v_mul_f32 v{vT0}, {f2u(-math.log2(math.e))}, v{B0+16}"); e(f"v_exp_f32 v{vT0}, v{vT0}"); e("s_nop 0"); e(f"v_add_f32 v{vT0}, 1.0, v{vT0}")
e(f"v_rcp_f32 v{vT0}, v{vT0}"); e("s_nop 0")
e(f"buffer_store_dword v{vT0}, v{vT1}, s[{sWS}:{sWS+3}], s{sT0} offen sc1")
e("s_branch L_akv")
lab("L_av"); vm.q=list(q0); passA("v")
e(f"v_and_b32 v{vT0}, 31, v{vL}"); e(f"v_mov_b32 v{vT1}, 0x3f803f80"); e(f"v_cmp_eq_u32 vcc, 28, v{vT0}"); e("s_nop 1")
e(f"v_cndmask_b32 v{vT1}, 0, v{vT1}, vcc"); e(f"v_cmp_gt_u32 vcc, 28, v{vT0}"); e("s_nop 7")
pack(PK,B0)
for i in range(8): e(f"v_cndmask_b32 v{PK+i}, v{vT1}, v{PK+i}, vcc")
e(f"s_lshl_b32 s{sT0}, s{sTT}, 12"); e(f"s_add_u32 s{sT0}, s{sT0}, 2048")
st2("a",PK,sT0)
lab("L_akv")
if not NE:
    for x in wql(): do(x)
def spin(name,tag,ld,target,two=False):
    def chk():
        if target is None: return f"  v_cmp_eq_u32 vcc, 1, v{vPOLL}\n  s_cmp_eq_u64 vcc, -1"
        return f"  v_readfirstlane_b32 s{sT0}, v{vPOLL}\n  s_cmp_ge_u32 s{sT0}, {target}"
    q_=list(vm.q)
    if two: e(f"s_cmp_lg_u32 s{sW}, 0"); e(f"s_cbranch_scc1 L_ok{name}")
    vm.wait(tag); L.append(chk()); e(f"s_cbranch_scc0 L_sp{name}"); lab(f"L_ok{name}")
    if two: vm.q=q_
    tail.append(f"""L_sp{name}:
  s_mov_b32 s69, 0
{f"  s_cmp_lg_u32 s{sW}, 0"+chr(10)+f"  s_cbranch_scc1 L_ok{name}" if two else ""}
L_sq{name}:
  s_sleep {opt("slp",4)}
  {ld}
  s_add_u32 s69, s69, 1
  s_waitcnt vmcnt(0)
  s_cmp_ge_u32 s69, 0x40000
  s_cbranch_scc1 L_ok{name}
{chk()}
  s_cbranch_scc0 L_sq{name}
  s_branch L_ok{name}""")
vm.wait("a")
if GFL==2: spin("0b","p0",ld0b,32,True)
e("s_barrier"); e(f"v_mov_b32 v{vT0}, 1"); e(f"v_lshlrev_b32 v{vT3}, 8, v0")
ld0=f"buffer_load_dword v{vPOLL}, v{vT8}, s[{sDBG}:{sDBG+3}], 0 offen sc1"
if GFL: vm.op("at",f"buffer_store_dword v{vONE}, v{vFS}, s[{sWS}:{sWS+3}], 0 offen sc1"); vm.op("p0",ld0) if GFL==1 else None
else: vm.op("at",f"buffer_atomic_add v{vT0}, v{vT3}, s[{sDBG}:{sDBG+3}], 0 offen sc0 sc1")
if opt("mw",3)==1:
    e(f"s_lshl_b32 s{sT0}, s{sTT}, 1"); e(f"s_add_u32 s{sT0}, s{sT0}, s{sTH}"); e(f"s_mul_i32 s{sT1}, s{sT0}, {98*128}"); e(f"s_mul_i32 s{sT0}, s{sT0}, {25*128}")
    e(f"v_lshlrev_b32 v{vT1}, 7, v{vL}"); e(f"v_add_u32 v{vT2}, s{sT1}, v{vT1}")
    vm.op("mw",f"global_load_dword v251, v{vT2}, s[{pW2s}:{pW2s+1}]")
    e(f"v_min_u32 v7, {33*128}, v{vT1}"); e(f"s_add_u32 s{sT1}, s{sT1}, 8192"); e(f"v_add_u32 v7, s{sT1}, v7"); e(f"v_min_u32 v{vT1}, {24*128}, v{vT1}")
    vm.op("mw",f"global_load_dword v251, v7, s[{pW2s}:{pW2s+1}]")
    vm.op("mw",f"buffer_load_dword v251, v{vT1}, s[{sWO}:{sWO+3}], s{sT0} offen")
ts("s",7); ts("m",1)
def gld(tag,dst,va,base,off,p="v"): vm.op(tag,f"global_load_dwordx4 {r(p,dst,4)}, v{va}, s[{base}:{base+1}] offset:{off} sc1")
def setb(b,src,off): return [f"s_add_u32 s{b}, s{src}, {off}", f"s_addc_u32 s{b+1}, s{src+1}, 0"]
def ldkv(kt,f): gld(f"kv{kt}",KV+16*(kt%4)+4*f,vL16,bKV,(kt%2)*4096-4096+f*1024)
def kvinit():
    o=[f"s_lshl_b32 s{sT1}, s{sW}, 16",f"s_add_u32 s{sT1}, s{sT1}, 4096"]+setb(bKV,pWS,f"s{sT1}")
    for kt in range(3):
        if kt==2: o+=setb(bKV,bKV,8192)
        o+=[(lambda kt=kt,f=f: ldkv(kt,f)) for f in range(4)]
    return o
ld1=f"buffer_load_dword v{vPOLL}, v{vT3}, s[{sDBG}:{sDBG+3}], 0 offen offset:128 sc1"
if GFL: ld1=f"buffer_load_dword v{vPOLL}, v{vFP}, s[{sWS}:{sWS+3}], 0 offen sc1"
PL=opt("pl",22); PC=opt("pc",24)
def h1c(ks,nm):
    if PW and ks==opt("pk",19): assert PL>ks; spin("0","p0",ld0,32,True)
    if ks==PC and not PW: spin(nm,"p1",ld1,None if GFL else 1,True)
def h1(ks,side,nm):
    if GFL and ks==opt("p0",9): side.insert(0,lambda: vm.op("p0",ld0))
    if ks==PL:
        if GFL and not PW: assert not side; spin("0","p0",ld0,32,True)
        side.insert(0,lambda: vm.op("p1",ld1))
    if ks==PC:
        assert not side
        if PW: spin(nm,"p1",ld1,None)
        ts("m",2)
        side+=[(lambda h=h: gld("kt",KT+4*h,vL16,pWS,h*1024)) for h in range(2)]+kvinit()
def trQ(c):
    for s_ in range(4):
        for h in range(2): lg.op(f"q{c}",f"ds_read_b64_tr_b16 {r('v',WF+16*(c%2)+4*s_+2*h,2)}, v{vTRB+2+s_//2} offset:{(s_%2)*RS+c*1024+h*256}")
if not NE: vm.wait("wq"); e("s_barrier")
trQ(0)
for c in range(7):
    lg.all()
    if c<6: trQ(c+1)
    if GFL and c==opt("ac",3)+2:
        if GFL==1: spin("0b","p0",ld0,32,True)
        if PW==1: e("s_barrier")
        vm.op("p1",ld1)
    if c==opt("ac",3) and not GFL:
        vm.wait("at"); e(f"v_readfirstlane_b32 s{sT0}, v{vT0}"); e(f"s_cmp_lg_u32 s{sT0}, 31"); e("s_cbranch_scc1 L_nogo")
        e(f"buffer_store_dword v{vONE}, v{vT3}, s[{sDBG}:{sDBG+3}], 0 offen offset:128 sc1")
        lab("L_nogo")
    for s_ in range(4): mfma(A0,WF+16*(c%2)+4*s_,16*c+4*s_,0 if c+s_==0 else None,pb="a")
if not GFL: vm.op("p1",ld1)
h1c(PC,"1b"); e("s_barrier"); side=[]; h1(PC,side,"1b")
while side: do(side.pop(0))
e("s_branch L_join"); tail.append("\n".join(L)); L=main; vm.q=qs
W0F=48; XF=144
def rdS(ks,t):
    c,s_=divmod(ks,4); sl=c%4
    if t==0:
        for h in range(2): lg.op(f"s{ks}",f"ds_read_b64_tr_b16 {r('v',W0F+4*(ks%2)+2*h,2)}, v{vTR0} offset:{(c if W7 else sl)*4096+s_*1024+h*256}")
    elif t<3: lg.op(f"s{ks}",f"ds_read_b128 {r('v',XF+8*(ks%2)+4*(t-1),4)}, v{(vXR,252)[t-1]+s_} offset:{sl*16384}")
    else:
        for h in range(2): lg.op(f"s{ks}",f"ds_read_b64_tr_b16 {r('v',WF+8*(ks%2)+4*(t-3)+2*h,2)}, v{vTRB+t-3} offset:{sl*16384+s_*2048+h*512}")
vm.wait("x0")
if GFL==2 and not ZE: zer("z2",z2)
ts("i"); ts("s",3); e("s_barrier"); e(f"v_lshlrev_b32 v{vT3}, 8, v0"); ts("m",1)
for t in range(5): rdS(0,t)
side=xdma(PD,True,True)
def warm():
    MW=opt("mw",3); n2,no,k=((50,38,3) if MW==2 else (19,5,1))
    o=[f"s_mov_b32 s4, s{pW2s}\n  s_and_b32 s5, s{pW2s+1}, 0xffff", f"s_mov_b32 s6, {1792*896}\n  s_mov_b32 s7, 0x20000",
       f"s_and_b32 s{sT0}, s{sTB}, 3\n  s_lshl2_add_u32 s{sT0}, s{sCB}, s{sT0}", f"s_mul_i32 s{sT0}, s{sT0}, 3\n  s_add_u32 s{sT0}, s{sT0}, s{sW}\n  s_sub_u32 s{sT0}, s{sT0}, 13"]
    if MW==3: o+=[f"s_lshr_b32 s{sT1}, s{sTB}, 2\n  s_lshl2_add_u32 s{sT0}, s{sT0}, s{sT1}\n  s_lshl1_add_u32 s{sT0}, s{sT0}, s{sTH}"]
    o+=[f"s_mul_i32 s{sT1}, s{sT0}, {n2*k*128}\n  s_mul_i32 s{sT0}, s{sT0}, {no*128}",
        f"s_cmp_eq_u32 s{sW}, 0\n  s_cselect_b32 s{sT1}, 0x4000000, s{sT1}\n  s_cselect_b32 s{sT0}, 0x4000000, s{sT0}",
        f"v_lshlrev_b32 v7, 7, v{vL}\n  v_mov_b32 v{vT2}, 0x4000000\n  v_cmp_gt_u32 vcc, {n2}, v{vL}\n  v_add_u32 v{vT0}, s{sT1}, v7\n  v_add_u32 v{vT1}, s{sT0}, v7\n  v_cndmask_b32 v{vT0}, v{vT2}, v{vT0}, vcc",
        f"v_cmp_gt_u32 vcc, {no}, v{vL}\n  s_mov_b32 s{sT0}, {n2*128}\n  s_mov_b32 s{sT1}, {n2*256}\n  v_cndmask_b32 v{vT1}, v{vT2}, v{vT1}, vcc"]
    o+=[(lambda x=x: vm.op("mw",f"buffer_load_dword v251, v{vT0}, s[4:7], {x} offen")) for x in ("0",f"s{sT0}",f"s{sT1}")[:k]]
    return o+[lambda: vm.op("mw",f"buffer_load_dword v251, v{vT1}, s[{sWO}:{sWO+3}], 0 offen")]
for ks in range(28):
    if ks==opt("mk",8) and opt("mw",3)>1: side+=warm()
    lg.wait(f"s{ks}")
    if (ks+1)%4==0 and ks<27:
        c=(ks+1)//4
        while side and c+PD<=7: do(side.pop(0))
        vm.wait(f"x{c}"); h1c(ks,"1"); e("s_barrier")
        if c in (1,3,5,6): ts("s",{1:4,3:5,5:6,6:7}[c])
        if c+PD<7: side+=xdma(c+PD,True,True)
    h1(ks,side,"1")
    for t in range(5):
        z=0 if ks==0 else None
        if t==0: mfma(A0,W0F+4*(ks%2),XF+8*(ks%2),z)
        else: mfma(B0+16*(t-1),WF+8*(ks%2)+4*((t-1)%2),XF+8*(ks%2)+4*((t-1)//2),z)
        if ks<27: rdS(ks+1,(3,4,0,1,2)[t])
        if side and (t>1 or ks>=PC): do(side.pop(0))
        if side and t==4: do(side.pop(0))
while side: do(side.pop(0))
lab("L_join")
ts("m",3); ts("s",8)
e(f"s_mul_i32 s{sT0}, s{sW}, {112*1024}"); e(f"s_lshl_b32 s{sT1}, s68, 12"); e(f"s_add_u32 s{sT0}, s{sT0}, s{sT1}"); e(f"s_add_u32 s{sT0}, s{sT0}, s{sBK}")
e(f"s_bitcmp0_b32 s{sW}, 0"); e(f"s_cselect_b32 s{sT1}, 1, -1"); e(f"s_mul_i32 s{sT1}, s{sT1}, {112*1024}"); e(f"s_add_u32 s{sT1}, s{sT1}, s{sT0}")
e(f"s_cmp_eq_u32 s{sSP}, 1"); e(f"s_cselect_b32 s{sT0}, {WS_SZ}, s{sT0}"); e(f"s_cselect_b32 s{sT1}, {WS_SZ}, s{sT1}")
e(f"s_mov_b32 s{sT2}, {f2u(math.log2(math.e)/math.sqrt(28))}")
for i in range(4): e(f"v_mov_b32 v{252+i}, -1")
e(f"s_lshl_b32 s68, s{sW}, 15"); e(f"s_lshl_b32 s69, s{sJ}, 11"); e(f"s_add_u32 s68, s68, s69"); e(f"s_add_u32 s68, s68, {WS_O}"); e(f"s_add_u32 s68, s68, s{sBK}")
for h in range(2): vm.op("h",f"buffer_store_dwordx4 v[252:255], v{vL16}, s[{sWS}:{sWS+3}], s68 offen offset:{h*1024} sc1")
for i in range(16): e(f"v_mul_f32 v{A0+i}, s{sT2}, v{A0+i}")
pack(Q,A0)
for i in (6,7): e(f"v_cndmask_b32 v{Q+i}, v{Q+i}, 0, s[{sUP}:{sUP+1}]")
def mins(m,q):
    e(f"v_sub_f32 v{m}, 0, v{m}"); e(f"v_and_b32 v{vT0}, 0xffff0000, v{m}"); e(f"v_sub_f32 v{m}, v{m}, v{vT0}")
    e(f"v_and_b32 v{vT1}, 0xffff0000, v{m}"); e(f"v_sub_f32 v{m}, v{m}, v{vT1}")
    e(f"v_lshrrev_b32 v{vT0}, 16, v{vT0}"); e(f"v_or_b32 v{vT0}, v{vT0}, v{vT1}"); e(f"v_lshrrev_b32 v{m}, 16, v{m}")
    e(f"v_cndmask_b32 v{q+6}, v{q+6}, v{vT0}, s[{sUP}:{sUP+1}]"); e(f"v_cndmask_b32 v{q+7}, v{q+7}, v{m}, s[{sUP}:{sUP+1}]")
def halfmax(m):
    e(f"v_mov_b32 v{vT0}, v{m}"); e("s_nop 1"); e(f"v_permlane32_swap_b32 v{vT0}, v{m}"); e("s_nop 1"); e(f"v_max_f32 v{m}, v{m}, v{vT0}")
pack(40,B0,True); st2("h",40,sT0)
vm.wait("kt")
mfma(S+16,KT,Q,0); mfma(S+16,KT+4,Q+4)
pack(48,B0+16,True); st2("h",48,sT0,2048)
e(f"s_lshl_b32 s{sT0}, s{sW}, 11"); e(f"s_add_u32 s{sT0}, s{sT0}, {QX}"); e(f"v_add_u32 v{vT3}, s{sT0}, v{vL16}")
e(f"v_max3_f32 v{vT2}, v{S+16}, v{S+17}, v{S+18}")
for i in range(3,15,2): e(f"v_max3_f32 v{vT2}, v{vT2}, v{S+16+i}, v{S+17+i}")
e(f"v_max_f32 v{vT2}, v{vT2}, v{S+31}")
halfmax(vT2); mins(vT2,Q)
e(f"ds_write_b128 v{vT3}, {r('v',Q,4)}"); e(f"ds_write_b128 v{vT3}, {r('v',Q+4,4)} offset:1024")
pack(56,B0+32,True); st2("h",56,sT1); pack(P,B0+48,True); st2("h",P,sT1,2048)
for i in range(1,4):
    e(f"s_add_u32 s{sT0}, s{sW}, {i}"); e(f"s_and_b32 s{sT0}, s{sT0}, 3"); e(f"s_lshl_b32 s{sT0}, s{sT0}, 11"); e(f"s_add_u32 s{sT0}, s{sT0}, {QX}")
    e(f"v_add_u32 v{vT0+i}, s{sT0}, v{vL16}")
e("s_waitcnt lgkmcnt(0)"); e("s_barrier")
for i in range(1,4):
    for h in range(2): e(f"ds_read_b128 {r('v',Q+8*i+4*h,4)}, v{vT0+i} offset:{h*1024}")
lab("L_attn")
for x in setb(4,pWS,f"s{sHO}")+setb(6,pW2s,f"s{sW2O}"): e(x)
def rotg(g,pr):
    if g==0: return [f"s_mov_b32 s{pr}, s{sROT}"]
    return [f"s_add_u32 s{pr}, s{pr}, 1", f"s_cmp_eq_u32 s{pr}, 7\n  s_cselect_b32 s{pr}, 0, s{pr}"]
def dmaw2(step):
    o=[f"s_add_u32 m0, s{sRW}, {(step%14)*2048}"]
    o+= rotg(step//4,8)+[f"s_mul_i32 s9, s8, {64*896}"]+setb(bW2,6,"s9") if step%4==0 else setb(bW2,bW2,32*896)
    return o+[(lambda i=i: vm.op(f"d{step+i//2}",f"global_load_lds_dwordx4 v{vD3+i}, s[{bW2}:{bW2+1}] offset:{i*1024}")) for i in range(4)]
def dmawo(step):
    hd=(step-28)//2
    o=[f"s_add_u32 m0, s{sRW}, {(step%14)*2048}", f"s_add_u32 s{sT2}, s{sWOO}, {hd*28*896}"]
    return o+[(lambda i=i: vm.op(f"d{step+i//2}",f"buffer_load_dwordx4 v{vD3+i}, s[{sWO}:{sWO+3}], s{sT2} offen offset:{i*1024} lds")) for i in range(4)]
def qk(t,h): mfma(S+16*(t%2),KV+16*((t//4)%4)+4*h,Q+8*(t%4)+4*h,0 if h==0 else None)
def pv(t,h): mfma(O+16*(t%4),KV+16*((t//4)%4)+8+4*h,P+4*h,0 if (t<4 and h==0) else None)
def grp(t,g):
    s=S+16*(t%2)+4*g
    for i in range(4): e(f"v_exp_f32 v{s+i}, v{s+i}")
    for i in range(2): e(f"v_cvt_pk_bf16_f32 v{P+2*g+i}, v{s+2*i}, v{s+2*i+1}")
vm.wait("kv0")
ts()
qk(0,0); qk(0,1)
e(f"v_and_b32 v{vT1}, 31, v{vL}"); e(f"v_lshlrev_b32 v{vT1}, 2, v{vT1}"); e(f"v_mul_u32_u24 v{vT2}, 896, v{vL}")
e(f"s_lshr_b32 s{sT0}, s{sW}, 1"); e(f"s_lshl_b32 s{sT0}, s{sT0}, 7"); e(f"v_xor_b32 v{vT0}, s{sT0}, v{vT1}"); e(f"v_xor_b32 v{vT3}, 0x80, v{vT0}")
e("s_waitcnt lgkmcnt(0)"); e("s_nop 3")
fixed={}
for kt in range(16):
    if kt+3<16:
        if (kt+3)%2==0:
            a=setb(bKV,bKV,8192); fixed[(4*kt,1)]=a[0]+"\n  "+a[1]
        for f in range(4): fixed[(4*kt+1,f)]=(lambda kt=kt,f=f: ldkv(kt+3,f))
    if kt<15: fixed[(4*kt+2,3)]=(lambda kt=kt: vm.wait(f"kv{kt+1}"))
ld2=f"buffer_load_dword v{vPOLL}, v{vZ}, s[{sWS}:{sWS+3}], s{sCNT} offen sc1"
SG=opt("sg",16); D0=opt("d0",4); H0=opt("h0",30)
fifo=[]
def carry(lst):
    o=[]; i=0
    while i<len(lst):
        if isinstance(lst[i],str) and i+1<len(lst) and isinstance(lst[i+1],str) and lst[i+1].startswith("s_addc"): o.append(lst[i]+"\n  "+lst[i+1]); i+=2
        else: o.append(lst[i]); i+=1
    return o
def pace(lst,t0,t1):
    n=sum(callable(x) for x in lst); o=[]; i=0
    for x in lst:
        if callable(x): o.append((4*t0+int(i*4*(t1-t0)/n),x)); i+=1
        else: o.append((0,x))
    return o
def hloads():
    o=[]
    for ks in range(28):
        if ks%4==0: o+=rotg(ks//4,10)+["s_lshl_b32 s11, s10, 12"]+setb(bH,4,"s11")
        for u in range(2): o.append(lambda ks=ks,u=u: gld(f"h{ks}",(ks*2+u)*4,vHU+u,bH,(ks%4)*1024,"a"))
    return o
def gloads():
    o=[f"s_add_u32 s{sT2}, s{sBK}, {WS_G}", f"s_lshl_b32 s{sT0}, s{sTH}, 8", f"s_add_u32 s{sT0}, s{sT0}, s{sT2}",
       f"s_lshl_b32 s{sT1}, s{sW}, 7", f"s_add_u32 s{sT1}, s{sT1}, s{sT2}"]
    o+=[lambda: vm.op("g",f"buffer_load_dword v{vGO}, v{vT1}, s[{sWS}:{sWS+3}], s{sT1} offen sc1")]
    o+=[(lambda u=u: vm.op("g",f"buffer_load_dword v{vG+u}, v{(vT0,vT3)[u]}, s[{sWS}:{sWS+3}], s{sT0} offen sc1")) for u in range(2)]
    return o
NP=6; NB=5
def wloc(st):
    if st<4: return ("a",224+8*st)
    if st<NP: return ("v",8+8*(st-4))
    if st<28: return ("v",WG+8*((st-NP)%NB))
    return ("a",8*(st-28))
def tr3(st,t,h):
    p,b_=wloc(st)
    lg.op(f"w{st}",f"ds_read_b64_tr_b16 {r(p,b_+4*t+2*h,2)}, v{vTR3+t} offset:{(st%14)*2048+h*1024}")
def early():
    o=[]
    for s2 in range(0,NP,2):
        y=[(lambda st=st,t=t,h=h: tr3(st,t,h)) for st in (s2,s2+1) for t in range(2) for h in range(2)]
        o+=[lambda s2=s2,y0=y[0]: (vm.wait(f"d{s2+1}"),y0())]+y[1:]
        x=carry(dmaw2(14+s2)); o+=x[:-4]+[lambda s2=s2,x0=x[-4]: (lg.wait(f"w{s2+1}"),x0())]+x[-3:]
    return o
for t in range(64):
    if t in (0,6,8,16,24,28,36,48,63): ts("a")
    if t==SG: fifo=[(0,lambda: vm.wait("h")), (0,lambda: vm.op("s2",f"buffer_atomic_add v{vONE}, v{vSIG}, s[{sWS}:{sWS+3}], s{sCNT} offen sc1"))]+fifo
    if t==D0: fifo+=pace(sum([carry(dmaw2(s)) for s in range(0,14,2)],[]),D0,opt("d1",17))+pace(early(),opt("d1",17),H0-1)
    if t==H0-5: fifo=[(0,lambda: vm.op("p2",ld2))]+fifo
    if t==H0: fifo+=pace([lambda: spin("2","p2",ld2,64)]+carry(hloads())+gloads(),H0,opt("h1",62))
    ms=[(lambda: qk(t+1,0)) if t<63 else None,(lambda: qk(t+1,1)) if t<63 else None,(lambda: pv(t-1,1)) if t>0 else None,lambda: pv(t,0)]
    for g in range(4):
        if ms[g]:
            ms[g]()
            if (t,g) in fixed: do(fixed[(t,g)])
            elif fifo and fifo[0][0]<=4*t+g:
                x=fifo.pop(0)[1]; do(x)
                if isinstance(x,str) and fifo and isinstance(fifo[0][1],str) and opt("m2",1): do(fifo.pop(0)[1])
        grp(t,g)
print("fifo left",len(fifo),file=sys.stderr)
while fifo: do(fifo.pop(0)[1])
e("s_nop 1"); pv(63,1)
ts()
red=[]
def A(x): red.append(x)
for i in range(1,4):
    e(f"s_add_u32 s{sT0}, s{sW}, {i}"); e(f"s_and_b32 s{sT0}, s{sT0}, 3"); e(f"s_mul_i32 s{sT0}, s{sT0}, 12288"); e(f"s_add_u32 s{sT0}, s{sT0}, {RED+(i-1)*4096}")
    e(f"v_add_u32 v{vT0+i}, s{sT0}, v{vL16}")
e(f"v_add_f32 v7, v{O+12}, v{O+28}"); e(f"v_add_f32 v7, v7, v{O+44}"); e(f"v_add_f32 v7, v7, v{O+60}")
e(f"v_cmp_ngt_f32 vcc, {f2u(2.0**40 if not FORCE_FB else -1.0)}, v7"); e(f"s_and_b64 vcc, vcc, s[{sUP}:{sUP+1}]")
e(f"s_cselect_b32 s{sT1}, 1.0, 0"); e(f"v_mov_b32 v7, s{sT1}")
for q in range(4): e(f"v_cndmask_b32 v{O+16*q+15}, v{O+16*q+15}, v7, s[{sUP}:{sUP+1}]")
e(f"s_mul_i32 s{sT0}, s{sW}, 12288"); e(f"s_add_u32 s{sT0}, s{sT0}, {RED}"); e(f"v_add_u32 v{vT0}, s{sT0}, v{vL16}")
for i in range(1,4):
    for q in range(4): A([lambda i=i,q=q: lg.op("rw",f"ds_write_b128 v{vT0+i}, {r('v',O+16*i+4*q,4)} offset:{q*1024}")])
A([lambda: lg.wait("rw"),"s_barrier"])
for i in range(0,12,2): A([(lambda i=i+k: lg.op(f"rr{i//4}",f"ds_read_b128 {r('v',O+16+4*i,4)}, v{vT0} offset:{i*1024}")) for k in range(2)])
V=[]
for i in range(3): V+=[lambda i=i: lg.wait(f"rr{i}")]+[f"v_add_f32 v{O+k}, v{O+k}, v{O+16+16*i+k}" for k in (12,15,13,14,*range(12))]
V+=[lambda: vm.wait("g"), f"v_readlane_b32 s{sT0}, v{O+15}, 32\n  v_rcp_f32 v{vT0}, v{O+12}\n  s_cmp_lg_u32 s{sT0}, 0\n  s_cbranch_scc1 L_fb\nL_fbok:",
    f"v_mul_f32 v{vT0}, v{vT0}, v{vGO}", f"v_mov_b32 v{vT1}, v{vT0}\n  s_nop 1\n  v_permlane32_swap_b32 v{vT0}, v{vT1}\n  s_nop 1"]
V+=[f"v_mul_f32 v{O+k}, v{O+k}, v{vT1}" for k in range(16)]
V+=[f"v_cvt_pk_bf16_f32 v{Q+i}, v{O+2*i}, v{O+2*i+1}" for i in range(8)]
V+=[f"v_cndmask_b32 v{Q+i}, v{Q+i}, 0, s[{sUP}:{sUP+1}]" for i in (6,7)]
V+=[lambda: st2("o",Q,68), lambda: ts()]
V+=[f"s_cmp_eq_u32 s{sCB}, 7\n  s_cbranch_scc1 L_idle"]
tail.append("L_idle:\n  s_waitcnt vmcnt(0) lgkmcnt(0)\n  s_branch L_fin")
FG=opt("fg",6)
for i in range(0,len(V),FG): A(V[i:i+FG])
O0=opt("o0",19); R0=opt("r0",3)
dq=[]; rq=[(st,t,h) for st in range(NP,36) for t in range(2) for h in range(2)]; nd=14+NP
old=[(lambda s=s,u=u: gld(f"o{u}",OF+(s*2+u)*4,vOU+u,bH,s*1024-4096)) for u in (1,0) for s in range(8)]
def canread(x,st):
    return f"d{x}" in vm.seen and (x-NB<max(st,NP) if x<28 else st>=8)
for st in range(28):
    if st in (0,4,10,16,22): ts("p")
    if st==O0: assert not red; dq=carry(setb(bH,pWS,f"s{sOO}"))+old+dq
    vm.wait(f"h{st}")
    assert not rq or rq[0][0]>st
    lg.wait(f"w{st}")
    k=0
    for u in (1,0):
        for t in (1,0):
            p,b_=wloc(st)
            mfma(AB+32*u+16*t,b_+4*t,(st*2+u)*4,0 if st==0 else None,pa=p,pb="a")
            for _ in range(0 if st<R0 else (1 if red else 2)):
                if rq and canread(rq[0][0],st) and (rq[0][0]<=st+2 or vm.n(f"d{rq[0][0]}") is None or vm.n(f"d{rq[0][0]}")>=opt("dl",8)):
                    vm.wait(f"d{rq[0][0]}"); tr3(*rq.pop(0))
            if nd<36 and (not rq or rq[0][0]>nd-13) and lg.n(f"w{nd-13}")!=0:
                x=carry(dmaw2(nd) if nd<28 else dmawo(nd)); dq+=x[:-4]+[lambda nd=nd: lg.wait(f"w{nd-13}")]+x[-4:]; nd+=2
            if red:
                for x in red.pop(0): do(x)
            for _ in range(1 if red else 2):
                if dq: do(dq.pop(0))
            k+=1
print("left dq",len(dq),"rq",len(rq),"nd",nd,file=sys.stderr); assert nd==36
while dq: do(dq.pop(0))
while rq: vm.wait(f"d{rq[0][0]}"); tr3(*rq.pop(0))
for u in range(2): e(f"v_sub_f32 v{vG+u}, 1.0, v{vG+u}")
for i in range(1,4):
    e(f"s_xor_b32 s{sT0}, s{sW}, {i}"); e(f"s_mul_i32 s{sT0}, s{sT0}, {RS}")
    e(f"v_add_u32 v{vT0+i}, s{sT0}, v{vL16}")
e(f"v_add_u32 v{vT0}, s{sRW}, v{vL16}"); e("s_mov_b32 s69, 0")
def scl(q): return [f"v_mul_f32 v{AB+16*q+k}, v{vG+q//2}, v{AB+16*q+k}" for k in range(16)]
ts("p")
for x in scl(3): e(x)
lab("L_ochk"); vm.all()
e(f"v_max3_u32 v7, v{OF}, v{OF+1}, v{OF+2}"); e(f"v_max3_u32 v{vPOLL}, v{OF+3}, v{OF+4}, v{OF+5}")
for i in range(6,62,4): e(f"v_max3_u32 v7, v7, v{OF+i}, v{OF+i+1}"); e(f"v_max3_u32 v{vPOLL}, v{vPOLL}, v{OF+i+2}, v{OF+i+3}")
e(f"v_max3_u32 v7, v7, v{OF+62}, v{OF+63}"); e(f"v_max_u32 v7, v7, v{vPOLL}"); e(f"v_cmp_eq_u32 vcc, -1, v7"); lg.all(); e("s_cbranch_vccnz L_oretry"); lab("L_ook")
main=L; L=[]; lab("L_oretry"); e("s_add_u32 s69, s69, 1"); e("s_cmp_ge_u32 s69, 0x10000"); e("s_cbranch_scc1 L_ook")
for x in old: x()
e("s_branch L_ochk"); tail.append("\n".join(L)); L=main; vm.q=[]
ts("mp")
fin=[f"v_and_b32 v7, 31, v{vL}",f"v_mul_u32_u24 v7, 896, v7",f"v_lshrrev_b32 v{vPOLL}, 5, v{vL}",f"v_lshl_add_u32 v7, v{vPOLL}, 4, v7",
     f"s_lshl_b32 s{sT0}, s{sTB}, 2",f"s_lshl_b32 s{sT1}, s{sTH}, 1",f"s_add_u32 s{sT0}, s{sT0}, s{sT1}",f"s_lshr_b32 s{sT1}, s{sW}, 1",f"s_add_u32 s{sT0}, s{sT0}, s{sT1}",
     f"s_mul_i32 s{sT0}, s{sT0}, {32*896}",f"s_lshl_b32 s{sT1}, s{sCB}, 7",f"s_add_u32 s{sT0}, s{sT0}, s{sT1}",f"s_and_b32 s{sT1}, s{sW}, 1",f"s_lshl_b32 s{sT1}, s{sT1}, 6",f"s_add_u32 s{sT0}, s{sT0}, s{sT1}"]
for q in (3,2,1,0):
    t,u=q%2,q//2
    sc=scl(q-1) if q>0 else []
    for s in range(8):
        mfma(AB+16*q,8*s+4*t,OF+(s*2+u)*4,None,pa="a")
        if q>0:
            if s>=3 and s<7 and q<3: lg.op("fw",f"ds_write_b128 v{vT0}, {r('v',AB+16*(q+1)+4*(s-3),4)} offset:{q*4096+(s-3)*1024}")
            for _ in range(4 if s<4 else 2):
                if s<4: e(sc.pop(0))
                elif fin: e(fin.pop(0))
        else:
            if s<2: e("s_nop 4")
            elif s<4:
                for k in range(2): lg.op("fw",f"ds_write_b128 v{vT0}, {r('v',AB+16+8*(s-2)+4*k,4)} offset:{(2*(s-2)+k)*1024}")
            elif s==5: lg.all(); e("s_barrier")
            if s>=5:
                for i in range(4*(s-5),4*(s-4)): lg.op(f"fr{i//4}",f"ds_read_b128 {r('v',WG+4*i,4)}, v{vT0+1+i//4} offset:{i*1024}")
ts("mp")
lg.wait("fr1")
for k in range(16): e(f"v_add_f32 v{WG+k}, v{WG+k}, v{WG+16+k}")
lg.wait("fr2")
for k in range(16): e(f"v_add_f32 v{AB+k}, v{AB+k}, v{WG+32+k}")
for k in range(16): e(f"v_add_f32 v{AB+k}, v{AB+k}, v{WG+k}")
pack(Q,AB); e("s_nop 1")
for p in range(2):
    e(f"v_permlane32_swap_b32 v{Q+4*p}, v{Q+4*p+2}"); e(f"v_permlane32_swap_b32 v{Q+4*p+1}, v{Q+4*p+3}")
    e(f"buffer_store_dwordx4 {r('v',Q+4*p,4)}, v7, s[{sOUT}:{sOUT+3}], s{sT0} offen offset:{p*32}")
ts("p"); lab("L_fin")
if TS:
    e("s_waitcnt vmcnt(0)"); ts(); e("s_waitcnt lgkmcnt(0)")
    for i in range(tsn[0]): e(f"v_writelane_b32 v7, s{sTS+2*i}, {i}")
    e(f"s_lshl_b32 s{sT0}, s91, 2"); e(f"s_add_u32 s{sT0}, s{sT0}, s{sW}"); e(f"s_lshl_b32 s{sT0}, s{sT0}, 8"); e(f"s_add_u32 s{sT0}, s{sT0}, {WS_T}")
    e(f"v_lshlrev_b32 v{vT0}, 2, v{vL}"); e(f"buffer_store_dword v7, v{vT0}, s[{sWS}:{sWS+3}], s{sT0} offen")
e("s_endpgm")
for t in tail: L.append(t)
lab("L_fb")
e(f"s_cmp_lg_u32 s{sPASS}, 0"); e("s_cbranch_scc1 L_fbok"); e(f"s_mov_b32 s{sPASS}, 1"); e("s_waitcnt vmcnt(0) lgkmcnt(0)"); e("s_nop 15")
M=P
for q in range(4):
    e(f"v_mov_b32 v{M+q}, 0xff800000")
    for i in (6,7): e(f"v_cndmask_b32 v{Q+8*q+i}, v{Q+8*q+i}, 0, s[{sUP}:{sUP+1}]")
e(f"s_lshl_b32 s{sT3}, s{sW}, 16"); e(f"s_mov_b32 s{sT2}, 16")
lab("L_fbl")
for h in range(2): e(f"buffer_load_dwordx4 {r('v',KT+4*h,4)}, v{vL16}, s[{sWS}:{sWS+3}], s{sT3} offen offset:{h*1024} sc1")
e("s_waitcnt vmcnt(0)")
for q in range(4):
    mfma(S,KT,Q+8*q,0); mfma(S,KT+4,Q+8*q+4); e("s_nop 15")
    for i in range(0,16,2): e(f"v_max3_f32 v{M+q}, v{M+q}, v{S+i}, v{S+i+1}")
e(f"s_add_u32 s{sT3}, s{sT3}, 4096"); e(f"s_sub_u32 s{sT2}, s{sT2}, 1"); e(f"s_cmp_lg_u32 s{sT2}, 0"); e("s_cbranch_scc1 L_fbl")
e("s_barrier")
e(f"v_lshlrev_b32 v{vT2}, 2, v{vL}")
for q in range(4):
    halfmax(M+q)
    e(f"s_add_u32 s{sT0}, s{sW}, {q}"); e(f"s_and_b32 s{sT0}, s{sT0}, 3"); e(f"s_lshl_b32 s{sT0}, s{sT0}, 10"); e(f"s_add_u32 s{sT0}, s{sT0}, {RED}")
    e(f"v_add_u32 v{S+q}, s{sT0}, v{vT2}"); e(f"ds_write_b32 v{S+q}, v{M+q} offset:{q*256}")
e("s_waitcnt lgkmcnt(0)"); e("s_barrier")
for q in range(4):
    for i in range(4): e(f"ds_read_b32 v{S+4+i}, v{S+q} offset:{i*256}")
    e("s_waitcnt lgkmcnt(0)"); e(f"v_max3_f32 v{M+q}, v{S+4}, v{S+5}, v{S+6}"); e(f"v_max_f32 v{M+q}, v{M+q}, v{S+7}")
    mins(M+q,Q+8*q)
for x in kvinit(): do(x)
e("s_waitcnt vmcnt(0)"); e("s_barrier"); e("s_branch L_attn")
lab("L_end"); e("s_endpgm")
L.append(f""".section .rodata,"a"
.p2align 6
.amdhsa_kernel {NAME}_kernel
  .amdhsa_next_free_vgpr 512
  .amdhsa_next_free_sgpr 102
  .amdhsa_accum_offset 256
  .amdhsa_group_segment_fixed_size 0
  .amdhsa_kernarg_size 96
  .amdhsa_user_sgpr_count 2
  .amdhsa_user_sgpr_kernarg_segment_ptr 1
  .amdhsa_system_sgpr_workgroup_id_x 1
.end_amdhsa_kernel""")
out=[a for a in sys.argv[1:] if a.endswith(".s")]
open(out[0] if out else f"cdna_kernels/{NAME}.s","w").write("\n".join(L)+"\n")
```

```python
import sys, math, struct
NAME="gated_mix__grouped_kv_mqa__dense_activation_relu__prompt"
TC = "tc" in sys.argv
TS = "ts" in sys.argv or TC
FORCE_FB = "fb" in sys.argv
import re
DROP=[a[5:] for a in sys.argv if a.startswith("drop=")]
L=[]
def e(s): L.append("  "+s)
def lab(s): L.append(s+":")
def f2u(x): return "0x%08x"%struct.unpack("<I",struct.pack("<f",x))[0]
class VM:
    def __init__(s): s.q=[]; s.seen=set()
    def op(s,tag,txt):
        s.seen.add(tag)
        for d in DROP:
            if re.fullmatch(d,tag): return
        e(txt); s.q.append(tag)
    def n(s,tag):
        assert tag in s.seen, tag
        idx=[i for i,t in enumerate(s.q) if t==tag]
        if not idx: return None
        return len(s.q)-1-idx[-1]
    def wait(s,tag):
        n=s.n(tag)
        if n is None: return
        n=min(n,63); e(f"s_waitcnt vmcnt({n})"); s.q=s.q[len(s.q)-n:] if n else []
    def all(s): e("s_waitcnt vmcnt(0)"); s.q=[]
vm=VM()
class LG(VM):
    def wait(s,tag):
        n=s.n(tag)
        if n is None: return
        n=min(n,15); e(f"s_waitcnt lgkmcnt({n})"); s.q=s.q[len(s.q)-n:] if n else []
    def all(s): e("s_waitcnt lgkmcnt(0)"); s.q=[]
lg=LG()
def opt(name,d):
    v=[a.split("=")[1] for a in sys.argv if a.startswith(name+"=")]
    return int(v[0]) if v else d
def r(p,a,n): return f"{p}[{a}:{a+n-1}]"
def mfma(d,a,b,c=None,pa="v",pb="v"):
    cc = "0" if c==0 and c is not None else r("v",d,16)
    e(f"v_mfma_f32_32x32x16_bf16 {r('v',d,16)}, {r(pa,a,4)}, {r(pb,b,4)}, {cc}")
WS_KV=0; WS_H=0; WS_O=0x70000; WS_G=0x90000; WS_C=0x91000; WS_PAD=0xa0000; WS_T=0x1800000; WS_SZ=0x2000000
RS=28672; W0B=4*RS; QX=147456; XA=0; WBA=65536; W0A=131072; RED=114688
sX,sW0,sWB,sWS,sWO,sOUT,sDBG=8,12,16,20,24,28,32
bKV,bH,bW2,pW2s=36,38,40,42
sTB,sJ,sW,sRW,sST0,sROT,sSTB,sCOLB,sT0,sT1,sT2,sT3,sTT,sPASS,sCNT,sSP,sHO,sW2O,sWOO,sOO,sTH,sCB=range(44,66)
sUP=66; sBK=2; sXB=93; sTS=70; sPR=3
tsn=[0]
TSET=[a[4:] for a in sys.argv if a.startswith("set=")]; TSET=TSET[0] if TSET else "m"
def ts(k="m",idx=None):
    if TS and (TSET in k or k=="*"):
        if idx is not None: tsn[0]=idx
        e(f"{'s_memtime' if TC else 's_memrealtime'} s[{sTS+2*tsn[0]}:{sTS+2*tsn[0]+1}]"); tsn[0]+=1
def srd(d,b,size):
    e(f"s_mov_b32 s{d}, s{b}"); e(f"s_and_b32 s{d+1}, s{b+1}, 0xffff")
    e(f"s_mov_b32 s{d+2}, {size}"); e(f"s_mov_b32 s{d+3}, 0x20000")
vL,vL16,vT0,vT1,vT2,vT3=1,2,3,4,5,6
vXA=8;vXR=12;vW0A=16;vWBA=17;vTR0=21;vTRB=22;vTR3=26;vPOLL=28;vGO=29;vG=30;vD3=240;vHU=244;vOU=246;vONE=248;vSIG=249;vZ=250
WF=32;PK=48;B0=64;A0=128
Q=32;O=64;S=128;P=160;KV=168;KT=232
OF=64;WG=192;AB=128
hdr=open(f"cdna_kernels/{NAME}.s.ref").read().split("; Override")[0]
L.append(hdr.rstrip())
L.append("; @launch grid=(256,1,1) block=(256,1,1) lds=163840")
L.append(f'.amdgcn_target "amdgcn-amd-amdhsa--gfx950"\n.text\n.globl {NAME}_kernel\n.p2align 8\n.type {NAME}_kernel,@function\n{NAME}_kernel:')
e("s_cmp_ge_u32 s2, 256"); e("s_cbranch_scc1 L_end")
ts("*")
e("s_load_dwordx16 s[8:23], s[0:1], 0"); e("s_load_dwordx8 s[92:99], s[0:1], 64")
e(f"v_lshrrev_b32 v{vT0}, 6, v0"); e(f"v_and_b32 v{vL}, 63, v0")
if opt("map",1):
    e(f"s_bfe_u32 s{sT0}, s2, 0x20001"); e(f"v_readfirstlane_b32 s{sW}, v{vT0}")
    e(f"s_lshl_b32 s{sT0}, s{sT0}, 2"); e(f"s_bfe_u32 s{sT1}, s2, 0x20003"); e(f"s_or_b32 s{sTB}, s{sT0}, s{sT1}")
    e(f"s_and_b32 s{sTH}, s2, 1"); e(f"s_lshr_b32 s{sCB}, s2, 5")
else:
    e(f"s_and_b32 s{sT0}, s2, 7"); e(f"v_readfirstlane_b32 s{sW}, v{vT0}")
    e(f"s_lshl_b32 s{sT0}, s{sT0}, 1"); e(f"s_bfe_u32 s{sT1}, s2, 0x10003"); e(f"s_or_b32 s{sTB}, s{sT0}, s{sT1}")
    e(f"s_bfe_u32 s{sTH}, s2, 0x10004"); e(f"s_lshr_b32 s{sCB}, s2, 5")
e(f"s_lshl_b32 s{sJ}, s{sTH}, 3"); e(f"s_or_b32 s{sJ}, s{sJ}, s{sCB}")
e(f"v_lshlrev_b32 v{vL16}, 4, v{vL}")
if TS: e("s_mov_b32 s91, s2")
e(f"s_add_u32 s{sBK}, s{sTB}, 1"); e(f"s_lshl_b32 s{sBK}, s{sBK}, 20")
e(f"s_mul_i32 s{sRW}, s{sW}, {RS}")
e(f"s_lshl_b32 s{sTT}, s{sTB}, 2"); e(f"s_add_u32 s{sTT}, s{sTT}, s{sW}")
def rot7():
    e(f"s_lshl_b32 s{sT0}, s{sTB}, 1"); e(f"s_add_u32 s{sT0}, s{sT0}, s{sJ}"); e(f"s_mul_i32 s{sT1}, s{sT0}, 37"); e(f"s_lshr_b32 s{sT1}, s{sT1}, 8")
    e(f"s_mul_i32 s{sT1}, s{sT1}, 7"); e(f"s_sub_u32 s{sROT}, s{sT0}, s{sT1}")
ROT=opt("rot",1)
if ROT==1: rot7()
if ROT==0: e(f"s_mov_b32 s{sROT}, 0")
if ROT==2: e(f"s_add_u32 s{sT0}, s{sTB}, s{sCB}"); e(f"s_and_b32 s{sT0}, s{sT0}, 1"); e(f"s_mul_i32 s{sROT}, s{sT0}, 3")
if ROT==3: e(f"s_add_u32 s{sT0}, s{sTB}, s{sCB}"); e(f"s_mul_i32 s{sT1}, s{sT0}, 43"); e(f"s_lshr_b32 s{sT1}, s{sT1}, 7"); e(f"s_mul_i32 s{sT1}, s{sT1}, 3"); e(f"s_sub_u32 s{sT0}, s{sT0}, s{sT1}"); e(f"s_lshl_b32 s{sROT}, s{sT0}, 1")
if ROT==4: e(f"s_and_b32 s{sT0}, s{sTB}, 1"); e(f"s_mul_i32 s{sROT}, s{sT0}, 3")
if ROT==5: e(f"s_and_b32 s{sT0}, s{sTB}, 3"); e(f"s_lshl_b32 s{sROT}, s{sT0}, 1")
if ROT==6: e(f"s_cmp_eq_u32 s{sCB}, 7"); e(f"s_cselect_b32 s{sROT}, 0, s{sCB}")
e(f"v_lshrrev_b32 v7, 3, v{vL}"); e(f"v_mul_u32_u24 v{vT0}, 896, v7")
e(f"v_and_b32 v{vT1}, 7, v{vL}"); e(f"v_lshrrev_b32 v{vT2}, 4, v{vL}"); e(f"v_xor_b32 v{vT2}, v{vT1}, v{vT2}")
e(f"v_lshl_add_u32 v{vXA}, v{vT2}, 4, v{vT0}")
e(f"v_xor_b32 v{vT2}, 4, v{vT2}"); e(f"v_lshl_add_u32 v{vXA+1}, v{vT2}, 4, v{vT0}")
e(f"v_add_u32 v{vXA+2}, {2*6144}, v{vXA}"); e(f"v_add_u32 v{vXA+3}, {3*6144}, v{vXA+1}"); e(f"v_add_u32 v{vXA+1}, 6144, v{vXA+1}")
e(f"v_bfe_u32 v{vT2}, v{vL}, 4, 1"); e(f"v_lshlrev_b32 v{vT2}, 2, v{vT2}"); e(f"v_xor_b32 v{vT2}, v{vT1}, v{vT2}"); e(f"v_lshlrev_b32 v{vWBA}, 4, v{vT2}")
e(f"v_add_u32 v{vD3}, v{vWBA}, v{vT0}")
e(f"v_lshrrev_b32 v{vT0}, 2, v{vL}"); e(f"v_and_b32 v{vT1}, 3, v{vL}"); e(f"v_lshlrev_b32 v{vT1}, 4, v{vT1}")
e(f"s_cmp_lt_u32 s{sCB}, 1"); e(f"s_cselect_b32 s{sSP}, 1, 0")
ts("i"); e("s_waitcnt lgkmcnt(0)")
ts("si")
pG,pOUT,pDBG,pWS=92,94,96,98
TW=opt("tw",1)
if TW&1:
    for p in (8,10,20,12,14,22,16,pOUT): e(f"s_load_dword s90, s[{p}:{p+1}], 0")
    e(f"s_load_dword s90, s[{pWS}:{pWS+1}], {WS_PAD}"); e(f"s_add_u32 s{sT0}, s{sBK}, {WS_PAD}"); e(f"s_load_dword s90, s[{pWS}:{pWS+1}], s{sT0}")
e("s_mov_b64 s[4:5], s[20:21]"); e("s_mov_b64 s[6:7], s[10:11]"); e(f"s_mov_b64 s[{pW2s}:{pW2s+1}], s[22:23]")
srd(sWO,16,401408)
e("s_mov_b64 s[100:101], s[12:13]"); e(f"s_mov_b32 s{sST0}, 56"); e(f"s_mov_b32 s{sT3}, 25088"); e(f"s_mov_b32 s{sT2}, 0")
e(f"s_cmp_eq_u32 s{sJ}, 0"); e("s_cbranch_scc1 L_w0done")
e("s_mov_b64 s[100:101], s[14:15]")
e(f"s_cmp_eq_u32 s{sJ}, 8"); e("s_cbranch_scc1 L_w0done")
e("s_mov_b64 s[100:101], s[6:7]"); e(f"s_mov_b32 s{sST0}, 896"); e(f"s_mov_b32 s{sT3}, 401408"); e(f"s_mul_i32 s{sT2}, s{sJ}, 56")
lab("L_w0done")
srd(sW0,100,f"s{sT3}"); srd(sX,8,1835008)
e(f"v_mad_u32_u24 v{vW0A}, v{vT0}, s{sST0}, v{vT1}")
e(f"s_lshl_b32 s{sST0}, s{sST0}, 4"); e(f"s_mul_i32 s{sT1}, s{sW}, s{sST0}"); e(f"s_add_u32 s{sT2}, s{sT2}, s{sT1}"); e(f"s_lshl_b32 s{sST0}, s{sST0}, 2")
e(f"s_mul_i32 s{sT3}, s{sTT}, {32*896}")
def rotc(c):
    if c==0: e(f"s_mov_b32 s{sPR}, s{sROT}")
    else: e(f"s_add_u32 s{sPR}, s{sPR}, 1"); e(f"s_cmp_eq_u32 s{sPR}, 7"); e(f"s_cselect_b32 s{sPR}, 0, s{sPR}")
e(f"s_lshl_b32 s{sT0}, s{sCB}, 1"); e(f"s_mul_i32 s{sT1}, s{sTH}, 14"); e(f"s_add_u32 s68, s{sT0}, s{sT1}"); e(f"s_sub_u32 s68, s68, 2")
e(f"s_lshr_b32 s{sT1}, s{sW}, 1"); e(f"s_add_u32 s{sT0}, s68, s{sT1}"); e(f"s_lshl_b32 s{sCOLB}, s{sT0}, 7")
e(f"s_and_b32 s{sT0}, s{sW}, 1"); e(f"s_add_u32 s68, s68, s{sT0}"); e(f"s_mul_i32 s{sT0}, s{sT0}, {32*3584}"); e(f"s_add_u32 s{sCOLB}, s{sCOLB}, s{sT0}")
srd(sWB,4,1605632); e(f"s_mov_b32 s{sSTB}, 3584")
e(f"v_mad_u32_u24 v{vWBA}, v7, s{sSTB}, v{vWBA}")
for i in range(1,4): e(f"v_add_u32 v{vWBA+i}, {8*3584-1024}, v{vWBA+i-1}")
e(f"s_mov_b64 s[100:101], s[{pG}:{pG+1}]")
PD=opt("pd",2)
e(f"s_lshl_b32 s92, s{sW}, 10"); e(f"s_lshl_b32 s{sXB}, s{sW}, 12")
MOD=('','sc1','nt','sc0 sc1','sc1 nt','sc0')
W7=opt("w7",0)
def xdma(c,sweep,wb):
    o=xdma_(c,sweep,wb)
    return o[:1]+o[3:] if sweep and PD<=c<W7 else o
def xdma_(c,sweep,wb):
    o=[lambda: rotc(c), f"s_mul_i32 s{sT1}, s{sPR}, s{sST0}\n  s_add_u32 m0, s92, {(W0A+(c if W7 else c%4)*4096) if sweep else (W0B+c*4096)}\n  s_add_u32 s{sT1}, s{sT1}, s{sT2}",
       lambda: vm.op(f"x{c}",f"buffer_load_dwordx4 v{vW0A}, s[{sW0}:{sW0+3}], s{sT1} offen {MOD[opt('qm',0)]} lds"),
       f"s_lshl_b32 s{sT1}, s{sPR}, 7\n  s_add_u32 m0, s{sXB}, {(c%4)*16384 if sweep else c*4096}\n  s_add_u32 s{sT1}, s{sT1}, s{sT3}"]
    o+=[(lambda i=i: vm.op(f"x{c}",f"buffer_load_dwordx4 v{vXA+i}, s[{sX}:{sX+3}], s{sT1} offen offset:{i*1024} {MOD[opt('xm',0)]} lds")) for i in range(4)]
    if wb:
        o+=[f"s_mul_i32 s{sT1}, s{sPR}, {64*3584}\n  s_add_u32 m0, s{sXB}, {WBA+(c%4)*16384}\n  s_add_u32 s{sT1}, s{sT1}, s{sCOLB}"]
        o+=[(lambda i=i: vm.op(f"x{c}",f"buffer_load_dwordx4 v{vWBA+i}, s[{sWB}:{sWB+3}], s{sT1} offen offset:{i*1024} {MOD[opt('xm',0)]} lds")) for i in range(4)]
    return o
def do(x):
    if callable(x): x()
    else: e(x)
tail=[]
ts("i")
e(f"s_cmp_eq_u32 s{sSP}, 1"); e("s_cbranch_scc1 L_i2")
main=L; L=[]; lab("L_i2"); e(f"s_mov_b32 s{sXB}, s{sRW}")
PA=opt("pa",3)
GI=QX+8192
srd(sWB,100,896); e(f"s_mov_b32 m0, {GI}"); e("s_movk_i32 s69, 896")
vm.op("gate",f"buffer_load_dwordx4 v{vL16}, s[{sWB}:{sWB+3}], 0 offen lds")
GFL=opt("gf",2); PW=opt("pw",1)*GFL; NR=opt("nr",32); FL=0x80000; NZ=32//max(GFL,1); vFP=160; vFS=161; vT8=162
for c in range(-1,PA):
    for x in (xdma(c,False,False) if c>=0 else []): do(x)
    if GFL==1 and c==opt("zc",0):
        srd(sWS,pWS,WS_SZ); e(f"s_lshl1_add_u32 s{sT1}, s{sTB}, s{sTH}"); e(f"s_lshl2_add_u32 s{sT1}, s{sT1}, {FL}")
        e(f"v_mul_u32_u24 v{vFS}, 0x1100, v0"); e(f"v_add_u32 v{vFS}, s{sT1}, v{vFS}"); e(f"v_mov_b32 v{vFP}, {WS_SZ}"); e(f"v_cmp_gt_u32 vcc, {NR}, v0")
        e(f"v_mov_b32 v{vT8+1}, 0"); e(f"v_cndmask_b32 v{vFS}, v{vFP}, v{vFS}, vcc")
        vm.op("z",f"buffer_store_dword v{vT8+1}, v{vFS}, s[{sWS}:{sWS+3}], 0 offen sc1")
srd(sWB,6,401408); e(f"v_mad_u32_u24 v{vWBA}, v{vT0}, s69, v{vT1}")
e(f"s_mul_i32 s{sCOLB}, s{sJ}, 56"); e(f"s_mul_i32 s{sT1}, s{sW}, {16*896}"); e(f"s_add_u32 s{sCOLB}, s{sCOLB}, s{sT1}")
e("s_branch L_i3"); tail.append("\n".join(L)); L=main; q0=list(vm.q)+["pf"]; vm.q=[]
def zer(nm,f):
    global L
    e(f"s_lshl2_add_u32 s{sT1}, s{sJ}, s{sW}"); e(f"s_cmp_eq_u32 s{sT1}, 28"); e(f"s_cbranch_scc1 L_{nm}"); lab(f"L_{nm}r")
    m=L; L=[]; lab(f"L_{nm}"); f(); e(f"s_branch L_{nm}r"); tail.append("\n".join(L)); L=m
def z1():
    srd(sWS,pWS,WS_SZ); e(f"s_mul_i32 s{sT1}, s{sTB}, 0x2200"); e(f"s_add_u32 s{sT1}, s{sT1}, {FL}")
    e(f"v_lshrrev_b32 v{vFS}, 5, v0"); e(f"v_mul_u32_u24 v{vFS}, {0x1100-128}, v{vFS}"); e(f"v_lshl_add_u32 v{vFS}, v0, 2, v{vFS}"); e(f"v_mov_b32 v{vT8+1}, 0")
    e(f"buffer_store_dword v{vT8+1}, v{vFS}, s[{sWS}:{sWS+3}], s{sT1} offen sc1")
ZE=opt("ze",1)
def z2():
    if ZE: srd(sDBG,pDBG,256); e(f"v_mov_b32 v{vONE}, 1"); e(f"s_waitcnt vmcnt({len(vm.q)})")
    e(f"v_lshlrev_b32 v{vT8+2}, 7, v0"); e(f"buffer_atomic_add v{vONE}, v{vT8+2}, s[{sDBG}:{sDBG+3}], 0 offen sc1")
if GFL==2: assert NR==32; zer("z1",z1)
for c in range(PD):
    for i,x in enumerate(xdma(c,True,True)):
        do(x)
        if c==0 and i in (2,7): ts("i")
    ts("i")
    if GFL==2 and ZE==c+1: zer("z2",z2)
if W7>PD:
    e(f"s_mov_b32 s69, s{sPR}")
    for c in range(PD,W7):
        for x in xdma_(c,True,True)[:3]: do(x)
    e(f"s_mov_b32 s{sPR}, s69")
lab("L_i3")
e("s_getpc_b64 s[4:5]"); lab("L_pc")
e(f"s_mul_i32 s{sT1}, s{sW}, 8192"); e(f"v_lshlrev_b32 v{vT2}, 7, v{vL}"); e(f"v_add_u32 v{vT2}, s{sT1}, v{vT2}")
e(f"v_min_u32 v{vT2}, L_end-L_pc, v{vT2}")
vm.op("pf",f"global_load_dword v{vPOLL}, v{vT2}, s[4:5]")
qs=list(vm.q)
srd(sWS,pWS,WS_SZ); srd(sOUT,pOUT,1835008); srd(sDBG,pDBG,256)
e(f"s_mov_b32 s{sUP}, 0"); e(f"s_mov_b32 s{sUP+1}, -1")
for i in range(1,4): e(f"v_add_u32 v{vD3+i}, {6144*i}, v{vD3}")
e(f"v_and_b32 v{vT0}, 31, v{vL}"); e(f"v_lshrrev_b32 v{vT1}, 5, v{vL}"); e(f"v_bfe_u32 v{vT2}, v{vL}, 1, 3")
e(f"v_xor_b32 v{vT2}, v{vT1}, v{vT2}"); e(f"v_lshlrev_b32 v{vT0}, 7, v{vT0}"); e(f"v_add_u32 v{vT0}, s{sXB}, v{vT0}")
for s in range(4):
    e(f"v_xor_b32 v{vT3}, {2*s}, v{vT2}"); e(f"v_lshl_add_u32 v{vXR+s}, v{vT3}, 4, v{vT0}"); e(f"v_xor_b32 v{252+s}, 0x1000, v{vXR+s}")
e(f"v_bfe_u32 v{vT0}, v{vL}, 2, 2"); e(f"v_bfe_u32 v{vT2}, v{vL}, 4, 1"); e(f"v_and_b32 v{vT3}, 3, v{vL}")
e(f"v_lshlrev_b32 v{vT3}, 3, v{vT3}"); e(f"v_lshl_add_u32 v{vT3}, v{vT2}, 5, v{vT3}")
e(f"v_lshl_add_u32 v{vT2}, v{vT1}, 3, v{vT0}"); e(f"v_lshl_add_u32 v{vTR0}, v{vT2}, 6, v{vT3}"); e(f"s_cmp_eq_u32 s{sSP}, 1"); e(f"s_cselect_b32 s{sT0}, {W0B-W0A}, 0"); e(f"s_add_u32 s{sT0}, s{sT0}, {W0A}"); e(f"v_mov_b32 v{vTRB+2}, v{vTR0}"); e(f"v_add_u32 v{vTRB+3}, {2*RS}, v{vTR0}"); e(f"v_add_u32 v{vTR0}, s{sT0}, v{vTR0}")
e(f"s_and_b32 s{sT1}, s{sW}, 1"); e(f"s_lshl_b32 s{sT1}, s{sT1}, 13"); e(f"s_add_u32 s{sT1}, s{sT1}, {WBA}")
e(f"v_bfe_u32 v7, v{vL}, 3, 1"); e(f"v_lshl_add_u32 v{vT3}, v7, 6, v{vT3}")
e(f"v_lshl_add_u32 v{vTRB}, v{vT2}, 7, v{vT3}"); e(f"v_add_u32 v{vTRB}, s{sT1}, v{vTRB}"); e(f"v_xor_b32 v{vTRB+1}, 64, v{vTRB}")
e(f"v_lshl_add_u32 v{vT2}, v{vT1}, 2, v{vT0}"); e(f"v_lshl_add_u32 v{vT3}, v{vT2}, 7, v{vT3}")
e(f"s_and_b32 s{sT0}, s{sW}, 1"); e(f"s_lshl_b32 s{sT0}, s{sT0}, 6"); e(f"v_xor_b32 v{vT3}, s{sT0}, v{vT3}"); e(f"v_add_u32 v{vTR3}, s{sRW}, v{vT3}")
e(f"v_xor_b32 v{vT3}, 64, v{vT3}"); e(f"v_add_u32 v{vTR3+1}, s{sRW}, v{vT3}")
e(f"s_lshr_b32 s{sT0}, s{sW}, 1"); e(f"s_xor_b32 s{sT1}, s{sT0}, 1")
for u in range(2):
    e(f"s_mul_i32 s69, s{sT0+u}, {112*1024}"); e(f"v_add_u32 v{vHU+u}, s69, v{vL16}"); e(f"s_lshl_b32 s69, s{sT0+u}, 15"); e(f"v_add_u32 v{vOU+u}, s69, v{vL16}")
e(f"v_mov_b32 v{vONE}, 1"); e(f"v_lshlrev_b32 v{vSIG}, 25, v{vL}"); e(f"v_mov_b32 v{vZ}, 0")
e(f"s_add_u32 s{sCNT}, s{sBK}, {WS_C}")
e(f"s_lshl_b32 s{sT0}, s{sTH}, 1")
e(f"s_mul_i32 s{sHO}, s{sT0}, {112*1024}"); e(f"s_mul_i32 s{sT1}, s{sW}, {28*1024}"); e(f"s_add_u32 s{sHO}, s{sHO}, s{sT1}"); e(f"s_add_u32 s{sHO}, s{sHO}, s{sBK}")
e(f"s_lshl_b32 s{sOO}, s{sT0}, 15"); e(f"s_lshl_b32 s{sT1}, s{sW}, 13"); e(f"s_add_u32 s{sOO}, s{sOO}, s{sT1}"); e(f"s_add_u32 s{sOO}, s{sOO}, {WS_O+4096}"); e(f"s_add_u32 s{sOO}, s{sOO}, s{sBK}")
e(f"s_min_u32 s{sT1}, s{sCB}, 6"); e(f"s_lshl_b32 s{sT1}, s{sT1}, 7"); e(f"s_mul_i32 s{sW2O}, s{sW}, {448*896}"); e(f"s_add_u32 s{sW2O}, s{sW2O}, s{sT1}")
e(f"s_mul_i32 s{sWOO}, s{sW}, {112*896}"); e(f"s_add_u32 s{sWOO}, s{sWOO}, s{sT1}")
e(f"s_mov_b32 s{sPASS}, 0")
if GFL:
    e(f"s_lshl1_add_u32 s{sT1}, s{sTB}, s{sTH}"); e(f"s_lshl_b32 s{sT0}, s{sCB}, 5"); e(f"s_add_u32 s{sT1}, s{sT1}, s{sT0}"); e(f"s_and_b32 s{sT1}, s{sT1}, {NR-1}")
    e(f"s_mul_i32 s{sT1}, s{sT1}, 0x1100"); e(f"s_add_u32 s{sT1}, s{sT1}, {FL}");
    if not PW: e(f"s_cmp_eq_u32 s{sW}, 0"); e(f"s_cselect_b32 s{sT1}, s{sT1}, {WS_SZ}")
    e(f"v_and_b32 v{vFP}, 31, v0"); e(f"v_lshl_add_u32 v{vFP}, v{vFP}, 2, s{sT1}"); e(f"v_lshlrev_b32 v{vT8}, 8, v0")
if TW&2:
    e(f"s_add_u32 s{sT0}, s{sBK}, {WS_PAD}"); e(f"s_mov_b32 s{sT1}, {WS_PAD}")
    for x in (f"s[{sWS}:{sWS+3}], s{sT0}",f"s[{sWS}:{sWS+3}], s{sT1}",f"s[{sWO}:{sWO+3}], 0",f"s[{sOUT}:{sOUT+3}], 0",f"s[{sDBG}:{sDBG+3}], 0"): e(f"buffer_load_dword v251, v{vSIG}, {x} offen offset:128 sc1")
    e(f"global_load_dword v251, v{vZ}, s[{pW2s}:{pW2s+1}]")
    q0+=["tw"]*6; qs+=["tw"]*6
ts("si")
def wql():
    o=[]
    for c in range(7):
        o+=[(lambda c=c: rotc(c)), f"s_mul_i32 s{sT1}, s{sPR}, {64*896}\n  s_add_u32 m0, s{sRW}, {c*1024}\n  s_add_u32 s{sT1}, s{sT1}, s{sCOLB}",
            lambda: vm.op("wq",f"buffer_load_dwordx4 v{vWBA}, s[{sWB}:{sWB+3}], s{sT1} offen lds")]
    return o
GF=96; NE=opt("ne",1)
ld0b=f"buffer_load_dword v{vPOLL}, v{vT8}, s[{sDBG}:{sDBG+3}], 0 offen offset:128 sc1"
def passA(kind):
    if GFL==2:
        e(f"s_lshl1_add_u32 s{sT1}, s{sTB}, s{sTH}"); e(f"s_lshl2_add_u32 s{sT1}, s{sT1}, {FL}")
        e(f"v_mul_u32_u24 v{vFS}, 0x1100, v0"); e(f"v_add_u32 v{vFS}, s{sT1}, v{vFS}"); e(f"v_mov_b32 v{vT8+1}, {WS_SZ}"); e(f"v_cmp_gt_u32 vcc, {NR}, v0")
        e("s_nop 0"); e(f"v_cndmask_b32 v{vFS}, v{vT8+1}, v{vFS}, vcc")
    e(f"v_lshrrev_b32 v{vT2}, 5, v{vL}"); e(f"v_lshlrev_b32 v{vT2}, 4, v{vT2}"); e(f"v_add_u32 v{vT2}, {GI}, v{vT2}"); e(f"s_mov_b32 s{sSTB}, s{sROT}")
    vm.wait("gate") if PA<2 else None
    for c in range(8):
        side=[]
        if c<7:
            e(f"s_lshl_b32 s69, s{sSTB}, 7"); e(f"v_add_u32 v7, s69, v{vT2}"); e(f"s_add_u32 s{sSTB}, s{sSTB}, 1"); e(f"s_cmp_eq_u32 s{sSTB}, 7"); e(f"s_cselect_b32 s{sSTB}, 0, s{sSTB}")
            vm.wait(f"x{c}")
            if GFL==2 and c==opt("zp",5): vm.op("p0",ld0b)
            if GFL==1 and c==opt("zc",0)+1: vm.wait("z"); vm.op("za",f"buffer_atomic_add v{vONE}, v{vT8}, s[{sDBG}:{sDBG+3}], 0 offen sc1")
            if c in (0,1,3,6): ts("s",{0:3,1:4,3:5,6:6}[c])
            if c: lg.all()
            for s in range(4): lg.op(f"x{c}",f"ds_read_b128 {r('a',16*c+4*s,4)}, v{vXR+s} offset:{c*4096}")
            e("s_barrier")
            for s in range(4):
                for h in range(2): lg.op("w",f"ds_read_b64_tr_b16 {r('v',WF+16*(c%2)+4*s+2*h,2)}, v{vTR0} offset:{(4*c+s)*1024+h*256}")
            if kind=="k": side=[(lambda s=s: lg.op("w",f"ds_read_b128 {r('v',GF+16*(c%2)+4*s,4)}, v7 offset:{s*32}")) for s in range(4)]
            if c+PA<7: side+=xdma(c+PA,False,False)
            elif c==7-PA and NE: side+=wql()
        else: lg.all()
        for s in range(4 if c else 0):
            z=0 if (c==1 and s==0) else None; w=WF+16*((c-1)%2)+4*s
            if kind=="v": mfma(B0,16*(c-1)+4*s,w,z,pa="a")
            else: mfma(B0,w,16*(c-1)+4*s,z,pb="a")
            for _ in range(2):
                if side: do(side.pop(0))
            if kind=="k" and c<7: mfma(B0+16,GF+16*((c-1)%2)+4*s,16*(c-1)+4*s,z,pb="a")
            if side: do(side.pop(0))
        while side: do(side.pop(0))
def pack(dst,src,relu=False):
    for i in range(8): e(f"v_cvt_pk_bf16_f32 v{dst+i}, v{src+2*i}, v{src+2*i+1}")
    if relu:
        for i in range(8): e(f"v_pk_max_i16 v{dst+i}, v{dst+i}, 0")
def st2(tag,src,soff,off=0):
    for h in range(2): vm.op(tag,f"buffer_store_dwordx4 {r('v',src+4*h,4)}, v{vL16}, s[{sWS}:{sWS+3}], s{soff} offen offset:{off+h*1024} sc1")
e(f"s_cmp_eq_u32 s{sSP}, 1"); e("s_cbranch_scc1 L_sp")
main=L; L=[]
lab("L_sp"); e(f"s_cmp_eq_u32 s{sJ}, 8"); e("s_cbranch_scc1 L_av")
lab("L_ak"); vm.q=list(q0); passA("k")
e(f"v_lshlrev_b32 v{vT0}, 7, v{vL}"); e(f"v_cmp_gt_u32 vcc, 1, v{vL}"); e(f"v_mov_b32 v{vT2}, {WS_SZ}"); e(f"s_lshl_b32 s{sT0}, s{sTT}, 12")
e(f"v_cndmask_b32 v{vT2}, v{vT2}, v{vT0}, vcc")
e(f"buffer_store_dword v{vZ}, v{vT2}, s[{sWS}:{sWS+3}], s{sCNT} offen sc1")
e(f"v_mov_b32 v{vT0}, 0x3f803f80"); e(f"v_mov_b32 v{vT1}, 0x00003f80"); e("s_nop 7")
pack(PK,B0)
e(f"v_cndmask_b32 v{PK+6}, v{PK+6}, v{vT0}, s[{sUP}:{sUP+1}]"); e(f"v_cndmask_b32 v{PK+7}, v{PK+7}, v{vT1}, s[{sUP}:{sUP+1}]")
st2("a",PK,sT0)
for s_ in range(4): mfma(B0+16,GF+4*s_,96+4*s_,None,pb="a")
e(f"v_and_b32 v{vT1}, 31, v{vL}"); e(f"v_lshlrev_b32 v{vT1}, 2, v{vT1}")
e(f"s_lshl_b32 s{sT0}, s{sW}, 7"); e(f"s_add_u32 s{sT0}, s{sT0}, {WS_G}"); e(f"s_add_u32 s{sT0}, s{sT0}, s{sBK}"); e("s_nop 7")
e(f"v_mul_f32 v{vT0}, {f2u(-math.log2(math.e))}, v{B0+16}"); e(f"v_exp_f32 v{vT0}, v{vT0}"); e("s_nop 0"); e(f"v_add_f32 v{vT0}, 1.0, v{vT0}")
e(f"v_rcp_f32 v{vT0}, v{vT0}"); e("s_nop 0")
e(f"buffer_store_dword v{vT0}, v{vT1}, s[{sWS}:{sWS+3}], s{sT0} offen sc1")
e("s_branch L_akv")
lab("L_av"); vm.q=list(q0); passA("v")
e(f"v_and_b32 v{vT0}, 31, v{vL}"); e(f"v_mov_b32 v{vT1}, 0x3f803f80"); e(f"v_cmp_eq_u32 vcc, 28, v{vT0}"); e("s_nop 1")
e(f"v_cndmask_b32 v{vT1}, 0, v{vT1}, vcc"); e(f"v_cmp_gt_u32 vcc, 28, v{vT0}"); e("s_nop 7")
pack(PK,B0)
for i in range(8): e(f"v_cndmask_b32 v{PK+i}, v{vT1}, v{PK+i}, vcc")
e(f"s_lshl_b32 s{sT0}, s{sTT}, 12"); e(f"s_add_u32 s{sT0}, s{sT0}, 2048")
st2("a",PK,sT0)
lab("L_akv")
if not NE:
    for x in wql(): do(x)
def spin(name,tag,ld,target,two=False):
    def chk():
        if target is None: return f"  v_cmp_eq_u32 vcc, 1, v{vPOLL}\n  s_cmp_eq_u64 vcc, -1"
        return f"  v_readfirstlane_b32 s{sT0}, v{vPOLL}\n  s_cmp_ge_u32 s{sT0}, {target}"
    q_=list(vm.q)
    if two: e(f"s_cmp_lg_u32 s{sW}, 0"); e(f"s_cbranch_scc1 L_ok{name}")
    vm.wait(tag); L.append(chk()); e(f"s_cbranch_scc0 L_sp{name}"); lab(f"L_ok{name}")
    if two: vm.q=q_
    tail.append(f"""L_sp{name}:
  s_mov_b32 s69, 0
{f"  s_cmp_lg_u32 s{sW}, 0"+chr(10)+f"  s_cbranch_scc1 L_ok{name}" if two else ""}
L_sq{name}:
  s_sleep {opt("slp",4)}
  {ld}
  s_add_u32 s69, s69, 1
  s_waitcnt vmcnt(0)
  s_cmp_ge_u32 s69, 0x40000
  s_cbranch_scc1 L_ok{name}
{chk()}
  s_cbranch_scc0 L_sq{name}
  s_branch L_ok{name}""")
vm.wait("a")
if GFL==2: spin("0b","p0",ld0b,NZ,True)
e("s_barrier"); e(f"v_mov_b32 v{vT0}, 1"); e(f"v_lshlrev_b32 v{vT3}, 8, v0")
ld0=f"buffer_load_dword v{vPOLL}, v{vT8}, s[{sDBG}:{sDBG+3}], 0 offen sc1"
if GFL: vm.op("at",f"buffer_store_dword v{vONE}, v{vFS}, s[{sWS}:{sWS+3}], 0 offen sc1"); vm.op("p0",ld0) if GFL==1 else None
else: vm.op("at",f"buffer_atomic_add v{vT0}, v{vT3}, s[{sDBG}:{sDBG+3}], 0 offen sc0 sc1")
if opt("mw",3)==1:
    e(f"s_lshl_b32 s{sT0}, s{sTT}, 1"); e(f"s_add_u32 s{sT0}, s{sT0}, s{sTH}"); e(f"s_mul_i32 s{sT1}, s{sT0}, {98*128}"); e(f"s_mul_i32 s{sT0}, s{sT0}, {25*128}")
    e(f"v_lshlrev_b32 v{vT1}, 7, v{vL}"); e(f"v_add_u32 v{vT2}, s{sT1}, v{vT1}")
    vm.op("mw",f"global_load_dword v251, v{vT2}, s[{pW2s}:{pW2s+1}]")
    e(f"v_min_u32 v7, {33*128}, v{vT1}"); e(f"s_add_u32 s{sT1}, s{sT1}, 8192"); e(f"v_add_u32 v7, s{sT1}, v7"); e(f"v_min_u32 v{vT1}, {24*128}, v{vT1}")
    vm.op("mw",f"global_load_dword v251, v7, s[{pW2s}:{pW2s+1}]")
    vm.op("mw",f"buffer_load_dword v251, v{vT1}, s[{sWO}:{sWO+3}], s{sT0} offen")
ts("s",7); ts("m",1)
def gld(tag,dst,va,base,off,p="v"): vm.op(tag,f"global_load_dwordx4 {r(p,dst,4)}, v{va}, s[{base}:{base+1}] offset:{off} sc1")
def setb(b,src,off): return [f"s_add_u32 s{b}, s{src}, {off}", f"s_addc_u32 s{b+1}, s{src+1}, 0"]
def ldkv(kt,f): gld(f"kv{kt}",KV+16*(kt%4)+4*f,vL16,bKV,(kt%2)*4096-4096+f*1024)
def kvinit():
    o=[f"s_lshl_b32 s{sT1}, s{sW}, 16",f"s_add_u32 s{sT1}, s{sT1}, 4096"]+setb(bKV,pWS,f"s{sT1}")
    for kt in range(3):
        if kt==2: o+=setb(bKV,bKV,8192)
        o+=[(lambda kt=kt,f=f: ldkv(kt,f)) for f in range(4)]
    return o
ld1=f"buffer_load_dword v{vPOLL}, v{vT3}, s[{sDBG}:{sDBG+3}], 0 offen offset:128 sc1"
if GFL: ld1=f"buffer_load_dword v{vPOLL}, v{vFP}, s[{sWS}:{sWS+3}], 0 offen sc1"
PL=opt("pl",22); PC=opt("pc",24)
def h1c(ks,nm):
    if PW and ks==opt("pk",19): assert PL>ks; spin("0","p0",ld0,NZ,True)
    if ks==PC and not PW: spin(nm,"p1",ld1,None if GFL else 1,True)
def h1(ks,side,nm):
    if GFL and ks==opt("p0",9): side.insert(0,lambda: vm.op("p0",ld0))
    if ks==PL:
        if GFL and not PW: assert not side; spin("0","p0",ld0,NZ,True)
        side.insert(0,lambda: vm.op("p1",ld1))
    if ks==PC:
        assert not side
        if PW: spin(nm,"p1",ld1,None)
        ts("m",2)
        side+=[(lambda h=h: gld("kt",KT+4*h,vL16,pWS,h*1024)) for h in range(2)]+kvinit()
def trQ(c):
    for s_ in range(4):
        for h in range(2): lg.op(f"q{c}",f"ds_read_b64_tr_b16 {r('v',WF+16*(c%2)+4*s_+2*h,2)}, v{vTRB+2+s_//2} offset:{(s_%2)*RS+c*1024+h*256}")
if not NE: vm.wait("wq"); e("s_barrier")
trQ(0)
for c in range(7):
    lg.all()
    if c<6: trQ(c+1)
    if GFL and c==opt("ac",3)+2:
        if GFL==1: spin("0b","p0",ld0,NZ,True)
        if PW==1: e("s_barrier")
        vm.op("p1",ld1)
    if c==opt("ac",3) and not GFL:
        vm.wait("at"); e(f"v_readfirstlane_b32 s{sT0}, v{vT0}"); e(f"s_cmp_lg_u32 s{sT0}, 31"); e("s_cbranch_scc1 L_nogo")
        e(f"buffer_store_dword v{vONE}, v{vT3}, s[{sDBG}:{sDBG+3}], 0 offen offset:128 sc1")
        lab("L_nogo")
    for s_ in range(4): mfma(A0,WF+16*(c%2)+4*s_,16*c+4*s_,0 if c+s_==0 else None,pb="a")
if not GFL: vm.op("p1",ld1)
h1c(PC,"1b"); e("s_barrier"); side=[]; h1(PC,side,"1b")
while side: do(side.pop(0))
e("s_branch L_join"); tail.append("\n".join(L)); L=main; vm.q=qs
W0F=48; XF=144
def rdS(ks,t):
    c,s_=divmod(ks,4); sl=c%4
    if t==0:
        for h in range(2): lg.op(f"s{ks}",f"ds_read_b64_tr_b16 {r('v',W0F+4*(ks%2)+2*h,2)}, v{vTR0} offset:{(c if W7 else sl)*4096+s_*1024+h*256}")
    elif t<3: lg.op(f"s{ks}",f"ds_read_b128 {r('v',XF+8*(ks%2)+4*(t-1),4)}, v{(vXR,252)[t-1]+s_} offset:{sl*16384}")
    else:
        for h in range(2): lg.op(f"s{ks}",f"ds_read_b64_tr_b16 {r('v',WF+8*(ks%2)+4*(t-3)+2*h,2)}, v{vTRB+t-3} offset:{sl*16384+s_*2048+h*512}")
vm.wait("x0")
if GFL==2 and not ZE: zer("z2",z2)
ts("i"); ts("s",3); e("s_barrier"); e(f"v_lshlrev_b32 v{vT3}, 8, v0"); ts("m",1)
for t in range(5): rdS(0,t)
side=xdma(PD,True,True)
def warm():
    MW=opt("mw",3); n2,no,k=((50,38,3) if MW==2 else (19,5,1))
    o=[f"s_mov_b32 s4, s{pW2s}\n  s_and_b32 s5, s{pW2s+1}, 0xffff", f"s_mov_b32 s6, {1792*896}\n  s_mov_b32 s7, 0x20000",
       f"s_and_b32 s{sT0}, s{sTB}, 3\n  s_lshl2_add_u32 s{sT0}, s{sCB}, s{sT0}", f"s_mul_i32 s{sT0}, s{sT0}, 3\n  s_add_u32 s{sT0}, s{sT0}, s{sW}\n  s_sub_u32 s{sT0}, s{sT0}, 13"]
    if MW==3: o+=[f"s_lshr_b32 s{sT1}, s{sTB}, 2\n  s_lshl2_add_u32 s{sT0}, s{sT0}, s{sT1}\n  s_lshl1_add_u32 s{sT0}, s{sT0}, s{sTH}"]
    o+=[f"s_mul_i32 s{sT1}, s{sT0}, {n2*k*128}\n  s_mul_i32 s{sT0}, s{sT0}, {no*128}",
        f"s_cmp_eq_u32 s{sW}, 0\n  s_cselect_b32 s{sT1}, 0x4000000, s{sT1}\n  s_cselect_b32 s{sT0}, 0x4000000, s{sT0}",
        f"v_lshlrev_b32 v7, 7, v{vL}\n  v_mov_b32 v{vT2}, 0x4000000\n  v_cmp_gt_u32 vcc, {n2}, v{vL}\n  v_add_u32 v{vT0}, s{sT1}, v7\n  v_add_u32 v{vT1}, s{sT0}, v7\n  v_cndmask_b32 v{vT0}, v{vT2}, v{vT0}, vcc",
        f"v_cmp_gt_u32 vcc, {no}, v{vL}\n  s_mov_b32 s{sT0}, {n2*128}\n  s_mov_b32 s{sT1}, {n2*256}\n  v_cndmask_b32 v{vT1}, v{vT2}, v{vT1}, vcc"]
    o+=[(lambda x=x: vm.op("mw",f"buffer_load_dword v251, v{vT0}, s[4:7], {x} offen")) for x in ("0",f"s{sT0}",f"s{sT1}")[:k]]
    return o+[lambda: vm.op("mw",f"buffer_load_dword v251, v{vT1}, s[{sWO}:{sWO+3}], 0 offen")]
for ks in range(28):
    if ks==opt("mk",8) and opt("mw",3)>1: side+=warm()
    lg.wait(f"s{ks}")
    if (ks+1)%4==0 and ks<27:
        c=(ks+1)//4
        while side and c+PD<=7: do(side.pop(0))
        vm.wait(f"x{c}"); h1c(ks,"1"); e("s_barrier")
        if c in (1,3,5,6): ts("s",{1:4,3:5,5:6,6:7}[c])
        if c+PD<7: side+=xdma(c+PD,True,True)
    h1(ks,side,"1")
    for t in range(5):
        z=0 if ks==0 else None
        if t==0: mfma(A0,W0F+4*(ks%2),XF+8*(ks%2),z)
        else: mfma(B0+16*(t-1),WF+8*(ks%2)+4*((t-1)%2),XF+8*(ks%2)+4*((t-1)//2),z)
        if ks<27: rdS(ks+1,(3,4,0,1,2)[t])
        if side and (t>1 or ks>=PC): do(side.pop(0))
        if side and t==4: do(side.pop(0))
while side: do(side.pop(0))
lab("L_join")
ts("m",3); ts("s",8)
e(f"s_mul_i32 s{sT0}, s{sW}, {112*1024}"); e(f"s_lshl_b32 s{sT1}, s68, 12"); e(f"s_add_u32 s{sT0}, s{sT0}, s{sT1}"); e(f"s_add_u32 s{sT0}, s{sT0}, s{sBK}")
e(f"s_bitcmp0_b32 s{sW}, 0"); e(f"s_cselect_b32 s{sT1}, 1, -1"); e(f"s_mul_i32 s{sT1}, s{sT1}, {112*1024}"); e(f"s_add_u32 s{sT1}, s{sT1}, s{sT0}")
e(f"s_cmp_eq_u32 s{sSP}, 1"); e(f"s_cselect_b32 s{sT0}, {WS_SZ}, s{sT0}"); e(f"s_cselect_b32 s{sT1}, {WS_SZ}, s{sT1}")
e(f"s_mov_b32 s{sT2}, {f2u(math.log2(math.e)/math.sqrt(28))}")
for i in range(4): e(f"v_mov_b32 v{252+i}, -1")
e(f"s_lshl_b32 s68, s{sW}, 15"); e(f"s_lshl_b32 s69, s{sJ}, 11"); e(f"s_add_u32 s68, s68, s69"); e(f"s_add_u32 s68, s68, {WS_O}"); e(f"s_add_u32 s68, s68, s{sBK}")
DH=opt("dh",3); late=[]
e(f"s_mov_b32 s{sSTB}, s68"); e(f"s_mov_b32 s{sST0}, s{sT0}"); e(f"s_mov_b32 s{sCOLB}, s{sT1}")
def sth(i,src,soff,off=0,inc=4):
    for h in range(2):
        f=lambda h=h: vm.op("h",f"buffer_store_dwordx4 {r('v',src+inc*h,4)}, v{vL16}, s[{sWS}:{sWS+3}], s{soff} offen offset:{off+h*1024} sc1")
        if DH>=i: late.append(f)
        else: f()
sth(1,252,sSTB,0,0)
for i in range(16): e(f"v_mul_f32 v{A0+i}, s{sT2}, v{A0+i}")
pack(Q,A0)
for i in (6,7): e(f"v_cndmask_b32 v{Q+i}, v{Q+i}, 0, s[{sUP}:{sUP+1}]")
def mins(m,q):
    e(f"v_sub_f32 v{m}, 0, v{m}"); e(f"v_and_b32 v{vT0}, 0xffff0000, v{m}"); e(f"v_sub_f32 v{m}, v{m}, v{vT0}")
    e(f"v_and_b32 v{vT1}, 0xffff0000, v{m}"); e(f"v_sub_f32 v{m}, v{m}, v{vT1}")
    e(f"v_lshrrev_b32 v{vT0}, 16, v{vT0}"); e(f"v_or_b32 v{vT0}, v{vT0}, v{vT1}"); e(f"v_lshrrev_b32 v{m}, 16, v{m}")
    e(f"v_cndmask_b32 v{q+6}, v{q+6}, v{vT0}, s[{sUP}:{sUP+1}]"); e(f"v_cndmask_b32 v{q+7}, v{q+7}, v{m}, s[{sUP}:{sUP+1}]")
def halfmax(m):
    e(f"v_mov_b32 v{vT0}, v{m}"); e("s_nop 1"); e(f"v_permlane32_swap_b32 v{vT0}, v{m}"); e("s_nop 1"); e(f"v_max_f32 v{m}, v{m}, v{vT0}")
pack(40,B0,True); st2("h",40,sT0)
vm.wait("kt")
mfma(S+16,KT,Q,0); mfma(S+16,KT+4,Q+4)
pack(8,B0+16,True); sth(3,8,sST0,2048)
e(f"s_lshl_b32 s{sT0}, s{sW}, 11"); e(f"s_add_u32 s{sT0}, s{sT0}, {QX}"); e(f"v_add_u32 v{vT3}, s{sT0}, v{vL16}")
e(f"v_max3_f32 v{vT2}, v{S+16}, v{S+17}, v{S+18}")
for i in range(3,15,2): e(f"v_max3_f32 v{vT2}, v{vT2}, v{S+16+i}, v{S+17+i}")
e(f"v_max_f32 v{vT2}, v{vT2}, v{S+31}")
halfmax(vT2); mins(vT2,Q)
e(f"ds_write_b128 v{vT3}, {r('v',Q,4)}"); e(f"ds_write_b128 v{vT3}, {r('v',Q+4,4)} offset:1024")
pack(16,B0+32,True); sth(2,16,sCOLB); pack(KT,B0+48,True); sth(2,KT,sCOLB,2048)
for i in range(1,4):
    e(f"s_add_u32 s{sT0}, s{sW}, {i}"); e(f"s_and_b32 s{sT0}, s{sT0}, 3"); e(f"s_lshl_b32 s{sT0}, s{sT0}, 11"); e(f"s_add_u32 s{sT0}, s{sT0}, {QX}")
    e(f"v_add_u32 v{vT0+i}, s{sT0}, v{vL16}")
e("s_waitcnt lgkmcnt(0)"); e("s_barrier")
for i in range(1,4):
    for h in range(2): e(f"ds_read_b128 {r('v',Q+8*i+4*h,4)}, v{vT0+i} offset:{h*1024}")
lab("L_attn")
if ROT!=1: rot7()
for x in setb(4,pWS,f"s{sHO}")+setb(6,pW2s,f"s{sW2O}"): e(x)
def rotg(g,pr):
    if g==0: return [f"s_mov_b32 s{pr}, s{sROT}"]
    return [f"s_add_u32 s{pr}, s{pr}, 1", f"s_cmp_eq_u32 s{pr}, 7\n  s_cselect_b32 s{pr}, 0, s{pr}"]
def dmaw2(step):
    o=[f"s_add_u32 m0, s{sRW}, {(step%14)*2048}"]
    o+= rotg(step//4,8)+[f"s_mul_i32 s9, s8, {64*896}"]+setb(bW2,6,"s9") if step%4==0 else setb(bW2,bW2,32*896)
    return o+[(lambda i=i: vm.op(f"d{step+i//2}",f"global_load_lds_dwordx4 v{vD3+i}, s[{bW2}:{bW2+1}] offset:{i*1024}")) for i in range(4)]
def dmawo(step):
    hd=(step-28)//2
    o=[f"s_add_u32 m0, s{sRW}, {(step%14)*2048}", f"s_add_u32 s{sT2}, s{sWOO}, {hd*28*896}"]
    return o+[(lambda i=i: vm.op(f"d{step+i//2}",f"buffer_load_dwordx4 v{vD3+i}, s[{sWO}:{sWO+3}], s{sT2} offen offset:{i*1024} lds")) for i in range(4)]
def qk(t,h): mfma(S+16*(t%2),KV+16*((t//4)%4)+4*h,Q+8*(t%4)+4*h,0 if h==0 else None)
def pv(t,h): mfma(O+16*(t%4),KV+16*((t//4)%4)+8+4*h,P+4*h,0 if (t<4 and h==0) else None)
def grp(t,g):
    s=S+16*(t%2)+4*g
    for i in range(4): e(f"v_exp_f32 v{s+i}, v{s+i}")
    for i in range(2): e(f"v_cvt_pk_bf16_f32 v{P+2*g+i}, v{s+2*i}, v{s+2*i+1}")
vm.wait("kv0")
ts()
qk(0,0); qk(0,1)
e(f"v_and_b32 v{vT1}, 31, v{vL}"); e(f"v_lshlrev_b32 v{vT1}, 2, v{vT1}"); e(f"v_mul_u32_u24 v{vT2}, 896, v{vL}")
e(f"s_lshr_b32 s{sT0}, s{sW}, 1"); e(f"s_lshl_b32 s{sT0}, s{sT0}, 7"); e(f"v_xor_b32 v{vT0}, s{sT0}, v{vT1}"); e(f"v_xor_b32 v{vT3}, 0x80, v{vT0}")
e("s_waitcnt lgkmcnt(0)"); e("s_nop 3")
fixed={}
for kt in range(16):
    if kt+3<16:
        if (kt+3)%2==0:
            a=setb(bKV,bKV,8192); fixed[(4*kt,1)]=a[0]+"\n  "+a[1]
        for f in range(4): fixed[(4*kt+1,f)]=(lambda kt=kt,f=f: ldkv(kt+3,f))
    if kt<15: fixed[(4*kt+2,3)]=(lambda kt=kt: vm.wait(f"kv{kt+1}"))
ld2=f"buffer_load_dword v{vPOLL}, v{vZ}, s[{sWS}:{sWS+3}], s{sCNT} offen sc1"
SG=opt("sg",14); D0=opt("d0",8); H0=opt("h0",30)
fifo=[]
def carry(lst):
    o=[]; i=0
    while i<len(lst):
        if isinstance(lst[i],str) and i+1<len(lst) and isinstance(lst[i+1],str) and lst[i+1].startswith("s_addc"): o.append(lst[i]+"\n  "+lst[i+1]); i+=2
        else: o.append(lst[i]); i+=1
    return o
def pace(lst,t0,t1):
    n=sum(callable(x) for x in lst); o=[]; i=0
    for x in lst:
        if callable(x): o.append((4*t0+int(i*4*(t1-t0)/n),x)); i+=1
        else: o.append((0,x))
    return o
def hloads():
    o=[]
    for ks in range(28):
        if ks%4==0: o+=rotg(ks//4,10)+["s_lshl_b32 s11, s10, 12"]+setb(bH,4,"s11")
        for u in range(2): o.append(lambda ks=ks,u=u: gld(f"h{ks}",(ks*2+u)*4,vHU+u,bH,(ks%4)*1024,"a"))
    return o
def gloads():
    o=[f"s_add_u32 s{sT2}, s{sBK}, {WS_G}", f"s_lshl_b32 s{sT0}, s{sTH}, 8", f"s_add_u32 s{sT0}, s{sT0}, s{sT2}",
       f"s_lshl_b32 s{sT1}, s{sW}, 7", f"s_add_u32 s{sT1}, s{sT1}, s{sT2}"]
    o+=[lambda: vm.op("g",f"buffer_load_dword v{vGO}, v{vT1}, s[{sWS}:{sWS+3}], s{sT1} offen sc1")]
    o+=[(lambda u=u: vm.op("g",f"buffer_load_dword v{vG+u}, v{(vT0,vT3)[u]}, s[{sWS}:{sWS+3}], s{sT0} offen sc1")) for u in range(2)]
    return o
NP=opt("np",6); NB=5
def wloc(st):
    if st<4: return ("a",224+8*st)
    if st<NP: return ("v",8+8*(st-4))
    if st<28: return ("v",WG+8*((st-NP)%NB))
    return ("a",8*(st-28))
def tr3(st,t,h):
    p,b_=wloc(st)
    lg.op(f"w{st}",f"ds_read_b64_tr_b16 {r(p,b_+4*t+2*h,2)}, v{vTR3+t} offset:{(st%14)*2048+h*1024}")
def early():
    o=[]
    for s2 in range(0,NP,2):
        y=[(lambda st=st,t=t,h=h: tr3(st,t,h)) for st in (s2,s2+1) for t in range(2) for h in range(2)]
        o+=[lambda s2=s2,y0=y[0]: (vm.wait(f"d{s2+1}"),y0())]+y[1:]
        x=carry(dmaw2(14+s2)); o+=x[:-4]+[lambda s2=s2,x0=x[-4]: (lg.wait(f"w{s2+1}"),x0())]+x[-3:]
    return o
for t in range(64):
    if t==0 and late: fifo+=pace(late[2:]+late[:2],0,opt("l1",8))
    if t in (0,6,8,16,24,28,36,48,63): ts("a")
    if t==SG: fifo=[(0,lambda: vm.wait("h")), (0,lambda: vm.op("s2",f"buffer_atomic_add v{vONE}, v{vSIG}, s[{sWS}:{sWS+3}], s{sCNT} offen sc1"))]+fifo
    if t==D0: fifo+=pace(sum([carry(dmaw2(s)) for s in range(0,14,2)],[]),D0,opt("d1",19))+pace(early(),opt("d1",19),H0-1)
    if t==H0-5: fifo=[(0,lambda: vm.op("p2",ld2))]+fifo
    if t==H0: fifo+=pace([lambda: spin("2","p2",ld2,64)]+carry(hloads())+gloads(),H0,opt("h1",62))
    ms=[(lambda: qk(t+1,0)) if t<63 else None,(lambda: qk(t+1,1)) if t<63 else None,(lambda: pv(t-1,1)) if t>0 else None,lambda: pv(t,0)]
    for g in range(4):
        if ms[g]:
            ms[g]()
            if (t,g) in fixed: do(fixed[(t,g)])
            elif fifo and fifo[0][0]<=4*t+g:
                x=fifo.pop(0)[1]; do(x)
                if isinstance(x,str) and fifo and isinstance(fifo[0][1],str) and opt("m2",1): do(fifo.pop(0)[1])
        grp(t,g)
print("fifo left",len(fifo),file=sys.stderr)
while fifo: do(fifo.pop(0)[1])
e("s_nop 1"); pv(63,1)
ts()
red=[]
def A(x): red.append(x)
for i in range(1,4):
    e(f"s_add_u32 s{sT0}, s{sW}, {i}"); e(f"s_and_b32 s{sT0}, s{sT0}, 3"); e(f"s_mul_i32 s{sT0}, s{sT0}, 12288"); e(f"s_add_u32 s{sT0}, s{sT0}, {RED+(i-1)*4096}")
    e(f"v_add_u32 v{vT0+i}, s{sT0}, v{vL16}")
e(f"v_add_f32 v7, v{O+12}, v{O+28}"); e(f"v_add_f32 v7, v7, v{O+44}"); e(f"v_add_f32 v7, v7, v{O+60}")
e(f"v_cmp_ngt_f32 vcc, {f2u(2.0**40 if not FORCE_FB else -1.0)}, v7"); e(f"s_and_b64 vcc, vcc, s[{sUP}:{sUP+1}]")
e(f"s_cselect_b32 s{sT1}, 1.0, 0"); e(f"v_mov_b32 v7, s{sT1}")
for q in range(4): e(f"v_cndmask_b32 v{O+16*q+15}, v{O+16*q+15}, v7, s[{sUP}:{sUP+1}]")
e(f"s_mul_i32 s{sT0}, s{sW}, 12288"); e(f"s_add_u32 s{sT0}, s{sT0}, {RED}"); e(f"v_add_u32 v{vT0}, s{sT0}, v{vL16}")
for i in range(1,4):
    for q in range(4): A([lambda i=i,q=q: lg.op("rw",f"ds_write_b128 v{vT0+i}, {r('v',O+16*i+4*q,4)} offset:{q*1024}")])
A([lambda: lg.wait("rw"),"s_barrier"])
for i in range(0,12,2): A([(lambda i=i+k: lg.op(f"rr{i//4}",f"ds_read_b128 {r('v',O+16+4*i,4)}, v{vT0} offset:{i*1024}")) for k in range(2)])
V=[]
for i in range(3): V+=[lambda i=i: lg.wait(f"rr{i}")]+[f"v_add_f32 v{O+k}, v{O+k}, v{O+16+16*i+k}" for k in (12,15,13,14,*range(12))]
V+=[lambda: vm.wait("g"), f"v_readlane_b32 s{sT0}, v{O+15}, 32\n  v_rcp_f32 v{vT0}, v{O+12}\n  s_cmp_lg_u32 s{sT0}, 0\n  s_cbranch_scc1 L_fb\nL_fbok:",
    f"v_mul_f32 v{vT0}, v{vT0}, v{vGO}", f"v_mov_b32 v{vT1}, v{vT0}\n  s_nop 1\n  v_permlane32_swap_b32 v{vT0}, v{vT1}\n  s_nop 1"]
V+=[f"v_mul_f32 v{O+k}, v{O+k}, v{vT1}" for k in range(16)]
V+=[f"v_cvt_pk_bf16_f32 v{Q+i}, v{O+2*i}, v{O+2*i+1}" for i in range(8)]
V+=[f"v_cndmask_b32 v{Q+i}, v{Q+i}, 0, s[{sUP}:{sUP+1}]" for i in (6,7)]
V+=[lambda: st2("o",Q,68), lambda: ts()]
V+=[f"s_cmp_eq_u32 s{sCB}, 7\n  s_cbranch_scc1 L_idle"]
tail.append("L_idle:\n  s_waitcnt vmcnt(0) lgkmcnt(0)\n  s_branch L_fin")
FG=opt("fg",6)
for i in range(0,len(V),FG): A(V[i:i+FG])
O0=opt("o0",19); R0=opt("r0",3)
dq=[]; rq=[(st,t,h) for st in range(NP,36) for t in range(2) for h in range(2)]; nd=14+NP
old=[(lambda s=s,u=u: gld(f"o{u}",OF+(s*2+u)*4,vOU+u,bH,s*1024-4096)) for u in (1,0) for s in range(8)]
def canread(x,st):
    return f"d{x}" in vm.seen and (x-NB<max(st,NP) if x<28 else st>=8)
for st in range(28):
    if st in (0,4,10,16,22): ts("p")
    if st==O0: assert not red; dq=carry(setb(bH,pWS,f"s{sOO}"))+old+dq
    vm.wait(f"h{st}")
    assert not rq or rq[0][0]>st
    lg.wait(f"w{st}")
    k=0
    for u in (1,0):
        for t in (1,0):
            p,b_=wloc(st)
            mfma(AB+32*u+16*t,b_+4*t,(st*2+u)*4,0 if st==0 else None,pa=p,pb="a")
            for _ in range(0 if st<R0 else (1 if red else 2)):
                if rq and canread(rq[0][0],st) and (rq[0][0]<=st+2 or vm.n(f"d{rq[0][0]}") is None or vm.n(f"d{rq[0][0]}")>=opt("dl",8)):
                    vm.wait(f"d{rq[0][0]}"); tr3(*rq.pop(0))
            if nd<36 and (not rq or rq[0][0]>nd-13) and lg.n(f"w{nd-13}")!=0:
                x=carry(dmaw2(nd) if nd<28 else dmawo(nd)); dq+=x[:-4]+[lambda nd=nd: lg.wait(f"w{nd-13}")]+x[-4:]; nd+=2
            if red:
                for x in red.pop(0): do(x)
            for _ in range(1 if red else 2):
                if dq: do(dq.pop(0))
            k+=1
print("left dq",len(dq),"rq",len(rq),"nd",nd,file=sys.stderr); assert nd==36
while dq: do(dq.pop(0))
while rq: vm.wait(f"d{rq[0][0]}"); tr3(*rq.pop(0))
for u in range(2): e(f"v_sub_f32 v{vG+u}, 1.0, v{vG+u}")
for i in range(1,4):
    e(f"s_xor_b32 s{sT0}, s{sW}, {i}"); e(f"s_mul_i32 s{sT0}, s{sT0}, {RS}")
    e(f"v_add_u32 v{vT0+i}, s{sT0}, v{vL16}")
e(f"v_add_u32 v{vT0}, s{sRW}, v{vL16}"); e("s_mov_b32 s69, 0")
def scl(q): return [f"v_mul_f32 v{AB+16*q+k}, v{vG+q//2}, v{AB+16*q+k}" for k in range(16)]
ts("p")
for x in scl(3): e(x)
lab("L_ochk"); vm.all()
e(f"v_max3_u32 v7, v{OF}, v{OF+1}, v{OF+2}"); e(f"v_max3_u32 v{vPOLL}, v{OF+3}, v{OF+4}, v{OF+5}")
for i in range(6,62,4): e(f"v_max3_u32 v7, v7, v{OF+i}, v{OF+i+1}"); e(f"v_max3_u32 v{vPOLL}, v{vPOLL}, v{OF+i+2}, v{OF+i+3}")
e(f"v_max3_u32 v7, v7, v{OF+62}, v{OF+63}"); e(f"v_max_u32 v7, v7, v{vPOLL}"); e(f"v_cmp_eq_u32 vcc, -1, v7"); lg.all(); e("s_cbranch_vccnz L_oretry"); lab("L_ook")
main=L; L=[]; lab("L_oretry"); e("s_add_u32 s69, s69, 1"); e("s_cmp_ge_u32 s69, 0x10000"); e("s_cbranch_scc1 L_ook")
for x in old: x()
e("s_branch L_ochk"); tail.append("\n".join(L)); L=main; vm.q=[]
ts("mp")
fin=[f"v_and_b32 v7, 31, v{vL}",f"v_mul_u32_u24 v7, 896, v7",f"v_lshrrev_b32 v{vPOLL}, 5, v{vL}",f"v_lshl_add_u32 v7, v{vPOLL}, 4, v7",
     f"s_lshl_b32 s{sT0}, s{sTB}, 2",f"s_lshl_b32 s{sT1}, s{sTH}, 1",f"s_add_u32 s{sT0}, s{sT0}, s{sT1}",f"s_lshr_b32 s{sT1}, s{sW}, 1",f"s_add_u32 s{sT0}, s{sT0}, s{sT1}",
     f"s_mul_i32 s{sT0}, s{sT0}, {32*896}",f"s_lshl_b32 s{sT1}, s{sCB}, 7",f"s_add_u32 s{sT0}, s{sT0}, s{sT1}",f"s_and_b32 s{sT1}, s{sW}, 1",f"s_lshl_b32 s{sT1}, s{sT1}, 6",f"s_add_u32 s{sT0}, s{sT0}, s{sT1}"]
for q in (3,2,1,0):
    t,u=q%2,q//2
    sc=scl(q-1) if q>0 else []
    for s in range(8):
        mfma(AB+16*q,8*s+4*t,OF+(s*2+u)*4,None,pa="a")
        if q>0:
            if s>=3 and s<7 and q<3: lg.op("fw",f"ds_write_b128 v{vT0}, {r('v',AB+16*(q+1)+4*(s-3),4)} offset:{q*4096+(s-3)*1024}")
            for _ in range(4 if s<4 else 2):
                if s<4: e(sc.pop(0))
                elif fin: e(fin.pop(0))
        else:
            if s<2: e("s_nop 4")
            elif s<4:
                for k in range(2): lg.op("fw",f"ds_write_b128 v{vT0}, {r('v',AB+16+8*(s-2)+4*k,4)} offset:{(2*(s-2)+k)*1024}")
            elif s==5: lg.all(); e("s_barrier")
            if s>=5:
                for i in range(4*(s-5),4*(s-4)): lg.op(f"fr{i//4}",f"ds_read_b128 {r('v',WG+4*i,4)}, v{vT0+1+i//4} offset:{i*1024}")
ts("mp")
lg.wait("fr1")
for k in range(16): e(f"v_add_f32 v{WG+k}, v{WG+k}, v{WG+16+k}")
lg.wait("fr2")
for k in range(16): e(f"v_add_f32 v{AB+k}, v{AB+k}, v{WG+32+k}")
for k in range(16): e(f"v_add_f32 v{AB+k}, v{AB+k}, v{WG+k}")
pack(Q,AB); e("s_nop 1")
for p in range(2):
    e(f"v_permlane32_swap_b32 v{Q+4*p}, v{Q+4*p+2}"); e(f"v_permlane32_swap_b32 v{Q+4*p+1}, v{Q+4*p+3}")
    e(f"buffer_store_dwordx4 {r('v',Q+4*p,4)}, v7, s[{sOUT}:{sOUT+3}], s{sT0} offen offset:{p*32} {('','sc1','nt','sc0 sc1','sc1 nt')[opt('os',0)]}")
ts("p"); lab("L_fin")
if TS:
    e("s_waitcnt vmcnt(0)"); ts(); e("s_waitcnt lgkmcnt(0)")
    for i in range(tsn[0]): e(f"v_writelane_b32 v7, s{sTS+2*i}, {i}")
    e(f"s_lshl_b32 s{sT0}, s91, 2"); e(f"s_add_u32 s{sT0}, s{sT0}, s{sW}"); e(f"s_lshl_b32 s{sT0}, s{sT0}, 8"); e(f"s_add_u32 s{sT0}, s{sT0}, {WS_T}")
    e(f"v_lshlrev_b32 v{vT0}, 2, v{vL}"); e(f"buffer_store_dword v7, v{vT0}, s[{sWS}:{sWS+3}], s{sT0} offen")
e("s_endpgm")
for t in tail: L.append(t)
lab("L_fb")
e(f"s_cmp_lg_u32 s{sPASS}, 0"); e("s_cbranch_scc1 L_fbok"); e(f"s_mov_b32 s{sPASS}, 1"); e("s_waitcnt vmcnt(0) lgkmcnt(0)"); e("s_nop 15")
M=P
for x in (sSTB,sST0,sCOLB): e(f"s_mov_b32 s{x}, {WS_SZ}")
for q in range(4):
    e(f"v_mov_b32 v{M+q}, 0xff800000")
    for i in (6,7): e(f"v_cndmask_b32 v{Q+8*q+i}, v{Q+8*q+i}, 0, s[{sUP}:{sUP+1}]")
e(f"s_lshl_b32 s{sT3}, s{sW}, 16"); e(f"s_mov_b32 s{sT2}, 16")
lab("L_fbl")
for h in range(2): e(f"buffer_load_dwordx4 {r('v',KT+4*h,4)}, v{vL16}, s[{sWS}:{sWS+3}], s{sT3} offen offset:{h*1024} sc1")
e("s_waitcnt vmcnt(0)")
for q in range(4):
    mfma(S,KT,Q+8*q,0); mfma(S,KT+4,Q+8*q+4); e("s_nop 15")
    for i in range(0,16,2): e(f"v_max3_f32 v{M+q}, v{M+q}, v{S+i}, v{S+i+1}")
e(f"s_add_u32 s{sT3}, s{sT3}, 4096"); e(f"s_sub_u32 s{sT2}, s{sT2}, 1"); e(f"s_cmp_lg_u32 s{sT2}, 0"); e("s_cbranch_scc1 L_fbl")
e("s_barrier")
e(f"v_lshlrev_b32 v{vT2}, 2, v{vL}")
for q in range(4):
    halfmax(M+q)
    e(f"s_add_u32 s{sT0}, s{sW}, {q}"); e(f"s_and_b32 s{sT0}, s{sT0}, 3"); e(f"s_lshl_b32 s{sT0}, s{sT0}, 10"); e(f"s_add_u32 s{sT0}, s{sT0}, {RED}")
    e(f"v_add_u32 v{S+q}, s{sT0}, v{vT2}"); e(f"ds_write_b32 v{S+q}, v{M+q} offset:{q*256}")
e("s_waitcnt lgkmcnt(0)"); e("s_barrier")
for q in range(4):
    for i in range(4): e(f"ds_read_b32 v{S+4+i}, v{S+q} offset:{i*256}")
    e("s_waitcnt lgkmcnt(0)"); e(f"v_max3_f32 v{M+q}, v{S+4}, v{S+5}, v{S+6}"); e(f"v_max_f32 v{M+q}, v{M+q}, v{S+7}")
    mins(M+q,Q+8*q)
for x in kvinit(): do(x)
e("s_waitcnt vmcnt(0)"); e("s_barrier"); e("s_branch L_attn")
lab("L_end"); e("s_endpgm")
L.append(f""".section .rodata,"a"
.p2align 6
.amdhsa_kernel {NAME}_kernel
  .amdhsa_next_free_vgpr 512
  .amdhsa_next_free_sgpr 102
  .amdhsa_accum_offset 256
  .amdhsa_group_segment_fixed_size 0
  .amdhsa_kernarg_size 96
  .amdhsa_user_sgpr_count 2
  .amdhsa_user_sgpr_kernarg_segment_ptr 1
  .amdhsa_system_sgpr_workgroup_id_x 1
.end_amdhsa_kernel""")
out=[a for a in sys.argv[1:] if a.endswith(".s")]
open(out[0] if out else f"cdna_kernels/{NAME}.s","w").write("\n".join(L)+"\n")
```

```python
import sys, math, struct
NAME="gated_mix__grouped_kv_mqa__dense_activation_relu__prompt"
TC = "tc" in sys.argv
TS = "ts" in sys.argv or TC
FORCE_FB = "fb" in sys.argv
import re
DROP=[a[5:] for a in sys.argv if a.startswith("drop=")]
L=[]
def e(s): L.append("  "+s)
def lab(s): L.append(s+":")
def f2u(x): return "0x%08x"%struct.unpack("<I",struct.pack("<f",x))[0]
class VM:
    def __init__(s): s.q=[]; s.seen=set()
    def op(s,tag,txt):
        s.seen.add(tag)
        for d in DROP:
            if re.fullmatch(d,tag): return
        e(txt); s.q.append(tag)
    def n(s,tag):
        assert tag in s.seen, tag
        idx=[i for i,t in enumerate(s.q) if t==tag]
        if not idx: return None
        return len(s.q)-1-idx[-1]
    def wait(s,tag):
        n=s.n(tag)
        if n is None: return
        n=min(n,63); e(f"s_waitcnt vmcnt({n})"); s.q=s.q[len(s.q)-n:] if n else []
    def all(s): e("s_waitcnt vmcnt(0)"); s.q=[]
vm=VM()
class LG(VM):
    def wait(s,tag):
        n=s.n(tag)
        if n is None: return
        n=min(n,15); e(f"s_waitcnt lgkmcnt({n})"); s.q=s.q[len(s.q)-n:] if n else []
    def all(s): e("s_waitcnt lgkmcnt(0)"); s.q=[]
lg=LG()
def opt(name,d):
    v=[a.split("=")[1] for a in sys.argv if a.startswith(name+"=")]
    return int(v[0]) if v else d
def r(p,a,n): return f"{p}[{a}:{a+n-1}]"
def mfma(d,a,b,c=None,pa="v",pb="v"):
    cc = "0" if c==0 and c is not None else r("v",d,16)
    e(f"v_mfma_f32_32x32x16_bf16 {r('v',d,16)}, {r(pa,a,4)}, {r(pb,b,4)}, {cc}")
WS_KV=0; WS_H=0; WS_O=0x70000; WS_G=0x90000; WS_C=0x91000; WS_PAD=0xa0000; WS_T=0x1800000; WS_SZ=0x2000000
RS=28672; W0B=4*RS; QX=147456; XA=0; WBA=65536; W0A=131072; RED=114688
sX,sW0,sWB,sWS,sWO,sOUT,sDBG=8,12,16,20,24,28,32
bKV,bH,bW2,pW2s=36,38,40,42
sTB,sJ,sW,sRW,sST0,sROT,sSTB,sCOLB,sT0,sT1,sT2,sT3,sTT,sPASS,sCNT,sSP,sHO,sW2O,sWOO,sOO,sTH,sCB=range(44,66)
sUP=66; sBK=2; sXB=93; sTS=70; sPR=3
tsn=[0]
TSET=[a[4:] for a in sys.argv if a.startswith("set=")]; TSET=TSET[0] if TSET else "m"
def ts(k="m",idx=None):
    if TS and (TSET in k or k=="*"):
        if idx is not None: tsn[0]=idx
        e(f"{'s_memtime' if TC else 's_memrealtime'} s[{sTS+2*tsn[0]}:{sTS+2*tsn[0]+1}]"); tsn[0]+=1
def srd(d,b,size):
    e(f"s_mov_b32 s{d}, s{b}"); e(f"s_and_b32 s{d+1}, s{b+1}, 0xffff")
    e(f"s_mov_b32 s{d+2}, {size}"); e(f"s_mov_b32 s{d+3}, 0x20000")
vL,vL16,vT0,vT1,vT2,vT3=1,2,3,4,5,6
vXA=8;vXR=12;vW0A=16;vWBA=17;vTR0=21;vTRB=22;vTR3=26;vPOLL=28;vGO=29;vG=30;vD3=240;vHU=244;vOU=246;vONE=248;vSIG=249;vZ=250
WF=32;PK=48;B0=64;A0=128
Q=32;O=64;S=128;P=160;KV=168;KT=232
OF=64;WG=192;AB=128
hdr=open(f"cdna_kernels/{NAME}.s.ref").read().split("; Override")[0]
L.append(hdr.rstrip())
L.append("; @launch grid=(256,1,1) block=(256,1,1) lds=163840")
L.append(f'.amdgcn_target "amdgcn-amd-amdhsa--gfx950"\n.text\n.globl {NAME}_kernel\n.p2align 8\n.type {NAME}_kernel,@function\n{NAME}_kernel:')
e("s_cmp_ge_u32 s2, 256"); e("s_cbranch_scc1 L_end")
ts("*")
e("s_load_dwordx16 s[8:23], s[0:1], 0"); e("s_load_dwordx8 s[92:99], s[0:1], 64")
e(f"v_lshrrev_b32 v{vT0}, 6, v0"); e(f"v_and_b32 v{vL}, 63, v0")
if opt("map",1):
    e(f"s_bfe_u32 s{sT0}, s2, 0x20001"); e(f"v_readfirstlane_b32 s{sW}, v{vT0}")
    e(f"s_lshl_b32 s{sT0}, s{sT0}, 2"); e(f"s_bfe_u32 s{sT1}, s2, 0x20003"); e(f"s_or_b32 s{sTB}, s{sT0}, s{sT1}")
    e(f"s_and_b32 s{sTH}, s2, 1"); e(f"s_lshr_b32 s{sCB}, s2, 5")
else:
    e(f"s_and_b32 s{sT0}, s2, 7"); e(f"v_readfirstlane_b32 s{sW}, v{vT0}")
    e(f"s_lshl_b32 s{sT0}, s{sT0}, 1"); e(f"s_bfe_u32 s{sT1}, s2, 0x10003"); e(f"s_or_b32 s{sTB}, s{sT0}, s{sT1}")
    e(f"s_bfe_u32 s{sTH}, s2, 0x10004"); e(f"s_lshr_b32 s{sCB}, s2, 5")
e(f"s_lshl_b32 s{sJ}, s{sTH}, 3"); e(f"s_or_b32 s{sJ}, s{sJ}, s{sCB}")
e(f"v_lshlrev_b32 v{vL16}, 4, v{vL}")
if TS: e("s_mov_b32 s91, s2")
e(f"s_add_u32 s{sBK}, s{sTB}, 1"); e(f"s_lshl_b32 s{sBK}, s{sBK}, 20")
e(f"s_mul_i32 s{sRW}, s{sW}, {RS}")
e(f"s_lshl_b32 s{sTT}, s{sTB}, 2"); e(f"s_add_u32 s{sTT}, s{sTT}, s{sW}")
def rot7():
    e(f"s_lshl_b32 s{sT0}, s{sTB}, 1"); e(f"s_add_u32 s{sT0}, s{sT0}, s{sJ}"); e(f"s_mul_i32 s{sT1}, s{sT0}, 37"); e(f"s_lshr_b32 s{sT1}, s{sT1}, 8")
    e(f"s_mul_i32 s{sT1}, s{sT1}, 7"); e(f"s_sub_u32 s{sROT}, s{sT0}, s{sT1}")
ROT=opt("rot",1)
if ROT==1: rot7()
if ROT==0: e(f"s_mov_b32 s{sROT}, 0")
if ROT==2: e(f"s_add_u32 s{sT0}, s{sTB}, s{sCB}"); e(f"s_and_b32 s{sT0}, s{sT0}, 1"); e(f"s_mul_i32 s{sROT}, s{sT0}, 3")
if ROT==3: e(f"s_add_u32 s{sT0}, s{sTB}, s{sCB}"); e(f"s_mul_i32 s{sT1}, s{sT0}, 43"); e(f"s_lshr_b32 s{sT1}, s{sT1}, 7"); e(f"s_mul_i32 s{sT1}, s{sT1}, 3"); e(f"s_sub_u32 s{sT0}, s{sT0}, s{sT1}"); e(f"s_lshl_b32 s{sROT}, s{sT0}, 1")
if ROT==4: e(f"s_and_b32 s{sT0}, s{sTB}, 1"); e(f"s_mul_i32 s{sROT}, s{sT0}, 3")
if ROT==5: e(f"s_and_b32 s{sT0}, s{sTB}, 3"); e(f"s_lshl_b32 s{sROT}, s{sT0}, 1")
if ROT==6: e(f"s_cmp_eq_u32 s{sCB}, 7"); e(f"s_cselect_b32 s{sROT}, 0, s{sCB}")
e(f"v_lshrrev_b32 v7, 3, v{vL}"); e(f"v_mul_u32_u24 v{vT0}, 896, v7")
e(f"v_and_b32 v{vT1}, 7, v{vL}"); e(f"v_lshrrev_b32 v{vT2}, 4, v{vL}"); e(f"v_xor_b32 v{vT2}, v{vT1}, v{vT2}")
e(f"v_lshl_add_u32 v{vXA}, v{vT2}, 4, v{vT0}")
e(f"v_xor_b32 v{vT2}, 4, v{vT2}"); e(f"v_lshl_add_u32 v{vXA+1}, v{vT2}, 4, v{vT0}")
e(f"v_add_u32 v{vXA+2}, {2*6144}, v{vXA}"); e(f"v_add_u32 v{vXA+3}, {3*6144}, v{vXA+1}"); e(f"v_add_u32 v{vXA+1}, 6144, v{vXA+1}")
e(f"v_bfe_u32 v{vT2}, v{vL}, 4, 1"); e(f"v_lshlrev_b32 v{vT2}, 2, v{vT2}"); e(f"v_xor_b32 v{vT2}, v{vT1}, v{vT2}"); e(f"v_lshlrev_b32 v{vWBA}, 4, v{vT2}")
e(f"v_add_u32 v{vD3}, v{vWBA}, v{vT0}")
e(f"v_lshrrev_b32 v{vT0}, 2, v{vL}"); e(f"v_and_b32 v{vT1}, 3, v{vL}"); e(f"v_lshlrev_b32 v{vT1}, 4, v{vT1}")
e(f"s_cmp_lt_u32 s{sCB}, 1"); e(f"s_cselect_b32 s{sSP}, 1, 0")
ts("i"); e("s_waitcnt lgkmcnt(0)")
ts("si")
pG,pOUT,pDBG,pWS=92,94,96,98
TW=opt("tw",1)
if TW&1:
    for p in (8,10,20,12,14,22,16,pOUT): e(f"s_load_dword s90, s[{p}:{p+1}], 0")
    e(f"s_load_dword s90, s[{pWS}:{pWS+1}], {WS_PAD}"); e(f"s_add_u32 s{sT0}, s{sBK}, {WS_PAD}"); e(f"s_load_dword s90, s[{pWS}:{pWS+1}], s{sT0}")
e("s_mov_b64 s[4:5], s[20:21]"); e("s_mov_b64 s[6:7], s[10:11]"); e(f"s_mov_b64 s[{pW2s}:{pW2s+1}], s[22:23]")
srd(sWO,16,401408)
e("s_mov_b64 s[100:101], s[12:13]"); e(f"s_mov_b32 s{sST0}, 56"); e(f"s_mov_b32 s{sT3}, 25088"); e(f"s_mov_b32 s{sT2}, 0")
e(f"s_cmp_eq_u32 s{sJ}, 0"); e("s_cbranch_scc1 L_w0done")
e("s_mov_b64 s[100:101], s[14:15]")
e(f"s_cmp_eq_u32 s{sJ}, 8"); e("s_cbranch_scc1 L_w0done")
e("s_mov_b64 s[100:101], s[6:7]"); e(f"s_mov_b32 s{sST0}, 896"); e(f"s_mov_b32 s{sT3}, 401408"); e(f"s_mul_i32 s{sT2}, s{sJ}, 56")
lab("L_w0done")
srd(sW0,100,f"s{sT3}"); srd(sX,8,1835008)
e(f"v_mad_u32_u24 v{vW0A}, v{vT0}, s{sST0}, v{vT1}")
e(f"s_lshl_b32 s{sST0}, s{sST0}, 4"); e(f"s_mul_i32 s{sT1}, s{sW}, s{sST0}"); e(f"s_add_u32 s{sT2}, s{sT2}, s{sT1}"); e(f"s_lshl_b32 s{sST0}, s{sST0}, 2")
e(f"s_mul_i32 s{sT3}, s{sTT}, {32*896}")
def rotc(c):
    if c==0: e(f"s_mov_b32 s{sPR}, s{sROT}")
    else: e(f"s_add_u32 s{sPR}, s{sPR}, 1"); e(f"s_cmp_eq_u32 s{sPR}, 7"); e(f"s_cselect_b32 s{sPR}, 0, s{sPR}")
e(f"s_lshl_b32 s{sT0}, s{sCB}, 1"); e(f"s_mul_i32 s{sT1}, s{sTH}, 14"); e(f"s_add_u32 s68, s{sT0}, s{sT1}"); e(f"s_sub_u32 s68, s68, 2")
e(f"s_lshr_b32 s{sT1}, s{sW}, 1"); e(f"s_add_u32 s{sT0}, s68, s{sT1}"); e(f"s_lshl_b32 s{sCOLB}, s{sT0}, 7")
e(f"s_and_b32 s{sT0}, s{sW}, 1"); e(f"s_add_u32 s68, s68, s{sT0}"); e(f"s_mul_i32 s{sT0}, s{sT0}, {32*3584}"); e(f"s_add_u32 s{sCOLB}, s{sCOLB}, s{sT0}")
srd(sWB,4,1605632); e(f"s_mov_b32 s{sSTB}, 3584")
e(f"v_mad_u32_u24 v{vWBA}, v7, s{sSTB}, v{vWBA}")
for i in range(1,4): e(f"v_add_u32 v{vWBA+i}, {8*3584-1024}, v{vWBA+i-1}")
e(f"s_mov_b64 s[100:101], s[{pG}:{pG+1}]")
PD=opt("pd",2)
e(f"s_lshl_b32 s92, s{sW}, 10"); e(f"s_lshl_b32 s{sXB}, s{sW}, 12")
MOD=('','sc1','nt','sc0 sc1','sc1 nt','sc0')
W7=opt("w7",0)
def xdma(c,sweep,wb):
    o=xdma_(c,sweep,wb)
    return o[:1]+o[3:] if sweep and PD<=c<W7 else o
def xdma_(c,sweep,wb):
    o=[lambda: rotc(c), f"s_mul_i32 s{sT1}, s{sPR}, s{sST0}\n  s_add_u32 m0, s92, {(W0A+(c if W7 else c%4)*4096) if sweep else (W0B+c*4096)}\n  s_add_u32 s{sT1}, s{sT1}, s{sT2}",
       lambda: vm.op(f"x{c}",f"buffer_load_dwordx4 v{vW0A}, s[{sW0}:{sW0+3}], s{sT1} offen {MOD[opt('qm',0)]} lds"),
       f"s_lshl_b32 s{sT1}, s{sPR}, 7\n  s_add_u32 m0, s{sXB}, {(c%4)*16384 if sweep else c*4096}\n  s_add_u32 s{sT1}, s{sT1}, s{sT3}"]
    o+=[(lambda i=i: vm.op(f"x{c}",f"buffer_load_dwordx4 v{vXA+i}, s[{sX}:{sX+3}], s{sT1} offen offset:{i*1024} {MOD[opt('xm',0)]} lds")) for i in range(4)]
    if wb:
        o+=[f"s_mul_i32 s{sT1}, s{sPR}, {64*3584}\n  s_add_u32 m0, s{sXB}, {WBA+(c%4)*16384}\n  s_add_u32 s{sT1}, s{sT1}, s{sCOLB}"]
        o+=[(lambda i=i: vm.op(f"x{c}",f"buffer_load_dwordx4 v{vWBA+i}, s[{sWB}:{sWB+3}], s{sT1} offen offset:{i*1024} {MOD[opt('xm',0)]} lds")) for i in range(4)]
    return o
def do(x):
    if callable(x): x()
    else: e(x)
tail=[]
ts("i")
e(f"s_cmp_eq_u32 s{sSP}, 1"); e("s_cbranch_scc1 L_i2")
main=L; L=[]; lab("L_i2"); e(f"s_mov_b32 s{sXB}, s{sRW}")
PA=opt("pa",3)
GI=QX+8192
srd(sWB,100,896); e(f"s_mov_b32 m0, {GI}"); e("s_movk_i32 s69, 896")
vm.op("gate",f"buffer_load_dwordx4 v{vL16}, s[{sWB}:{sWB+3}], 0 offen lds")
GFL=opt("gf",2); PW=opt("pw",1)*GFL; NR=opt("nr",32); FL=0x80000; NZ=32//max(GFL,1); vFP=160; vFS=161; vT8=162
for c in range(-1,PA):
    for x in (xdma(c,False,False) if c>=0 else []): do(x)
    if GFL==1 and c==opt("zc",0):
        srd(sWS,pWS,WS_SZ); e(f"s_lshl1_add_u32 s{sT1}, s{sTB}, s{sTH}"); e(f"s_lshl2_add_u32 s{sT1}, s{sT1}, {FL}")
        e(f"v_mul_u32_u24 v{vFS}, 0x1100, v0"); e(f"v_add_u32 v{vFS}, s{sT1}, v{vFS}"); e(f"v_mov_b32 v{vFP}, {WS_SZ}"); e(f"v_cmp_gt_u32 vcc, {NR}, v0")
        e(f"v_mov_b32 v{vT8+1}, 0"); e(f"v_cndmask_b32 v{vFS}, v{vFP}, v{vFS}, vcc")
        vm.op("z",f"buffer_store_dword v{vT8+1}, v{vFS}, s[{sWS}:{sWS+3}], 0 offen sc1")
srd(sWB,6,401408); e(f"v_mad_u32_u24 v{vWBA}, v{vT0}, s69, v{vT1}")
e(f"s_mul_i32 s{sCOLB}, s{sJ}, 56"); e(f"s_mul_i32 s{sT1}, s{sW}, {16*896}"); e(f"s_add_u32 s{sCOLB}, s{sCOLB}, s{sT1}")
e("s_branch L_i3"); tail.append("\n".join(L)); L=main; q0=list(vm.q)+["pf"]; vm.q=[]
def zer(nm,f):
    global L
    e(f"s_lshl2_add_u32 s{sT1}, s{sJ}, s{sW}"); e(f"s_cmp_eq_u32 s{sT1}, 28"); e(f"s_cbranch_scc1 L_{nm}"); lab(f"L_{nm}r")
    m=L; L=[]; lab(f"L_{nm}"); f(); e(f"s_branch L_{nm}r"); tail.append("\n".join(L)); L=m
def z1():
    srd(sWS,pWS,WS_SZ); e(f"s_mul_i32 s{sT1}, s{sTB}, 0x2200"); e(f"s_add_u32 s{sT1}, s{sT1}, {FL}")
    e(f"v_lshrrev_b32 v{vFS}, 5, v0"); e(f"v_mul_u32_u24 v{vFS}, {0x1100-128}, v{vFS}"); e(f"v_lshl_add_u32 v{vFS}, v0, 2, v{vFS}"); e(f"v_mov_b32 v{vT8+1}, 0")
    e(f"buffer_store_dword v{vT8+1}, v{vFS}, s[{sWS}:{sWS+3}], s{sT1} offen sc1")
ZE=opt("ze",1)
def z2():
    if ZE: srd(sDBG,pDBG,256); e(f"v_mov_b32 v{vONE}, 1"); e(f"s_waitcnt vmcnt({len(vm.q)})")
    e(f"v_lshlrev_b32 v{vT8+2}, 7, v0"); e(f"buffer_atomic_add v{vONE}, v{vT8+2}, s[{sDBG}:{sDBG+3}], 0 offen sc1")
if GFL==2: assert NR==32; zer("z1",z1)
for c in range(PD):
    for i,x in enumerate(xdma(c,True,True)):
        do(x)
        if c==0 and i in (2,7): ts("i")
    ts("i")
    if GFL==2 and ZE==c+1: zer("z2",z2)
if W7>PD:
    e(f"s_mov_b32 s69, s{sPR}")
    for c in range(PD,W7):
        for x in xdma_(c,True,True)[:3]: do(x)
    e(f"s_mov_b32 s{sPR}, s69")
lab("L_i3")
e("s_getpc_b64 s[4:5]"); lab("L_pc")
e(f"s_mul_i32 s{sT1}, s{sW}, 8192"); e(f"v_lshlrev_b32 v{vT2}, 7, v{vL}"); e(f"v_add_u32 v{vT2}, s{sT1}, v{vT2}")
e(f"v_min_u32 v{vT2}, L_end-L_pc, v{vT2}")
vm.op("pf",f"global_load_dword v{vPOLL}, v{vT2}, s[4:5]")
qs=list(vm.q)
srd(sWS,pWS,WS_SZ); srd(sOUT,pOUT,1835008); srd(sDBG,pDBG,256)
e(f"s_mov_b32 s{sUP}, 0"); e(f"s_mov_b32 s{sUP+1}, -1")
for i in range(1,4): e(f"v_add_u32 v{vD3+i}, {6144*i}, v{vD3}")
e(f"v_and_b32 v{vT0}, 31, v{vL}"); e(f"v_lshrrev_b32 v{vT1}, 5, v{vL}"); e(f"v_bfe_u32 v{vT2}, v{vL}, 1, 3")
e(f"v_xor_b32 v{vT2}, v{vT1}, v{vT2}"); e(f"v_lshlrev_b32 v{vT0}, 7, v{vT0}"); e(f"v_add_u32 v{vT0}, s{sXB}, v{vT0}")
for s in range(4):
    e(f"v_xor_b32 v{vT3}, {2*s}, v{vT2}"); e(f"v_lshl_add_u32 v{vXR+s}, v{vT3}, 4, v{vT0}"); e(f"v_xor_b32 v{252+s}, 0x1000, v{vXR+s}")
e(f"v_bfe_u32 v{vT0}, v{vL}, 2, 2"); e(f"v_bfe_u32 v{vT2}, v{vL}, 4, 1"); e(f"v_and_b32 v{vT3}, 3, v{vL}")
e(f"v_lshlrev_b32 v{vT3}, 3, v{vT3}"); e(f"v_lshl_add_u32 v{vT3}, v{vT2}, 5, v{vT3}")
e(f"v_lshl_add_u32 v{vT2}, v{vT1}, 3, v{vT0}"); e(f"v_lshl_add_u32 v{vTR0}, v{vT2}, 6, v{vT3}"); e(f"s_cmp_eq_u32 s{sSP}, 1"); e(f"s_cselect_b32 s{sT0}, {W0B-W0A}, 0"); e(f"s_add_u32 s{sT0}, s{sT0}, {W0A}"); e(f"v_mov_b32 v{vTRB+2}, v{vTR0}"); e(f"v_add_u32 v{vTRB+3}, {2*RS}, v{vTR0}"); e(f"v_add_u32 v{vTR0}, s{sT0}, v{vTR0}")
e(f"s_and_b32 s{sT1}, s{sW}, 1"); e(f"s_lshl_b32 s{sT1}, s{sT1}, 13"); e(f"s_add_u32 s{sT1}, s{sT1}, {WBA}")
e(f"v_bfe_u32 v7, v{vL}, 3, 1"); e(f"v_lshl_add_u32 v{vT3}, v7, 6, v{vT3}")
e(f"v_lshl_add_u32 v{vTRB}, v{vT2}, 7, v{vT3}"); e(f"v_add_u32 v{vTRB}, s{sT1}, v{vTRB}"); e(f"v_xor_b32 v{vTRB+1}, 64, v{vTRB}")
e(f"v_lshl_add_u32 v{vT2}, v{vT1}, 2, v{vT0}"); e(f"v_lshl_add_u32 v{vT3}, v{vT2}, 7, v{vT3}")
e(f"s_and_b32 s{sT0}, s{sW}, 1"); e(f"s_lshl_b32 s{sT0}, s{sT0}, 6"); e(f"v_xor_b32 v{vT3}, s{sT0}, v{vT3}"); e(f"v_add_u32 v{vTR3}, s{sRW}, v{vT3}")
e(f"v_xor_b32 v{vT3}, 64, v{vT3}"); e(f"v_add_u32 v{vTR3+1}, s{sRW}, v{vT3}")
e(f"s_lshr_b32 s{sT0}, s{sW}, 1"); e(f"s_xor_b32 s{sT1}, s{sT0}, 1")
for u in range(2):
    e(f"s_mul_i32 s69, s{sT0+u}, {112*1024}"); e(f"v_add_u32 v{vHU+u}, s69, v{vL16}"); e(f"s_lshl_b32 s69, s{sT0+u}, 15"); e(f"v_add_u32 v{vOU+u}, s69, v{vL16}")
e(f"v_mov_b32 v{vONE}, 1"); e(f"v_lshlrev_b32 v{vSIG}, 25, v{vL}"); e(f"v_mov_b32 v{vZ}, 0")
e(f"s_add_u32 s{sCNT}, s{sBK}, {WS_C}")
e(f"s_lshl_b32 s{sT0}, s{sTH}, 1")
e(f"s_mul_i32 s{sHO}, s{sT0}, {112*1024}"); e(f"s_mul_i32 s{sT1}, s{sW}, {28*1024}"); e(f"s_add_u32 s{sHO}, s{sHO}, s{sT1}"); e(f"s_add_u32 s{sHO}, s{sHO}, s{sBK}")
e(f"s_lshl_b32 s{sOO}, s{sT0}, 15"); e(f"s_lshl_b32 s{sT1}, s{sW}, 13"); e(f"s_add_u32 s{sOO}, s{sOO}, s{sT1}"); e(f"s_add_u32 s{sOO}, s{sOO}, {WS_O+4096}"); e(f"s_add_u32 s{sOO}, s{sOO}, s{sBK}")
e(f"s_min_u32 s{sT1}, s{sCB}, 6"); e(f"s_lshl_b32 s{sT1}, s{sT1}, 7"); e(f"s_mul_i32 s{sW2O}, s{sW}, {448*896}"); e(f"s_add_u32 s{sW2O}, s{sW2O}, s{sT1}")
e(f"s_mul_i32 s{sWOO}, s{sW}, {112*896}"); e(f"s_add_u32 s{sWOO}, s{sWOO}, s{sT1}")
e(f"s_mov_b32 s{sPASS}, 0")
if GFL:
    e(f"s_lshl1_add_u32 s{sT1}, s{sTB}, s{sTH}"); e(f"s_lshl_b32 s{sT0}, s{sCB}, 5"); e(f"s_add_u32 s{sT1}, s{sT1}, s{sT0}"); e(f"s_and_b32 s{sT1}, s{sT1}, {NR-1}")
    e(f"s_mul_i32 s{sT1}, s{sT1}, 0x1100"); e(f"s_add_u32 s{sT1}, s{sT1}, {FL}");
    if not PW: e(f"s_cmp_eq_u32 s{sW}, 0"); e(f"s_cselect_b32 s{sT1}, s{sT1}, {WS_SZ}")
    e(f"v_and_b32 v{vFP}, 31, v0"); e(f"v_lshl_add_u32 v{vFP}, v{vFP}, 2, s{sT1}"); e(f"v_lshlrev_b32 v{vT8}, 8, v0")
if TW&2:
    e(f"s_add_u32 s{sT0}, s{sBK}, {WS_PAD}"); e(f"s_mov_b32 s{sT1}, {WS_PAD}")
    for x in (f"s[{sWS}:{sWS+3}], s{sT0}",f"s[{sWS}:{sWS+3}], s{sT1}",f"s[{sWO}:{sWO+3}], 0",f"s[{sOUT}:{sOUT+3}], 0",f"s[{sDBG}:{sDBG+3}], 0"): e(f"buffer_load_dword v251, v{vSIG}, {x} offen offset:128 sc1")
    e(f"global_load_dword v251, v{vZ}, s[{pW2s}:{pW2s+1}]")
    q0+=["tw"]*6; qs+=["tw"]*6
ts("si")
def wql():
    o=[]
    for c in range(7):
        o+=[(lambda c=c: rotc(c)), f"s_mul_i32 s{sT1}, s{sPR}, {64*896}\n  s_add_u32 m0, s{sRW}, {c*1024}\n  s_add_u32 s{sT1}, s{sT1}, s{sCOLB}",
            lambda: vm.op("wq",f"buffer_load_dwordx4 v{vWBA}, s[{sWB}:{sWB+3}], s{sT1} offen lds")]
    return o
GF=96; NE=opt("ne",1)
ld0b=f"buffer_load_dword v{vPOLL}, v{vT8}, s[{sDBG}:{sDBG+3}], 0 offen offset:128 sc1"
def passA(kind):
    if GFL==2:
        e(f"s_lshl1_add_u32 s{sT1}, s{sTB}, s{sTH}"); e(f"s_lshl2_add_u32 s{sT1}, s{sT1}, {FL}")
        e(f"v_mul_u32_u24 v{vFS}, 0x1100, v0"); e(f"v_add_u32 v{vFS}, s{sT1}, v{vFS}"); e(f"v_mov_b32 v{vT8+1}, {WS_SZ}"); e(f"v_cmp_gt_u32 vcc, {NR}, v0")
        e("s_nop 0"); e(f"v_cndmask_b32 v{vFS}, v{vT8+1}, v{vFS}, vcc")
    e(f"v_lshrrev_b32 v{vT2}, 5, v{vL}"); e(f"v_lshlrev_b32 v{vT2}, 4, v{vT2}"); e(f"v_add_u32 v{vT2}, {GI}, v{vT2}"); e(f"s_mov_b32 s{sSTB}, s{sROT}")
    vm.wait("gate") if PA<2 else None
    for c in range(8):
        side=[]
        if c<7:
            e(f"s_lshl_b32 s69, s{sSTB}, 7"); e(f"v_add_u32 v7, s69, v{vT2}"); e(f"s_add_u32 s{sSTB}, s{sSTB}, 1"); e(f"s_cmp_eq_u32 s{sSTB}, 7"); e(f"s_cselect_b32 s{sSTB}, 0, s{sSTB}")
            vm.wait(f"x{c}")
            if GFL==2 and c==opt("zp",5): vm.op("p0",ld0b)
            if GFL==1 and c==opt("zc",0)+1: vm.wait("z"); vm.op("za",f"buffer_atomic_add v{vONE}, v{vT8}, s[{sDBG}:{sDBG+3}], 0 offen sc1")
            if c in (0,1,3,6): ts("s",{0:3,1:4,3:5,6:6}[c])
            if c: lg.all()
            for s in range(4): lg.op(f"x{c}",f"ds_read_b128 {r('a',16*c+4*s,4)}, v{vXR+s} offset:{c*4096}")
            e("s_barrier")
            for s in range(4):
                for h in range(2): lg.op("w",f"ds_read_b64_tr_b16 {r('v',WF+16*(c%2)+4*s+2*h,2)}, v{vTR0} offset:{(4*c+s)*1024+h*256}")
            if kind=="k": side=[(lambda s=s: lg.op("w",f"ds_read_b128 {r('v',GF+16*(c%2)+4*s,4)}, v7 offset:{s*32}")) for s in range(4)]
            if c+PA<7: side+=xdma(c+PA,False,False)
            elif c==7-PA and NE: side+=wql()
        else: lg.all()
        for s in range(4 if c else 0):
            z=0 if (c==1 and s==0) else None; w=WF+16*((c-1)%2)+4*s
            if kind=="v": mfma(B0,16*(c-1)+4*s,w,z,pa="a")
            else: mfma(B0,w,16*(c-1)+4*s,z,pb="a")
            for _ in range(2):
                if side: do(side.pop(0))
            if kind=="k" and c<7: mfma(B0+16,GF+16*((c-1)%2)+4*s,16*(c-1)+4*s,z,pb="a")
            if side: do(side.pop(0))
        while side: do(side.pop(0))
def pack(dst,src,relu=False):
    for i in range(8): e(f"v_cvt_pk_bf16_f32 v{dst+i}, v{src+2*i}, v{src+2*i+1}")
    if relu:
        for i in range(8): e(f"v_pk_max_i16 v{dst+i}, v{dst+i}, 0")
def st2(tag,src,soff,off=0):
    for h in range(2): vm.op(tag,f"buffer_store_dwordx4 {r('v',src+4*h,4)}, v{vL16}, s[{sWS}:{sWS+3}], s{soff} offen offset:{off+h*1024} sc1")
e(f"s_cmp_eq_u32 s{sSP}, 1"); e("s_cbranch_scc1 L_sp")
main=L; L=[]
lab("L_sp"); e(f"s_cmp_eq_u32 s{sJ}, 8"); e("s_cbranch_scc1 L_av")
lab("L_ak"); vm.q=list(q0); passA("k")
e(f"v_lshlrev_b32 v{vT0}, 7, v{vL}"); e(f"v_cmp_gt_u32 vcc, 1, v{vL}"); e(f"v_mov_b32 v{vT2}, {WS_SZ}"); e(f"s_lshl_b32 s{sT0}, s{sTT}, 12")
e(f"v_cndmask_b32 v{vT2}, v{vT2}, v{vT0}, vcc")
e(f"buffer_store_dword v{vZ}, v{vT2}, s[{sWS}:{sWS+3}], s{sCNT} offen sc1")
e(f"v_mov_b32 v{vT0}, 0x3f803f80"); e(f"v_mov_b32 v{vT1}, 0x00003f80"); e("s_nop 7")
pack(PK,B0)
e(f"v_cndmask_b32 v{PK+6}, v{PK+6}, v{vT0}, s[{sUP}:{sUP+1}]"); e(f"v_cndmask_b32 v{PK+7}, v{PK+7}, v{vT1}, s[{sUP}:{sUP+1}]")
st2("a",PK,sT0)
for s_ in range(4): mfma(B0+16,GF+4*s_,96+4*s_,None,pb="a")
e(f"v_and_b32 v{vT1}, 31, v{vL}"); e(f"v_lshlrev_b32 v{vT1}, 2, v{vT1}")
e(f"s_lshl_b32 s{sT0}, s{sW}, 7"); e(f"s_add_u32 s{sT0}, s{sT0}, {WS_G}"); e(f"s_add_u32 s{sT0}, s{sT0}, s{sBK}"); e("s_nop 7")
e(f"v_mul_f32 v{vT0}, {f2u(-math.log2(math.e))}, v{B0+16}"); e(f"v_exp_f32 v{vT0}, v{vT0}"); e("s_nop 0"); e(f"v_add_f32 v{vT0}, 1.0, v{vT0}")
e(f"v_rcp_f32 v{vT0}, v{vT0}"); e("s_nop 0")
e(f"buffer_store_dword v{vT0}, v{vT1}, s[{sWS}:{sWS+3}], s{sT0} offen sc1")
e("s_branch L_akv")
lab("L_av"); vm.q=list(q0); passA("v")
e(f"v_and_b32 v{vT0}, 31, v{vL}"); e(f"v_mov_b32 v{vT1}, 0x3f803f80"); e(f"v_cmp_eq_u32 vcc, 28, v{vT0}"); e("s_nop 1")
e(f"v_cndmask_b32 v{vT1}, 0, v{vT1}, vcc"); e(f"v_cmp_gt_u32 vcc, 28, v{vT0}"); e("s_nop 7")
pack(PK,B0)
for i in range(8): e(f"v_cndmask_b32 v{PK+i}, v{vT1}, v{PK+i}, vcc")
e(f"s_lshl_b32 s{sT0}, s{sTT}, 12"); e(f"s_add_u32 s{sT0}, s{sT0}, 2048")
st2("a",PK,sT0)
lab("L_akv")
if not NE:
    for x in wql(): do(x)
def spin(name,tag,ld,target,two=False):
    def chk():
        if target is None: return f"  v_cmp_eq_u32 vcc, 1, v{vPOLL}\n  s_cmp_eq_u64 vcc, -1"
        return f"  v_readfirstlane_b32 s{sT0}, v{vPOLL}\n  s_cmp_ge_u32 s{sT0}, {target}"
    q_=list(vm.q)
    if two: e(f"s_cmp_lg_u32 s{sW}, 0"); e(f"s_cbranch_scc1 L_ok{name}")
    vm.wait(tag); L.append(chk()); e(f"s_cbranch_scc0 L_sp{name}"); lab(f"L_ok{name}")
    if two: vm.q=q_
    tail.append(f"""L_sp{name}:
  s_mov_b32 s69, 0
{f"  s_cmp_lg_u32 s{sW}, 0"+chr(10)+f"  s_cbranch_scc1 L_ok{name}" if two else ""}
L_sq{name}:
  s_sleep {opt("slp",4)}
  {ld}
  s_add_u32 s69, s69, 1
  s_waitcnt vmcnt(0)
  s_cmp_ge_u32 s69, 0x40000
  s_cbranch_scc1 L_ok{name}
{chk()}
  s_cbranch_scc0 L_sq{name}
  s_branch L_ok{name}""")
vm.wait("a")
if GFL==2: spin("0b","p0",ld0b,NZ,True)
e("s_barrier"); e(f"v_mov_b32 v{vT0}, 1"); e(f"v_lshlrev_b32 v{vT3}, 8, v0")
ld0=f"buffer_load_dword v{vPOLL}, v{vT8}, s[{sDBG}:{sDBG+3}], 0 offen sc1"
if GFL: vm.op("at",f"buffer_store_dword v{vONE}, v{vFS}, s[{sWS}:{sWS+3}], 0 offen sc1"); vm.op("p0",ld0) if GFL==1 else None
else: vm.op("at",f"buffer_atomic_add v{vT0}, v{vT3}, s[{sDBG}:{sDBG+3}], 0 offen sc0 sc1")
if opt("mw",3)==1:
    e(f"s_lshl_b32 s{sT0}, s{sTT}, 1"); e(f"s_add_u32 s{sT0}, s{sT0}, s{sTH}"); e(f"s_mul_i32 s{sT1}, s{sT0}, {98*128}"); e(f"s_mul_i32 s{sT0}, s{sT0}, {25*128}")
    e(f"v_lshlrev_b32 v{vT1}, 7, v{vL}"); e(f"v_add_u32 v{vT2}, s{sT1}, v{vT1}")
    vm.op("mw",f"global_load_dword v251, v{vT2}, s[{pW2s}:{pW2s+1}]")
    e(f"v_min_u32 v7, {33*128}, v{vT1}"); e(f"s_add_u32 s{sT1}, s{sT1}, 8192"); e(f"v_add_u32 v7, s{sT1}, v7"); e(f"v_min_u32 v{vT1}, {24*128}, v{vT1}")
    vm.op("mw",f"global_load_dword v251, v7, s[{pW2s}:{pW2s+1}]")
    vm.op("mw",f"buffer_load_dword v251, v{vT1}, s[{sWO}:{sWO+3}], s{sT0} offen")
ts("s",7); ts("m",1)
SE=opt("se",16)
def sent():
    o=[f"s_lshl4_add_u32 s{sSTB}, s{sW}, s{sJ}\n  s_lshl_b32 s{sSTB}, s{sSTB}, 11\n  s_add_u32 s{sSTB}, s{sSTB}, {WS_O}\n  s_add_u32 s{sSTB}, s{sSTB}, s{sBK}","\n  ".join(f"v_mov_b32 v{164+i}, -1" for i in range(4))]
    return o+[(lambda h=h: vm.op("h",f"buffer_store_dwordx4 v[164:167], v{vL16}, s[{sWS}:{sWS+3}], s{sSTB} offen offset:{h*1024} sc1")) for h in range(2)]
if SE:
    for x in sent(): do(x)
def gld(tag,dst,va,base,off,p="v"): vm.op(tag,f"global_load_dwordx4 {r(p,dst,4)}, v{va}, s[{base}:{base+1}] offset:{off} sc1")
def setb(b,src,off): return [f"s_add_u32 s{b}, s{src}, {off}", f"s_addc_u32 s{b+1}, s{src+1}, 0"]
def ldkv(kt,f): gld(f"kv{kt}",KV+16*(kt%4)+4*f,vL16,bKV,(kt%2)*4096-4096+f*1024)
def kvinit():
    o=[f"s_lshl_b32 s{sT1}, s{sW}, 16",f"s_add_u32 s{sT1}, s{sT1}, 4096"]+setb(bKV,pWS,f"s{sT1}")
    for kt in range(3):
        if kt==2: o+=setb(bKV,bKV,8192)
        o+=[(lambda kt=kt,f=f: ldkv(kt,f)) for f in range(4)]
    return o
ld1=f"buffer_load_dword v{vPOLL}, v{vT3}, s[{sDBG}:{sDBG+3}], 0 offen offset:128 sc1"
if GFL: ld1=f"buffer_load_dword v{vPOLL}, v{vFP}, s[{sWS}:{sWS+3}], 0 offen sc1"
PL=opt("pl",22); PC=opt("pc",24)
def h1c(ks,nm):
    if PW and ks==opt("pk",19): assert PL>ks; spin("0","p0",ld0,NZ,True)
    if ks==PC and not PW: spin(nm,"p1",ld1,None if GFL else 1,True)
def h1(ks,side,nm):
    if GFL and ks==opt("p0",9): side.insert(0,lambda: vm.op("p0",ld0))
    if ks==PL:
        if GFL and not PW: assert not side; spin("0","p0",ld0,NZ,True)
        side.insert(0,lambda: vm.op("p1",ld1))
    if ks==PC:
        assert not side
        if PW: spin(nm,"p1",ld1,None)
        ts("m",2)
        side+=[(lambda h=h: gld("kt",KT+4*h,vL16,pWS,h*1024)) for h in range(2)]+kvinit()
def trQ(c):
    for s_ in range(4):
        for h in range(2): lg.op(f"q{c}",f"ds_read_b64_tr_b16 {r('v',WF+16*(c%2)+4*s_+2*h,2)}, v{vTRB+2+s_//2} offset:{(s_%2)*RS+c*1024+h*256}")
if not NE: vm.wait("wq"); e("s_barrier")
trQ(0)
for c in range(7):
    lg.all()
    if c<6: trQ(c+1)
    if GFL and c==opt("ac",3)+2:
        if GFL==1: spin("0b","p0",ld0,NZ,True)
        if PW==1: e("s_barrier")
        vm.op("p1",ld1)
    if c==opt("ac",3) and not GFL:
        vm.wait("at"); e(f"v_readfirstlane_b32 s{sT0}, v{vT0}"); e(f"s_cmp_lg_u32 s{sT0}, 31"); e("s_cbranch_scc1 L_nogo")
        e(f"buffer_store_dword v{vONE}, v{vT3}, s[{sDBG}:{sDBG+3}], 0 offen offset:128 sc1")
        lab("L_nogo")
    for s_ in range(4): mfma(A0,WF+16*(c%2)+4*s_,16*c+4*s_,0 if c+s_==0 else None,pb="a")
if not GFL: vm.op("p1",ld1)
h1c(PC,"1b"); e("s_barrier"); side=[]; h1(PC,side,"1b")
while side: do(side.pop(0))
e("s_branch L_join"); tail.append("\n".join(L)); L=main; vm.q=qs
W0F=48; XF=144
def rdS(ks,t):
    c,s_=divmod(ks,4); sl=c%4
    if t==0:
        for h in range(2): lg.op(f"s{ks}",f"ds_read_b64_tr_b16 {r('v',W0F+4*(ks%2)+2*h,2)}, v{vTR0} offset:{(c if W7 else sl)*4096+s_*1024+h*256}")
    elif t<3: lg.op(f"s{ks}",f"ds_read_b128 {r('v',XF+8*(ks%2)+4*(t-1),4)}, v{(vXR,252)[t-1]+s_} offset:{sl*16384}")
    else:
        for h in range(2): lg.op(f"s{ks}",f"ds_read_b64_tr_b16 {r('v',WF+8*(ks%2)+4*(t-3)+2*h,2)}, v{vTRB+t-3} offset:{sl*16384+s_*2048+h*512}")
vm.wait("x0")
if GFL==2 and not ZE: zer("z2",z2)
ts("i"); ts("s",3); e("s_barrier"); e(f"v_lshlrev_b32 v{vT3}, 8, v0"); ts("m",1)
for t in range(5): rdS(0,t)
side=xdma(PD,True,True)
def warm():
    MW=opt("mw",3); n2,no,k=((50,38,3) if MW==2 else (19,5,1))
    o=[f"s_mov_b32 s4, s{pW2s}\n  s_and_b32 s5, s{pW2s+1}, 0xffff", f"s_mov_b32 s6, {1792*896}\n  s_mov_b32 s7, 0x20000",
       f"s_and_b32 s{sT0}, s{sTB}, 3\n  s_lshl2_add_u32 s{sT0}, s{sCB}, s{sT0}", f"s_mul_i32 s{sT0}, s{sT0}, 3\n  s_add_u32 s{sT0}, s{sT0}, s{sW}\n  s_sub_u32 s{sT0}, s{sT0}, 13"]
    if MW==3: o+=[f"s_lshr_b32 s{sT1}, s{sTB}, 2\n  s_lshl2_add_u32 s{sT0}, s{sT0}, s{sT1}\n  s_lshl1_add_u32 s{sT0}, s{sT0}, s{sTH}"]
    o+=[f"s_mul_i32 s{sT1}, s{sT0}, {n2*k*128}\n  s_mul_i32 s{sT0}, s{sT0}, {no*128}",
        f"s_cmp_eq_u32 s{sW}, 0\n  s_cselect_b32 s{sT1}, 0x4000000, s{sT1}\n  s_cselect_b32 s{sT0}, 0x4000000, s{sT0}",
        f"v_lshlrev_b32 v7, 7, v{vL}\n  v_mov_b32 v{vT2}, 0x4000000\n  v_cmp_gt_u32 vcc, {n2}, v{vL}\n  v_add_u32 v{vT0}, s{sT1}, v7\n  v_add_u32 v{vT1}, s{sT0}, v7\n  v_cndmask_b32 v{vT0}, v{vT2}, v{vT0}, vcc",
        f"v_cmp_gt_u32 vcc, {no}, v{vL}\n  s_mov_b32 s{sT0}, {n2*128}\n  s_mov_b32 s{sT1}, {n2*256}\n  v_cndmask_b32 v{vT1}, v{vT2}, v{vT1}, vcc"]
    o+=[(lambda x=x: vm.op("mw",f"buffer_load_dword v251, v{vT0}, s[4:7], {x} offen")) for x in ("0",f"s{sT0}",f"s{sT1}")[:k]]
    return o+[lambda: vm.op("mw",f"buffer_load_dword v251, v{vT1}, s[{sWO}:{sWO+3}], 0 offen")]
for ks in range(28):
    if ks==SE and SE: side+=sent()
    if ks==opt("mk",8) and opt("mw",3)>1: side+=warm()
    lg.wait(f"s{ks}")
    if (ks+1)%4==0 and ks<27:
        c=(ks+1)//4
        while side and c+PD<=7: do(side.pop(0))
        vm.wait(f"x{c}"); h1c(ks,"1"); e("s_barrier")
        if c in (1,3,5,6): ts("s",{1:4,3:5,5:6,6:7}[c])
        if c+PD<7: side+=xdma(c+PD,True,True)
    h1(ks,side,"1")
    for t in range(5):
        z=0 if ks==0 else None
        if t==0: mfma(A0,W0F+4*(ks%2),XF+8*(ks%2),z)
        else: mfma(B0+16*(t-1),WF+8*(ks%2)+4*((t-1)%2),XF+8*(ks%2)+4*((t-1)//2),z)
        if ks<27: rdS(ks+1,(3,4,0,1,2)[t])
        if side and (t>1 or ks>=PC): do(side.pop(0))
        if side and t==4: do(side.pop(0))
while side: do(side.pop(0))
lab("L_join")
ts("m",3); ts("s",8)
e(f"s_mul_i32 s{sT0}, s{sW}, {112*1024}"); e(f"s_lshl_b32 s{sT1}, s68, 12"); e(f"s_add_u32 s{sT0}, s{sT0}, s{sT1}"); e(f"s_add_u32 s{sT0}, s{sT0}, s{sBK}")
e(f"s_bitcmp0_b32 s{sW}, 0"); e(f"s_cselect_b32 s{sT1}, 1, -1"); e(f"s_mul_i32 s{sT1}, s{sT1}, {112*1024}"); e(f"s_add_u32 s{sT1}, s{sT1}, s{sT0}")
e(f"s_cmp_eq_u32 s{sSP}, 1"); e(f"s_cselect_b32 s{sT0}, {WS_SZ}, s{sT0}"); e(f"s_cselect_b32 s{sT1}, {WS_SZ}, s{sT1}")
e(f"s_mov_b32 s{sT2}, {f2u(math.log2(math.e)/math.sqrt(28))}")
for i in range(0 if SE else 4): e(f"v_mov_b32 v{252+i}, -1")
e(f"s_lshl_b32 s68, s{sW}, 15"); e(f"s_lshl_b32 s69, s{sJ}, 11"); e(f"s_add_u32 s68, s68, s69"); e(f"s_add_u32 s68, s68, {WS_O}"); e(f"s_add_u32 s68, s68, s{sBK}")
DH=opt("dh",3); late=[]
e(f"s_mov_b32 s{sSTB}, s68"); e(f"s_mov_b32 s{sST0}, s{sT0}"); e(f"s_mov_b32 s{sCOLB}, s{sT1}")
def sth(i,src,soff,off=0,inc=4):
    for h in range(2):
        f=lambda h=h: vm.op("h",f"buffer_store_dwordx4 {r('v',src+inc*h,4)}, v{vL16}, s[{sWS}:{sWS+3}], s{soff} offen offset:{off+h*1024} sc1")
        if DH>=i: late.append(f)
        else: f()
NS=0 if SE else 2
if not SE: sth(1,252,sSTB,0,0)
for i in range(16): e(f"v_mul_f32 v{A0+i}, s{sT2}, v{A0+i}")
pack(Q,A0)
for i in (6,7): e(f"v_cndmask_b32 v{Q+i}, v{Q+i}, 0, s[{sUP}:{sUP+1}]")
def mins(m,q):
    e(f"v_sub_f32 v{m}, 0, v{m}"); e(f"v_and_b32 v{vT0}, 0xffff0000, v{m}"); e(f"v_sub_f32 v{m}, v{m}, v{vT0}")
    e(f"v_and_b32 v{vT1}, 0xffff0000, v{m}"); e(f"v_sub_f32 v{m}, v{m}, v{vT1}")
    e(f"v_lshrrev_b32 v{vT0}, 16, v{vT0}"); e(f"v_or_b32 v{vT0}, v{vT0}, v{vT1}"); e(f"v_lshrrev_b32 v{m}, 16, v{m}")
    e(f"v_cndmask_b32 v{q+6}, v{q+6}, v{vT0}, s[{sUP}:{sUP+1}]"); e(f"v_cndmask_b32 v{q+7}, v{q+7}, v{m}, s[{sUP}:{sUP+1}]")
def halfmax(m):
    e(f"v_mov_b32 v{vT0}, v{m}"); e("s_nop 1"); e(f"v_permlane32_swap_b32 v{vT0}, v{m}"); e("s_nop 1"); e(f"v_max_f32 v{m}, v{m}, v{vT0}")
pack(40,B0,True); st2("h",40,sT0)
vm.wait("kt")
mfma(S+16,KT,Q,0); mfma(S+16,KT+4,Q+4)
pack(8,B0+16,True); sth(3,8,sST0,2048)
e(f"s_lshl_b32 s{sT0}, s{sW}, 11"); e(f"s_add_u32 s{sT0}, s{sT0}, {QX}"); e(f"v_add_u32 v{vT3}, s{sT0}, v{vL16}")
e(f"v_max3_f32 v{vT2}, v{S+16}, v{S+17}, v{S+18}")
for i in range(3,15,2): e(f"v_max3_f32 v{vT2}, v{vT2}, v{S+16+i}, v{S+17+i}")
e(f"v_max_f32 v{vT2}, v{vT2}, v{S+31}")
halfmax(vT2); mins(vT2,Q)
e(f"ds_write_b128 v{vT3}, {r('v',Q,4)}"); e(f"ds_write_b128 v{vT3}, {r('v',Q+4,4)} offset:1024")
pack(16,B0+32,True); sth(2,16,sCOLB); pack(KT,B0+48,True); sth(2,KT,sCOLB,2048)
for i in range(1,4):
    e(f"s_add_u32 s{sT0}, s{sW}, {i}"); e(f"s_and_b32 s{sT0}, s{sT0}, 3"); e(f"s_lshl_b32 s{sT0}, s{sT0}, 11"); e(f"s_add_u32 s{sT0}, s{sT0}, {QX}")
    e(f"v_add_u32 v{vT0+i}, s{sT0}, v{vL16}")
e("s_waitcnt lgkmcnt(0)"); e("s_barrier")
for i in range(1,4):
    for h in range(2): e(f"ds_read_b128 {r('v',Q+8*i+4*h,4)}, v{vT0+i} offset:{h*1024}")
lab("L_attn")
if ROT!=1: rot7()
for x in setb(4,pWS,f"s{sHO}")+setb(6,pW2s,f"s{sW2O}"): e(x)
def rotg(g,pr):
    if g==0: return [f"s_mov_b32 s{pr}, s{sROT}"]
    return [f"s_add_u32 s{pr}, s{pr}, 1", f"s_cmp_eq_u32 s{pr}, 7\n  s_cselect_b32 s{pr}, 0, s{pr}"]
def dmaw2(step):
    o=[f"s_add_u32 m0, s{sRW}, {(step%14)*2048}"]
    o+= rotg(step//4,8)+[f"s_mul_i32 s9, s8, {64*896}"]+setb(bW2,6,"s9") if step%4==0 else setb(bW2,bW2,32*896)
    return o+[(lambda i=i: vm.op(f"d{step+i//2}",f"global_load_lds_dwordx4 v{vD3+i}, s[{bW2}:{bW2+1}] offset:{i*1024}")) for i in range(4)]
def dmawo(step):
    hd=(step-28)//2
    o=[f"s_add_u32 m0, s{sRW}, {(step%14)*2048}", f"s_add_u32 s{sT2}, s{sWOO}, {hd*28*896}"]
    return o+[(lambda i=i: vm.op(f"d{step+i//2}",f"buffer_load_dwordx4 v{vD3+i}, s[{sWO}:{sWO+3}], s{sT2} offen offset:{i*1024} lds")) for i in range(4)]
def qk(t,h): mfma(S+16*(t%2),KV+16*((t//4)%4)+4*h,Q+8*(t%4)+4*h,0 if h==0 else None)
def pv(t,h): mfma(O+16*(t%4),KV+16*((t//4)%4)+8+4*h,P+4*h,0 if (t<4 and h==0) else None)
def grp(t,g):
    s=S+16*(t%2)+4*g
    for i in range(4): e(f"v_exp_f32 v{s+i}, v{s+i}")
    for i in range(2): e(f"v_cvt_pk_bf16_f32 v{P+2*g+i}, v{s+2*i}, v{s+2*i+1}")
vm.wait("kv0")
ts()
qk(0,0); qk(0,1)
e(f"v_and_b32 v{vT1}, 31, v{vL}"); e(f"v_lshlrev_b32 v{vT1}, 2, v{vT1}"); e(f"v_mul_u32_u24 v{vT2}, 896, v{vL}")
e(f"s_lshr_b32 s{sT0}, s{sW}, 1"); e(f"s_lshl_b32 s{sT0}, s{sT0}, 7"); e(f"v_xor_b32 v{vT0}, s{sT0}, v{vT1}"); e(f"v_xor_b32 v{vT3}, 0x80, v{vT0}")
e("s_waitcnt lgkmcnt(0)"); e("s_nop 3")
fixed={}
for kt in range(16):
    if kt+3<16:
        if (kt+3)%2==0:
            a=setb(bKV,bKV,8192); fixed[(4*kt,1)]=a[0]+"\n  "+a[1]
        for f in range(4): fixed[(4*kt+1,f)]=(lambda kt=kt,f=f: ldkv(kt+3,f))
    if kt<15: fixed[(4*kt+2,3)]=(lambda kt=kt: vm.wait(f"kv{kt+1}"))
ld2=f"buffer_load_dword v{vPOLL}, v{vZ}, s[{sWS}:{sWS+3}], s{sCNT} offen sc1"
SG=opt("sg",14); D0=opt("d0",4 if opt("ev",0) else 10); H0=opt("h0",30)
fifo=[]
def carry(lst):
    o=[]; i=0
    while i<len(lst):
        if isinstance(lst[i],str) and i+1<len(lst) and isinstance(lst[i+1],str) and lst[i+1].startswith("s_addc"): o.append(lst[i]+"\n  "+lst[i+1]); i+=2
        else: o.append(lst[i]); i+=1
    return o
def pace(lst,t0,t1):
    n=sum(callable(x) for x in lst); o=[]; i=0
    for x in lst:
        if callable(x): o.append((4*t0+int(i*4*(t1-t0)/n),x)); i+=1
        else: o.append((0,x))
    return o
def hloads():
    o=[]
    for ks in range(28):
        if ks%4==0: o+=rotg(ks//4,10)+["s_lshl_b32 s11, s10, 12"]+setb(bH,4,"s11")
        for u in range(2): o.append(lambda ks=ks,u=u: gld(f"h{ks}",(ks*2+u)*4,vHU+u,bH,(ks%4)*1024,"a"))
    return o
def gloads():
    o=[f"s_add_u32 s{sT2}, s{sBK}, {WS_G}", f"s_lshl_b32 s{sT0}, s{sTH}, 8", f"s_add_u32 s{sT0}, s{sT0}, s{sT2}",
       f"s_lshl_b32 s{sT1}, s{sW}, 7", f"s_add_u32 s{sT1}, s{sT1}, s{sT2}"]
    o+=[lambda: vm.op("g",f"buffer_load_dword v{vGO}, v{vT1}, s[{sWS}:{sWS+3}], s{sT1} offen sc1")]
    o+=[(lambda u=u: vm.op("g",f"buffer_load_dword v{vG+u}, v{(vT0,vT3)[u]}, s[{sWS}:{sWS+3}], s{sT0} offen sc1")) for u in range(2)]
    return o
NP=opt("np",6); NB=5
def wloc(st):
    if st<4: return ("a",224+8*st)
    if st<NP: return ("v",8+8*(st-4))
    if st<28: return ("v",WG+8*((st-NP)%NB))
    return ("a",8*(st-28))
def tr3(st,t,h):
    p,b_=wloc(st)
    lg.op(f"w{st}",f"ds_read_b64_tr_b16 {r(p,b_+4*t+2*h,2)}, v{vTR3+t} offset:{(st%14)*2048+h*1024}")
def early():
    o=[]
    for s2 in range(0,NP,2):
        y=[(lambda st=st,t=t,h=h: tr3(st,t,h)) for st in (s2,s2+1) for t in range(2) for h in range(2)]
        if opt("rd",2)==2: y=[(lambda a=y[i],b=y[i+1]: (a(),b())) for i in range(0,len(y),2)]
        o+=[lambda s2=s2,y0=y[0]: (vm.wait(f"d{s2+1}"),chk45() if s2>=4 else None,y0())]+y[1:]
        x=carry(dmaw2(14+s2)); o+=x[:-4]+[lambda s2=s2,x0=x[-4]: (lg.wait(f"w{s2+1}"),x0())]+x[-3:]
    return o
class U:
    def __init__(s,f): s.f=f
    def __call__(s): s.f()
def chk45(): assert vm.n("h") is None
def even():
    G=[]; RD=opt("rd",2)
    for k in range(7+NP//2):
        x=carry(dmaw2(2*k)); pre=x[:-4]; s2=2*(k-7+NP//2)
        y=[(lambda st=st,t=t,h=h: tr3(st,t,h)) for st in (s2,s2+1) for t in range(2) for h in range(2)] if 0<=s2<NP else []
        if y: y[0]=(lambda s2=s2,y0=y[0]: (vm.wait(f"d{s2+1}"),chk45() if s2>=4 else None,y0()))
        if RD==2: y=[(lambda a=y[i],b=y[i+1]: (a(),b())) for i in range(0,len(y),2)]
        if k>=7: x[-4]=(lambda x0=x[-4],k=k: (lg.wait(f"w{2*(k-7)+1}"),x0()))
        for i in range(4):
            n=len(y)//4
            G.append((pre if i==0 else [])+[x[-4+i]]+[U(f) for f in y[i*n:(i+1)*n]])
    D1=opt("d2",H0-1)
    G=[(4*D0+int(i*4*(D1-D0)/len(G)),g) for i,g in enumerate(G)]+[(tm,[x]) for tm,x in pace(late[NS:]+late[:NS],0,opt("l1",8))]
    G.sort(key=lambda a:a[0])
    return [(tm if callable(x) and not isinstance(x,U) else 0,x) for tm,g in G for x in g]
EV=opt("ev",0)
for t in range(64):
    if t==0 and EV: fifo+=even()
    if t==SG: assert "h" in vm.seen and not any(x in late for _,x in fifo)
    if t==0 and late and not EV: fifo+=pace(late[NS:]+late[:NS],0,opt("l1",8))
    if t in (0,6,8,16,24,28,36,48,63): ts("a")
    if t==SG: fifo=[(0,lambda: vm.wait("h")), (0,lambda: vm.op("s2",f"buffer_atomic_add v{vONE}, v{vSIG}, s[{sWS}:{sWS+3}], s{sCNT} offen sc1"))]+fifo
    if t==D0 and not EV: fifo+=pace(sum([carry(dmaw2(s)) for s in range(0,14,2)],[]),D0,opt("d1",22))+pace(early(),opt("d1",22),H0-1)
    if t==H0-5: fifo=[(0,lambda: vm.op("p2",ld2))]+fifo
    if t==H0: fifo+=pace([lambda: spin("2","p2",ld2,64)]+carry(hloads())+gloads(),H0,opt("h1",62))
    ms=[(lambda: qk(t+1,0)) if t<63 else None,(lambda: qk(t+1,1)) if t<63 else None,(lambda: pv(t-1,1)) if t>0 else None,lambda: pv(t,0)]
    for g in range(4):
        if ms[g]:
            ms[g]()
            if (t,g) in fixed: do(fixed[(t,g)])
            elif fifo and fifo[0][0]<=4*t+g:
                x=fifo.pop(0)[1]; do(x)
                if isinstance(x,str) and fifo and isinstance(fifo[0][1],str) and opt("m2",1): do(fifo.pop(0)[1])
        grp(t,g)
print("fifo left",len(fifo),file=sys.stderr)
while fifo: do(fifo.pop(0)[1])
e("s_nop 1"); pv(63,1)
ts()
red=[]
def A(x): red.append(x)
for i in range(1,4):
    e(f"s_add_u32 s{sT0}, s{sW}, {i}"); e(f"s_and_b32 s{sT0}, s{sT0}, 3"); e(f"s_mul_i32 s{sT0}, s{sT0}, 12288"); e(f"s_add_u32 s{sT0}, s{sT0}, {RED+(i-1)*4096}")
    e(f"v_add_u32 v{vT0+i}, s{sT0}, v{vL16}")
e(f"v_add_f32 v7, v{O+12}, v{O+28}"); e(f"v_add_f32 v7, v7, v{O+44}"); e(f"v_add_f32 v7, v7, v{O+60}")
e(f"v_cmp_ngt_f32 vcc, {f2u(2.0**40 if not FORCE_FB else -1.0)}, v7"); e(f"s_and_b64 vcc, vcc, s[{sUP}:{sUP+1}]")
e(f"s_cselect_b32 s{sT1}, 1.0, 0"); e(f"v_mov_b32 v7, s{sT1}")
for q in range(4): e(f"v_cndmask_b32 v{O+16*q+15}, v{O+16*q+15}, v7, s[{sUP}:{sUP+1}]")
e(f"s_mul_i32 s{sT0}, s{sW}, 12288"); e(f"s_add_u32 s{sT0}, s{sT0}, {RED}"); e(f"v_add_u32 v{vT0}, s{sT0}, v{vL16}")
for i in range(1,4):
    for q in range(4): A([lambda i=i,q=q: lg.op("rw",f"ds_write_b128 v{vT0+i}, {r('v',O+16*i+4*q,4)} offset:{q*1024}")])
A([lambda: lg.wait("rw"),"s_barrier"])
for i in range(0,12,2): A([(lambda i=i+k: lg.op(f"rr{i//4}",f"ds_read_b128 {r('v',O+16+4*i,4)}, v{vT0} offset:{i*1024}")) for k in range(2)])
V=[]
for i in range(3): V+=[lambda i=i: lg.wait(f"rr{i}")]+[f"v_add_f32 v{O+k}, v{O+k}, v{O+16+16*i+k}" for k in (12,15,13,14,*range(12))]
V+=[lambda: vm.wait("g"), f"v_readlane_b32 s{sT0}, v{O+15}, 32\n  v_rcp_f32 v{vT0}, v{O+12}\n  s_cmp_lg_u32 s{sT0}, 0\n  s_cbranch_scc1 L_fb\nL_fbok:",
    f"v_mul_f32 v{vT0}, v{vT0}, v{vGO}", f"v_mov_b32 v{vT1}, v{vT0}\n  s_nop 1\n  v_permlane32_swap_b32 v{vT0}, v{vT1}\n  s_nop 1"]
V+=[f"v_mul_f32 v{O+k}, v{O+k}, v{vT1}" for k in range(16)]
V+=[f"v_cvt_pk_bf16_f32 v{Q+i}, v{O+2*i}, v{O+2*i+1}" for i in range(8)]
V+=[f"v_cndmask_b32 v{Q+i}, v{Q+i}, 0, s[{sUP}:{sUP+1}]" for i in (6,7)]
V+=[lambda: st2("o",Q,68), lambda: ts()]
V+=[f"s_cmp_eq_u32 s{sCB}, 7\n  s_cbranch_scc1 L_idle"]
tail.append("L_idle:\n  s_waitcnt vmcnt(0) lgkmcnt(0)\n  s_branch L_fin")
FG=opt("fg",6)
for i in range(0,len(V),FG): A(V[i:i+FG])
O0=opt("o0",19); R0=opt("r0",3)
dq=[]; rq=[(st,t,h) for st in range(NP,36) for t in range(2) for h in range(2)]; nd=14+NP
old=[(lambda s=s,u=u: gld(f"o{u}",OF+(s*2+u)*4,vOU+u,bH,s*1024-4096)) for u in (1,0) for s in range(8)]
def canread(x,st):
    return f"d{x}" in vm.seen and (x-NB<max(st,NP) if x<28 else st>=8)
for st in range(28):
    if st in (0,4,10,16,22): ts("p")
    if st==O0: assert not red; dq=carry(setb(bH,pWS,f"s{sOO}"))+old+dq
    vm.wait(f"h{st}")
    assert not rq or rq[0][0]>st
    lg.wait(f"w{st}")
    k=0
    for u in (1,0):
        for t in (1,0):
            p,b_=wloc(st)
            mfma(AB+32*u+16*t,b_+4*t,(st*2+u)*4,0 if st==0 else None,pa=p,pb="a")
            for _ in range(0 if st<R0 else (1 if red else 2)):
                if rq and canread(rq[0][0],st) and (rq[0][0]<=st+2 or vm.n(f"d{rq[0][0]}") is None or vm.n(f"d{rq[0][0]}")>=opt("dl",8)):
                    vm.wait(f"d{rq[0][0]}"); tr3(*rq.pop(0))
            if nd<36 and (not rq or rq[0][0]>nd-13) and lg.n(f"w{nd-13}")!=0:
                x=carry(dmaw2(nd) if nd<28 else dmawo(nd)); dq+=x[:-4]+[lambda nd=nd: lg.wait(f"w{nd-13}")]+x[-4:]; nd+=2
            if red:
                for x in red.pop(0): do(x)
            for _ in range(1 if red else 2):
                if dq: do(dq.pop(0))
            k+=1
print("left dq",len(dq),"rq",len(rq),"nd",nd,file=sys.stderr); assert nd==36
while dq: do(dq.pop(0))
while rq: vm.wait(f"d{rq[0][0]}"); tr3(*rq.pop(0))
for u in range(2): e(f"v_sub_f32 v{vG+u}, 1.0, v{vG+u}")
for i in range(1,4):
    e(f"s_xor_b32 s{sT0}, s{sW}, {i}"); e(f"s_mul_i32 s{sT0}, s{sT0}, {RS}")
    e(f"v_add_u32 v{vT0+i}, s{sT0}, v{vL16}")
e(f"v_add_u32 v{vT0}, s{sRW}, v{vL16}"); e("s_mov_b32 s69, 0")
def scl(q): return [f"v_mul_f32 v{AB+16*q+k}, v{vG+q//2}, v{AB+16*q+k}" for k in range(16)]
ts("p")
for x in scl(3): e(x)
lab("L_ochk"); vm.all()
e(f"v_max3_u32 v7, v{OF}, v{OF+1}, v{OF+2}"); e(f"v_max3_u32 v{vPOLL}, v{OF+3}, v{OF+4}, v{OF+5}")
for i in range(6,62,4): e(f"v_max3_u32 v7, v7, v{OF+i}, v{OF+i+1}"); e(f"v_max3_u32 v{vPOLL}, v{vPOLL}, v{OF+i+2}, v{OF+i+3}")
e(f"v_max3_u32 v7, v7, v{OF+62}, v{OF+63}"); e(f"v_max_u32 v7, v7, v{vPOLL}"); e(f"v_cmp_eq_u32 vcc, -1, v7"); lg.all(); e("s_cbranch_vccnz L_oretry"); lab("L_ook")
main=L; L=[]; lab("L_oretry"); e("s_add_u32 s69, s69, 1"); e("s_cmp_ge_u32 s69, 0x10000"); e("s_cbranch_scc1 L_ook")
for x in old: x()
e("s_branch L_ochk"); tail.append("\n".join(L)); L=main; vm.q=[]
ts("mp")
fin=[f"v_and_b32 v7, 31, v{vL}",f"v_mul_u32_u24 v7, 896, v7",f"v_lshrrev_b32 v{vPOLL}, 5, v{vL}",f"v_lshl_add_u32 v7, v{vPOLL}, 4, v7",
     f"s_lshl_b32 s{sT0}, s{sTB}, 2",f"s_lshl_b32 s{sT1}, s{sTH}, 1",f"s_add_u32 s{sT0}, s{sT0}, s{sT1}",f"s_lshr_b32 s{sT1}, s{sW}, 1",f"s_add_u32 s{sT0}, s{sT0}, s{sT1}",
     f"s_mul_i32 s{sT0}, s{sT0}, {32*896}",f"s_lshl_b32 s{sT1}, s{sCB}, 7",f"s_add_u32 s{sT0}, s{sT0}, s{sT1}",f"s_and_b32 s{sT1}, s{sW}, 1",f"s_lshl_b32 s{sT1}, s{sT1}, 6",f"s_add_u32 s{sT0}, s{sT0}, s{sT1}"]
OT=opt("ot",1)
if OT:
    fin=[f"v_and_b32 v8, 31, v{vL}",f"v_mul_u32_u24 v8, 80, v8",f"v_lshrrev_b32 v9, 5, v{vL}",f"v_lshl_add_u32 v8, v9, 3, v8",f"v_add_u32 v8, s{sRW}, v8",
         f"v_lshrrev_b32 v9, 2, v{vL}",f"v_and_b32 v10, 48, v{vL16}",f"v_mul_u32_u24 v7, 896, v9",f"v_mul_u32_u24 v9, 80, v9",f"v_add_u32 v7, v7, v10",f"v_add3_u32 v9, v9, v10, s{sRW}"]+fin[4:]+[f"s_add_u32 s{sT1}, s{sT0}, {16*896}"]
for q in (3,2,1,0):
    t,u=q%2,q//2
    sc=scl(q-1) if q>0 else []
    for s in range(8):
        mfma(AB+16*q,8*s+4*t,OF+(s*2+u)*4,None,pa="a")
        if q>0:
            if s>=3 and s<7 and q<3: lg.op("fw",f"ds_write_b128 v{vT0}, {r('v',AB+16*(q+1)+4*(s-3),4)} offset:{q*4096+(s-3)*1024}")
            for _ in range(4 if s<4 else 2):
                if s<4: e(sc.pop(0))
                elif fin: e(fin.pop(0))
        else:
            if s<2: e("s_nop 4")
            elif s<4:
                for k in range(2): lg.op("fw",f"ds_write_b128 v{vT0}, {r('v',AB+16+8*(s-2)+4*k,4)} offset:{(2*(s-2)+k)*1024}")
            elif s==5: lg.all(); e("s_barrier")
            if s>=5:
                for i in range(4*(s-5),4*(s-4)): lg.op(f"fr{i//4}",f"ds_read_b128 {r('v',WG+4*i,4)}, v{vT0+1+i//4} offset:{i*1024}")
ts("mp")
lg.wait("fr1")
for k in range(16): e(f"v_add_f32 v{WG+k}, v{WG+k}, v{WG+16+k}")
lg.wait("fr2")
for k in range(16): e(f"v_add_f32 v{AB+k}, v{AB+k}, v{WG+32+k}")
assert not fin
OM=('','sc1','nt','sc0 sc1','sc1 nt')[opt('os',1)]
if OT:
    for g in range(4):
        for k in range(4*g,4*g+4): e(f"v_add_f32 v{AB+k}, v{AB+k}, v{WG+k}")
        for i in (2*g,2*g+1): e(f"v_cvt_pk_bf16_f32 v{Q+i}, v{AB+2*i}, v{AB+2*i+1}")
        e(f"ds_write_b64 v8, {r('v',Q+2*g,2)} offset:{16384+16*g}")
    for p in range(2): e(f"ds_read_b128 {r('v',Q+8+4*p,4)}, v9 offset:{16384+p*16*80}")
    for p in range(2): e(f"s_waitcnt lgkmcnt({1-p})"); e(f"buffer_store_dwordx4 {r('v',Q+8+4*p,4)}, v7, s[{sOUT}:{sOUT+3}], s{(sT0,sT1)[p]} offen {OM}")
else:
    for k in range(16): e(f"v_add_f32 v{AB+k}, v{AB+k}, v{WG+k}")
    pack(Q,AB); e("s_nop 1")
for p in range(0 if OT else 2):
    e(f"v_permlane32_swap_b32 v{Q+4*p}, v{Q+4*p+2}"); e(f"v_permlane32_swap_b32 v{Q+4*p+1}, v{Q+4*p+3}")
    e(f"buffer_store_dwordx4 {r('v',Q+4*p,4)}, v7, s[{sOUT}:{sOUT+3}], s{sT0} offen offset:{p*32} {OM}")
ts("p"); lab("L_fin")
if TS:
    e("s_waitcnt vmcnt(0)"); ts(); e("s_waitcnt lgkmcnt(0)")
    for i in range(tsn[0]): e(f"v_writelane_b32 v7, s{sTS+2*i}, {i}")
    e(f"s_lshl_b32 s{sT0}, s91, 2"); e(f"s_add_u32 s{sT0}, s{sT0}, s{sW}"); e(f"s_lshl_b32 s{sT0}, s{sT0}, 8"); e(f"s_add_u32 s{sT0}, s{sT0}, {WS_T}")
    e(f"v_lshlrev_b32 v{vT0}, 2, v{vL}"); e(f"buffer_store_dword v7, v{vT0}, s[{sWS}:{sWS+3}], s{sT0} offen")
e("s_endpgm")
for t in tail: L.append(t)
lab("L_fb")
e(f"s_cmp_lg_u32 s{sPASS}, 0"); e("s_cbranch_scc1 L_fbok"); e(f"s_mov_b32 s{sPASS}, 1"); e("s_waitcnt vmcnt(0) lgkmcnt(0)"); e("s_nop 15")
M=P
for x in (sSTB,sST0,sCOLB): e(f"s_mov_b32 s{x}, {WS_SZ}")
for q in range(4):
    e(f"v_mov_b32 v{M+q}, 0xff800000")
    for i in (6,7): e(f"v_cndmask_b32 v{Q+8*q+i}, v{Q+8*q+i}, 0, s[{sUP}:{sUP+1}]")
e(f"s_lshl_b32 s{sT3}, s{sW}, 16"); e(f"s_mov_b32 s{sT2}, 16")
lab("L_fbl")
for h in range(2): e(f"buffer_load_dwordx4 {r('v',KT+4*h,4)}, v{vL16}, s[{sWS}:{sWS+3}], s{sT3} offen offset:{h*1024} sc1")
e("s_waitcnt vmcnt(0)")
for q in range(4):
    mfma(S,KT,Q+8*q,0); mfma(S,KT+4,Q+8*q+4); e("s_nop 15")
    for i in range(0,16,2): e(f"v_max3_f32 v{M+q}, v{M+q}, v{S+i}, v{S+i+1}")
e(f"s_add_u32 s{sT3}, s{sT3}, 4096"); e(f"s_sub_u32 s{sT2}, s{sT2}, 1"); e(f"s_cmp_lg_u32 s{sT2}, 0"); e("s_cbranch_scc1 L_fbl")
e("s_barrier")
e(f"v_lshlrev_b32 v{vT2}, 2, v{vL}")
for q in range(4):
    halfmax(M+q)
    e(f"s_add_u32 s{sT0}, s{sW}, {q}"); e(f"s_and_b32 s{sT0}, s{sT0}, 3"); e(f"s_lshl_b32 s{sT0}, s{sT0}, 10"); e(f"s_add_u32 s{sT0}, s{sT0}, {RED}")
    e(f"v_add_u32 v{S+q}, s{sT0}, v{vT2}"); e(f"ds_write_b32 v{S+q}, v{M+q} offset:{q*256}")
e("s_waitcnt lgkmcnt(0)"); e("s_barrier")
for q in range(4):
    for i in range(4): e(f"ds_read_b32 v{S+4+i}, v{S+q} offset:{i*256}")
    e("s_waitcnt lgkmcnt(0)"); e(f"v_max3_f32 v{M+q}, v{S+4}, v{S+5}, v{S+6}"); e(f"v_max_f32 v{M+q}, v{M+q}, v{S+7}")
    mins(M+q,Q+8*q)
for x in kvinit(): do(x)
e("s_waitcnt vmcnt(0)"); e("s_barrier"); e("s_branch L_attn")
lab("L_end"); e("s_endpgm")
L.append(f""".section .rodata,"a"
.p2align 6
.amdhsa_kernel {NAME}_kernel
  .amdhsa_next_free_vgpr 512
  .amdhsa_next_free_sgpr 102
  .amdhsa_accum_offset 256
  .amdhsa_group_segment_fixed_size 0
  .amdhsa_kernarg_size 96
  .amdhsa_user_sgpr_count 2
  .amdhsa_user_sgpr_kernarg_segment_ptr 1
  .amdhsa_system_sgpr_workgroup_id_x 1
.end_amdhsa_kernel""")
out=[a for a in sys.argv[1:] if a.endswith(".s")]
open(out[0] if out else f"cdna_kernels/{NAME}.s","w").write("\n".join(L)+"\n")
```

```python
import sys, math, struct
NAME="gated_mix__grouped_kv_mqa__dense_activation_relu__prompt"
TC = "tc" in sys.argv
TS = "ts" in sys.argv or TC
FORCE_FB = "fb" in sys.argv
import re
DROP=[a[5:] for a in sys.argv if a.startswith("drop=")]
L=[]
def e(s): L.append("  "+s)
def lab(s): L.append(s+":")
def f2u(x): return "0x%08x"%struct.unpack("<I",struct.pack("<f",x))[0]
class VM:
    def __init__(s): s.q=[]; s.seen=set(); s.cnt={}
    def op(s,tag,txt):
        s.seen.add(tag); s.cnt[tag]=s.cnt.get(tag,0)+1
        for d in DROP:
            if re.fullmatch(d,tag): return
        e(txt); s.q.append(tag)
    def n(s,tag):
        assert tag in s.seen, tag
        idx=[i for i,t in enumerate(s.q) if t==tag]
        if not idx: return None
        return len(s.q)-1-idx[-1]
    def wait(s,tag):
        n=s.n(tag)
        if n is None: return
        n=min(n,63); e(f"s_waitcnt vmcnt({n})"); s.q=s.q[len(s.q)-n:] if n else []
    def all(s): e("s_waitcnt vmcnt(0)"); s.q=[]
vm=VM()
class LG(VM):
    def wait(s,tag):
        n=s.n(tag)
        if n is None: return
        n=min(n,15); e(f"s_waitcnt lgkmcnt({n})"); s.q=s.q[len(s.q)-n:] if n else []
    def all(s): e("s_waitcnt lgkmcnt(0)"); s.q=[]
lg=LG()
def opt(name,d):
    v=[a.split("=")[1] for a in sys.argv if a.startswith(name+"=")]
    return int(v[0]) if v else d
def r(p,a,n): return f"{p}[{a}:{a+n-1}]"
def mfma(d,a,b,c=None,pa="v",pb="v"):
    cc = "0" if c==0 and c is not None else r("v",d,16)
    e(f"v_mfma_f32_32x32x16_bf16 {r('v',d,16)}, {r(pa,a,4)}, {r(pb,b,4)}, {cc}")
WS_KV=0; WS_H=0; WS_O=0x70000; WS_G=0x90000; WS_C=0x91000; WS_PAD=0xa0000; WS_T=0x1800000; WS_SZ=0x2000000
RS=28672; W0B=4*RS; QX=147456; XA=0; WBA=65536; W0A=131072; RED=114688
sX,sW0,sWB,sWS,sWO,sOUT,sDBG=8,12,16,20,24,28,32
bKV,bH,bW2,pW2s=36,38,40,42
sTB,sJ,sW,sRW,sST0,sROT,sSTB,sCOLB,sT0,sT1,sT2,sT3,sTT,sPASS,sCNT,sSP,sHO,sW2O,sWOO,sOO,sTH,sCB=range(44,66)
sUP=66; sBK=2; sXB=93; sTS=70; sPR=3
tsn=[0]
TSET=[a[4:] for a in sys.argv if a.startswith("set=")]; TSET=TSET[0] if TSET else "m"
def ts(k="m",idx=None):
    if TS and (TSET in k or k=="*"):
        if idx is not None: tsn[0]=idx
        e(f"{'s_memtime' if TC else 's_memrealtime'} s[{sTS+2*tsn[0]}:{sTS+2*tsn[0]+1}]"); tsn[0]+=1
def srd(d,b,size):
    e(f"s_mov_b32 s{d}, s{b}"); e(f"s_and_b32 s{d+1}, s{b+1}, 0xffff")
    e(f"s_mov_b32 s{d+2}, {size}"); e(f"s_mov_b32 s{d+3}, 0x20000")
vL,vL16,vT0,vT1,vT2,vT3=1,2,3,4,5,6
vXA=8;vXR=12;vW0A=16;vWBA=17;vTR0=21;vTRB=22;vTR3=26;vPOLL=28;vGO=29;vG=30;vD3=240;vHU=244;vOU=246;vONE=248;vSIG=249;vZ=250
WF=32;PK=48;B0=64;A0=128
Q=32;O=64;S=128;P=160;KV=168;KT=232
OF=64;WG=192;AB=128
hdr=open(f"cdna_kernels/{NAME}.s.ref").read().split("; Override")[0]
L.append(hdr.rstrip())
L.append("; @launch grid=(256,1,1) block=(256,1,1) lds=163840")
L.append(f'.amdgcn_target "amdgcn-amd-amdhsa--gfx950"\n.text\n.globl {NAME}_kernel\n.p2align 8\n.type {NAME}_kernel,@function\n{NAME}_kernel:')
e("s_cmp_ge_u32 s2, 256"); e("s_cbranch_scc1 L_end")
ts("*")
e("s_load_dwordx16 s[8:23], s[0:1], 0"); e("s_load_dwordx8 s[92:99], s[0:1], 64")
e(f"v_lshrrev_b32 v{vT0}, 6, v0"); e(f"v_and_b32 v{vL}, 63, v0")
if opt("map",1):
    e(f"s_bfe_u32 s{sT0}, s2, 0x20001"); e(f"v_readfirstlane_b32 s{sW}, v{vT0}")
    e(f"s_lshl_b32 s{sT0}, s{sT0}, 2"); e(f"s_bfe_u32 s{sT1}, s2, 0x20003"); e(f"s_or_b32 s{sTB}, s{sT0}, s{sT1}")
    e(f"s_and_b32 s{sTH}, s2, 1"); e(f"s_lshr_b32 s{sCB}, s2, 5")
else:
    e(f"s_and_b32 s{sT0}, s2, 7"); e(f"v_readfirstlane_b32 s{sW}, v{vT0}")
    e(f"s_lshl_b32 s{sT0}, s{sT0}, 1"); e(f"s_bfe_u32 s{sT1}, s2, 0x10003"); e(f"s_or_b32 s{sTB}, s{sT0}, s{sT1}")
    e(f"s_bfe_u32 s{sTH}, s2, 0x10004"); e(f"s_lshr_b32 s{sCB}, s2, 5")
e(f"s_lshl_b32 s{sJ}, s{sTH}, 3"); e(f"s_or_b32 s{sJ}, s{sJ}, s{sCB}")
e(f"v_lshlrev_b32 v{vL16}, 4, v{vL}")
if TS: e("s_mov_b32 s91, s2")
e(f"s_add_u32 s{sBK}, s{sTB}, 1"); e(f"s_lshl_b32 s{sBK}, s{sBK}, 20")
e(f"s_mul_i32 s{sRW}, s{sW}, {RS}")
e(f"s_lshl_b32 s{sTT}, s{sTB}, 2"); e(f"s_add_u32 s{sTT}, s{sTT}, s{sW}")
def rot7():
    e(f"s_lshl_b32 s{sT0}, s{sTB}, 1"); e(f"s_add_u32 s{sT0}, s{sT0}, s{sJ}"); e(f"s_mul_i32 s{sT1}, s{sT0}, 37"); e(f"s_lshr_b32 s{sT1}, s{sT1}, 8")
    e(f"s_mul_i32 s{sT1}, s{sT1}, 7"); e(f"s_sub_u32 s{sROT}, s{sT0}, s{sT1}")
ROT=opt("rot",1)
if ROT==1: rot7()
if ROT==0: e(f"s_mov_b32 s{sROT}, 0")
if ROT==2: e(f"s_add_u32 s{sT0}, s{sTB}, s{sCB}"); e(f"s_and_b32 s{sT0}, s{sT0}, 1"); e(f"s_mul_i32 s{sROT}, s{sT0}, 3")
if ROT==3: e(f"s_add_u32 s{sT0}, s{sTB}, s{sCB}"); e(f"s_mul_i32 s{sT1}, s{sT0}, 43"); e(f"s_lshr_b32 s{sT1}, s{sT1}, 7"); e(f"s_mul_i32 s{sT1}, s{sT1}, 3"); e(f"s_sub_u32 s{sT0}, s{sT0}, s{sT1}"); e(f"s_lshl_b32 s{sROT}, s{sT0}, 1")
if ROT==4: e(f"s_and_b32 s{sT0}, s{sTB}, 1"); e(f"s_mul_i32 s{sROT}, s{sT0}, 3")
if ROT==5: e(f"s_and_b32 s{sT0}, s{sTB}, 3"); e(f"s_lshl_b32 s{sROT}, s{sT0}, 1")
if ROT==6: e(f"s_cmp_eq_u32 s{sCB}, 7"); e(f"s_cselect_b32 s{sROT}, 0, s{sCB}")
e(f"v_lshrrev_b32 v7, 3, v{vL}"); e(f"v_mul_u32_u24 v{vT0}, 896, v7")
e(f"v_and_b32 v{vT1}, 7, v{vL}"); e(f"v_lshrrev_b32 v{vT2}, 4, v{vL}"); e(f"v_xor_b32 v{vT2}, v{vT1}, v{vT2}")
e(f"v_lshl_add_u32 v{vXA}, v{vT2}, 4, v{vT0}")
e(f"v_xor_b32 v{vT2}, 4, v{vT2}"); e(f"v_lshl_add_u32 v{vXA+1}, v{vT2}, 4, v{vT0}")
e(f"v_add_u32 v{vXA+2}, {2*6144}, v{vXA}"); e(f"v_add_u32 v{vXA+3}, {3*6144}, v{vXA+1}"); e(f"v_add_u32 v{vXA+1}, 6144, v{vXA+1}")
e(f"v_bfe_u32 v{vT2}, v{vL}, 4, 1"); e(f"v_lshlrev_b32 v{vT2}, 2, v{vT2}"); e(f"v_xor_b32 v{vT2}, v{vT1}, v{vT2}"); e(f"v_lshlrev_b32 v{vWBA}, 4, v{vT2}")
e(f"v_add_u32 v{vD3}, v{vWBA}, v{vT0}")
e(f"v_lshrrev_b32 v{vT0}, 2, v{vL}"); e(f"v_and_b32 v{vT1}, 3, v{vL}"); e(f"v_lshlrev_b32 v{vT1}, 4, v{vT1}")
e(f"s_cmp_lt_u32 s{sCB}, 1"); e(f"s_cselect_b32 s{sSP}, 1, 0")
ts("i"); e("s_waitcnt lgkmcnt(0)")
ts("si")
pG,pOUT,pDBG,pWS=92,94,96,98
TW=opt("tw",1)
if TW&1:
    for p in (8,10,20,12,14,22,16,pOUT): e(f"s_load_dword s90, s[{p}:{p+1}], 0")
    e(f"s_load_dword s90, s[{pWS}:{pWS+1}], {WS_PAD}"); e(f"s_add_u32 s{sT0}, s{sBK}, {WS_PAD}"); e(f"s_load_dword s90, s[{pWS}:{pWS+1}], s{sT0}")
e("s_mov_b64 s[4:5], s[20:21]"); e("s_mov_b64 s[6:7], s[10:11]"); e(f"s_mov_b64 s[{pW2s}:{pW2s+1}], s[22:23]")
srd(sWO,16,401408)
e("s_mov_b64 s[100:101], s[12:13]"); e(f"s_mov_b32 s{sST0}, 56"); e(f"s_mov_b32 s{sT3}, 25088"); e(f"s_mov_b32 s{sT2}, 0")
e(f"s_cmp_eq_u32 s{sJ}, 0"); e("s_cbranch_scc1 L_w0done")
e("s_mov_b64 s[100:101], s[14:15]")
e(f"s_cmp_eq_u32 s{sJ}, 8"); e("s_cbranch_scc1 L_w0done")
e("s_mov_b64 s[100:101], s[6:7]"); e(f"s_mov_b32 s{sST0}, 896"); e(f"s_mov_b32 s{sT3}, 401408"); e(f"s_mul_i32 s{sT2}, s{sJ}, 56")
lab("L_w0done")
srd(sW0,100,f"s{sT3}"); srd(sX,8,1835008)
e(f"v_mad_u32_u24 v{vW0A}, v{vT0}, s{sST0}, v{vT1}")
e(f"s_lshl_b32 s{sST0}, s{sST0}, 4"); e(f"s_mul_i32 s{sT1}, s{sW}, s{sST0}"); e(f"s_add_u32 s{sT2}, s{sT2}, s{sT1}"); e(f"s_lshl_b32 s{sST0}, s{sST0}, 2")
e(f"s_mul_i32 s{sT3}, s{sTT}, {32*896}")
def rotc(c):
    if c==0: e(f"s_mov_b32 s{sPR}, s{sROT}")
    else: e(f"s_add_u32 s{sPR}, s{sPR}, 1"); e(f"s_cmp_eq_u32 s{sPR}, 7"); e(f"s_cselect_b32 s{sPR}, 0, s{sPR}")
e(f"s_lshl_b32 s{sT0}, s{sCB}, 1"); e(f"s_mul_i32 s{sT1}, s{sTH}, 14"); e(f"s_add_u32 s68, s{sT0}, s{sT1}"); e(f"s_sub_u32 s68, s68, 2")
e(f"s_lshr_b32 s{sT1}, s{sW}, 1"); e(f"s_add_u32 s{sT0}, s68, s{sT1}"); e(f"s_lshl_b32 s{sCOLB}, s{sT0}, 7")
e(f"s_and_b32 s{sT0}, s{sW}, 1"); e(f"s_add_u32 s68, s68, s{sT0}"); e(f"s_mul_i32 s{sT0}, s{sT0}, {32*3584}"); e(f"s_add_u32 s{sCOLB}, s{sCOLB}, s{sT0}")
srd(sWB,4,1605632); e(f"s_mov_b32 s{sSTB}, 3584")
e(f"v_mad_u32_u24 v{vWBA}, v7, s{sSTB}, v{vWBA}")
for i in range(1,4): e(f"v_add_u32 v{vWBA+i}, {8*3584-1024}, v{vWBA+i-1}")
e(f"s_mov_b64 s[100:101], s[{pG}:{pG+1}]")
PD=opt("pd",2)
e(f"s_lshl_b32 s92, s{sW}, 10"); e(f"s_lshl_b32 s{sXB}, s{sW}, 12")
MOD=('','sc1','nt','sc0 sc1','sc1 nt','sc0')
W7=opt("w7",0)
def xdma(c,sweep,wb):
    o=xdma_(c,sweep,wb)
    return o[:1]+o[3:] if sweep and PD<=c<W7 else o
def xdma_(c,sweep,wb):
    o=[lambda: rotc(c), f"s_mul_i32 s{sT1}, s{sPR}, s{sST0}\n  s_add_u32 m0, s92, {(W0A+(c if W7 else c%4)*4096) if sweep else (W0B+c*4096)}\n  s_add_u32 s{sT1}, s{sT1}, s{sT2}",
       lambda: vm.op(f"x{c}",f"buffer_load_dwordx4 v{vW0A}, s[{sW0}:{sW0+3}], s{sT1} offen {MOD[opt('qm',0)]} lds"),
       f"s_lshl_b32 s{sT1}, s{sPR}, 7\n  s_add_u32 m0, s{sXB}, {(c%4)*16384 if sweep else c*4096}\n  s_add_u32 s{sT1}, s{sT1}, s{sT3}"]
    o+=[(lambda i=i: vm.op(f"x{c}",f"buffer_load_dwordx4 v{vXA+i}, s[{sX}:{sX+3}], s{sT1} offen offset:{i*1024} {MOD[opt('xm',0)]} lds")) for i in range(4)]
    if wb:
        o+=[f"s_mul_i32 s{sT1}, s{sPR}, {64*3584}\n  s_add_u32 m0, s{sXB}, {WBA+(c%4)*16384}\n  s_add_u32 s{sT1}, s{sT1}, s{sCOLB}"]
        o+=[(lambda i=i: vm.op(f"x{c}",f"buffer_load_dwordx4 v{vWBA+i}, s[{sWB}:{sWB+3}], s{sT1} offen offset:{i*1024} {MOD[opt('xm',0)]} lds")) for i in range(4)]
    return o
def do(x):
    if callable(x): x()
    else: e(x)
tail=[]
ts("i")
e(f"s_cmp_eq_u32 s{sSP}, 1"); e("s_cbranch_scc1 L_i2")
main=L; L=[]; lab("L_i2"); e(f"s_mov_b32 s{sXB}, s{sRW}")
PA=opt("pa",3)
GI=QX+8192
srd(sWB,100,896); e(f"s_mov_b32 m0, {GI}"); e("s_movk_i32 s69, 896")
vm.op("gate",f"buffer_load_dwordx4 v{vL16}, s[{sWB}:{sWB+3}], 0 offen lds")
GFL=opt("gf",2); PW=opt("pw",1)*GFL; NR=opt("nr",32); FL=0x80000; NZ=32//max(GFL,1); vFP=160; vFS=161; vT8=162
for c in range(-1,PA):
    for x in (xdma(c,False,False) if c>=0 else []): do(x)
    if GFL==1 and c==opt("zc",0):
        srd(sWS,pWS,WS_SZ); e(f"s_lshl1_add_u32 s{sT1}, s{sTB}, s{sTH}"); e(f"s_lshl2_add_u32 s{sT1}, s{sT1}, {FL}")
        e(f"v_mul_u32_u24 v{vFS}, 0x1100, v0"); e(f"v_add_u32 v{vFS}, s{sT1}, v{vFS}"); e(f"v_mov_b32 v{vFP}, {WS_SZ}"); e(f"v_cmp_gt_u32 vcc, {NR}, v0")
        e(f"v_mov_b32 v{vT8+1}, 0"); e(f"v_cndmask_b32 v{vFS}, v{vFP}, v{vFS}, vcc")
        vm.op("z",f"buffer_store_dword v{vT8+1}, v{vFS}, s[{sWS}:{sWS+3}], 0 offen sc1")
srd(sWB,6,401408); e(f"v_mad_u32_u24 v{vWBA}, v{vT0}, s69, v{vT1}")
e(f"s_mul_i32 s{sCOLB}, s{sJ}, 56"); e(f"s_mul_i32 s{sT1}, s{sW}, {16*896}"); e(f"s_add_u32 s{sCOLB}, s{sCOLB}, s{sT1}")
e("s_branch L_i3"); tail.append("\n".join(L)); L=main; q0=list(vm.q)+["pf"]; vm.q=[]
def zer(nm,f):
    global L
    e(f"s_lshl2_add_u32 s{sT1}, s{sJ}, s{sW}"); e(f"s_cmp_eq_u32 s{sT1}, 28"); e(f"s_cbranch_scc1 L_{nm}"); lab(f"L_{nm}r")
    m=L; L=[]; lab(f"L_{nm}"); f(); e(f"s_branch L_{nm}r"); tail.append("\n".join(L)); L=m
def z1():
    srd(sWS,pWS,WS_SZ); e(f"s_mul_i32 s{sT1}, s{sTB}, 0x2200"); e(f"s_add_u32 s{sT1}, s{sT1}, {FL}")
    e(f"v_lshrrev_b32 v{vFS}, 5, v0"); e(f"v_mul_u32_u24 v{vFS}, {0x1100-128}, v{vFS}"); e(f"v_lshl_add_u32 v{vFS}, v0, 2, v{vFS}"); e(f"v_mov_b32 v{vT8+1}, 0")
    e(f"buffer_store_dword v{vT8+1}, v{vFS}, s[{sWS}:{sWS+3}], s{sT1} offen sc1")
ZE=opt("ze",1)
def z2():
    if ZE: srd(sDBG,pDBG,256); e(f"v_mov_b32 v{vONE}, 1"); e(f"s_waitcnt vmcnt({len(vm.q)})")
    e(f"v_lshlrev_b32 v{vT8+2}, 7, v0"); e(f"buffer_atomic_add v{vONE}, v{vT8+2}, s[{sDBG}:{sDBG+3}], 0 offen sc1")
if GFL==2: assert NR==32; zer("z1",z1)
for c in range(PD):
    for i,x in enumerate(xdma(c,True,True)):
        do(x)
        if c==0 and i in (2,7): ts("i")
    ts("i")
    if GFL==2 and ZE==c+1: zer("z2",z2)
if W7>PD:
    e(f"s_mov_b32 s69, s{sPR}")
    for c in range(PD,W7):
        for x in xdma_(c,True,True)[:3]: do(x)
    e(f"s_mov_b32 s{sPR}, s69")
lab("L_i3")
e("s_getpc_b64 s[4:5]"); lab("L_pc")
e(f"s_mul_i32 s{sT1}, s{sW}, 8192"); e(f"v_lshlrev_b32 v{vT2}, 7, v{vL}"); e(f"v_add_u32 v{vT2}, s{sT1}, v{vT2}")
e(f"v_min_u32 v{vT2}, L_end-L_pc, v{vT2}")
vm.op("pf",f"global_load_dword v{vPOLL}, v{vT2}, s[4:5]")
qs=list(vm.q)
srd(sWS,pWS,WS_SZ); srd(sOUT,pOUT,1835008); srd(sDBG,pDBG,256)
e(f"s_mov_b32 s{sUP}, 0"); e(f"s_mov_b32 s{sUP+1}, -1")
for i in range(1,4): e(f"v_add_u32 v{vD3+i}, {6144*i}, v{vD3}")
e(f"v_and_b32 v{vT0}, 31, v{vL}"); e(f"v_lshrrev_b32 v{vT1}, 5, v{vL}"); e(f"v_bfe_u32 v{vT2}, v{vL}, 1, 3")
e(f"v_xor_b32 v{vT2}, v{vT1}, v{vT2}"); e(f"v_lshlrev_b32 v{vT0}, 7, v{vT0}"); e(f"v_add_u32 v{vT0}, s{sXB}, v{vT0}")
for s in range(4):
    e(f"v_xor_b32 v{vT3}, {2*s}, v{vT2}"); e(f"v_lshl_add_u32 v{vXR+s}, v{vT3}, 4, v{vT0}"); e(f"v_xor_b32 v{252+s}, 0x1000, v{vXR+s}")
e(f"v_bfe_u32 v{vT0}, v{vL}, 2, 2"); e(f"v_bfe_u32 v{vT2}, v{vL}, 4, 1"); e(f"v_and_b32 v{vT3}, 3, v{vL}")
e(f"v_lshlrev_b32 v{vT3}, 3, v{vT3}"); e(f"v_lshl_add_u32 v{vT3}, v{vT2}, 5, v{vT3}")
e(f"v_lshl_add_u32 v{vT2}, v{vT1}, 3, v{vT0}"); e(f"v_lshl_add_u32 v{vTR0}, v{vT2}, 6, v{vT3}"); e(f"s_cmp_eq_u32 s{sSP}, 1"); e(f"s_cselect_b32 s{sT0}, {W0B-W0A}, 0"); e(f"s_add_u32 s{sT0}, s{sT0}, {W0A}"); e(f"v_mov_b32 v{vTRB+2}, v{vTR0}"); e(f"v_add_u32 v{vTRB+3}, {2*RS}, v{vTR0}"); e(f"v_add_u32 v{vTR0}, s{sT0}, v{vTR0}")
e(f"s_and_b32 s{sT1}, s{sW}, 1"); e(f"s_lshl_b32 s{sT1}, s{sT1}, 13"); e(f"s_add_u32 s{sT1}, s{sT1}, {WBA}")
e(f"v_bfe_u32 v7, v{vL}, 3, 1"); e(f"v_lshl_add_u32 v{vT3}, v7, 6, v{vT3}")
e(f"v_lshl_add_u32 v{vTRB}, v{vT2}, 7, v{vT3}"); e(f"v_add_u32 v{vTRB}, s{sT1}, v{vTRB}"); e(f"v_xor_b32 v{vTRB+1}, 64, v{vTRB}")
e(f"v_lshl_add_u32 v{vT2}, v{vT1}, 2, v{vT0}"); e(f"v_lshl_add_u32 v{vT3}, v{vT2}, 7, v{vT3}")
e(f"s_and_b32 s{sT0}, s{sW}, 1"); e(f"s_lshl_b32 s{sT0}, s{sT0}, 6"); e(f"v_xor_b32 v{vT3}, s{sT0}, v{vT3}"); e(f"v_add_u32 v{vTR3}, s{sRW}, v{vT3}")
e(f"v_xor_b32 v{vT3}, 64, v{vT3}"); e(f"v_add_u32 v{vTR3+1}, s{sRW}, v{vT3}")
e(f"s_lshr_b32 s{sT0}, s{sW}, 1"); e(f"s_xor_b32 s{sT1}, s{sT0}, 1")
for u in range(2):
    e(f"s_mul_i32 s69, s{sT0+u}, {112*1024}"); e(f"v_add_u32 v{vHU+u}, s69, v{vL16}"); e(f"s_lshl_b32 s69, s{sT0+u}, 15"); e(f"v_add_u32 v{vOU+u}, s69, v{vL16}")
e(f"v_mov_b32 v{vONE}, 1"); e(f"v_lshlrev_b32 v{vSIG}, 25, v{vL}"); e(f"v_mov_b32 v{vZ}, 0")
e(f"s_add_u32 s{sCNT}, s{sBK}, {WS_C}")
e(f"s_lshl_b32 s{sT0}, s{sTH}, 1")
e(f"s_mul_i32 s{sHO}, s{sT0}, {112*1024}"); e(f"s_mul_i32 s{sT1}, s{sW}, {28*1024}"); e(f"s_add_u32 s{sHO}, s{sHO}, s{sT1}"); e(f"s_add_u32 s{sHO}, s{sHO}, s{sBK}")
e(f"s_lshl_b32 s{sOO}, s{sT0}, 15"); e(f"s_lshl_b32 s{sT1}, s{sW}, 13"); e(f"s_add_u32 s{sOO}, s{sOO}, s{sT1}"); e(f"s_add_u32 s{sOO}, s{sOO}, {WS_O+4096}"); e(f"s_add_u32 s{sOO}, s{sOO}, s{sBK}")
e(f"s_min_u32 s{sT1}, s{sCB}, 6"); e(f"s_lshl_b32 s{sT1}, s{sT1}, 7"); e(f"s_mul_i32 s{sW2O}, s{sW}, {448*896}"); e(f"s_add_u32 s{sW2O}, s{sW2O}, s{sT1}")
e(f"s_mul_i32 s{sWOO}, s{sW}, {112*896}"); e(f"s_add_u32 s{sWOO}, s{sWOO}, s{sT1}")
e(f"s_mov_b32 s{sPASS}, 0")
if GFL:
    e(f"s_lshl1_add_u32 s{sT1}, s{sTB}, s{sTH}"); e(f"s_lshl_b32 s{sT0}, s{sCB}, 5"); e(f"s_add_u32 s{sT1}, s{sT1}, s{sT0}"); e(f"s_and_b32 s{sT1}, s{sT1}, {NR-1}")
    e(f"s_mul_i32 s{sT1}, s{sT1}, 0x1100"); e(f"s_add_u32 s{sT1}, s{sT1}, {FL}");
    if not PW: e(f"s_cmp_eq_u32 s{sW}, 0"); e(f"s_cselect_b32 s{sT1}, s{sT1}, {WS_SZ}")
    e(f"v_and_b32 v{vFP}, 31, v0"); e(f"v_lshl_add_u32 v{vFP}, v{vFP}, 2, s{sT1}"); e(f"v_lshlrev_b32 v{vT8}, 8, v0")
if TW&2:
    e(f"s_add_u32 s{sT0}, s{sBK}, {WS_PAD}"); e(f"s_mov_b32 s{sT1}, {WS_PAD}")
    for x in (f"s[{sWS}:{sWS+3}], s{sT0}",f"s[{sWS}:{sWS+3}], s{sT1}",f"s[{sWO}:{sWO+3}], 0",f"s[{sOUT}:{sOUT+3}], 0",f"s[{sDBG}:{sDBG+3}], 0"): e(f"buffer_load_dword v251, v{vSIG}, {x} offen offset:128 sc1")
    e(f"global_load_dword v251, v{vZ}, s[{pW2s}:{pW2s+1}]")
    q0+=["tw"]*6; qs+=["tw"]*6
ts("si")
def wql():
    o=[]
    for c in range(7):
        o+=[(lambda c=c: rotc(c)), f"s_mul_i32 s{sT1}, s{sPR}, {64*896}\n  s_add_u32 m0, s{sRW}, {c*1024}\n  s_add_u32 s{sT1}, s{sT1}, s{sCOLB}",
            lambda: vm.op("wq",f"buffer_load_dwordx4 v{vWBA}, s[{sWB}:{sWB+3}], s{sT1} offen lds")]
    return o
GF=96; NE=opt("ne",1)
ld0b=f"buffer_load_dword v{vPOLL}, v{vT8}, s[{sDBG}:{sDBG+3}], 0 offen offset:128 sc1"
def passA(kind):
    if GFL==2:
        e(f"s_lshl1_add_u32 s{sT1}, s{sTB}, s{sTH}"); e(f"s_lshl2_add_u32 s{sT1}, s{sT1}, {FL}")
        e(f"v_mul_u32_u24 v{vFS}, 0x1100, v0"); e(f"v_add_u32 v{vFS}, s{sT1}, v{vFS}"); e(f"v_mov_b32 v{vT8+1}, {WS_SZ}"); e(f"v_cmp_gt_u32 vcc, {NR}, v0")
        e("s_nop 0"); e(f"v_cndmask_b32 v{vFS}, v{vT8+1}, v{vFS}, vcc")
    e(f"v_lshrrev_b32 v{vT2}, 5, v{vL}"); e(f"v_lshlrev_b32 v{vT2}, 4, v{vT2}"); e(f"v_add_u32 v{vT2}, {GI}, v{vT2}"); e(f"s_mov_b32 s{sSTB}, s{sROT}")
    vm.wait("gate") if PA<2 else None
    for c in range(8):
        side=[]
        if c<7:
            e(f"s_lshl_b32 s69, s{sSTB}, 7"); e(f"v_add_u32 v7, s69, v{vT2}"); e(f"s_add_u32 s{sSTB}, s{sSTB}, 1"); e(f"s_cmp_eq_u32 s{sSTB}, 7"); e(f"s_cselect_b32 s{sSTB}, 0, s{sSTB}")
            vm.wait(f"x{c}")
            if GFL==2 and c==opt("zp",5): vm.op("p0",ld0b)
            if GFL==1 and c==opt("zc",0)+1: vm.wait("z"); vm.op("za",f"buffer_atomic_add v{vONE}, v{vT8}, s[{sDBG}:{sDBG+3}], 0 offen sc1")
            if c in (0,1,3,6): ts("s",{0:3,1:4,3:5,6:6}[c])
            if c: lg.all()
            for s in range(4): lg.op(f"x{c}",f"ds_read_b128 {r('a',16*c+4*s,4)}, v{vXR+s} offset:{c*4096}")
            e("s_barrier")
            for s in range(4):
                for h in range(2): lg.op("w",f"ds_read_b64_tr_b16 {r('v',WF+16*(c%2)+4*s+2*h,2)}, v{vTR0} offset:{(4*c+s)*1024+h*256}")
            if kind=="k": side=[(lambda s=s: lg.op("w",f"ds_read_b128 {r('v',GF+16*(c%2)+4*s,4)}, v7 offset:{s*32}")) for s in range(4)]
            if c+PA<7: side+=xdma(c+PA,False,False)
            elif c==7-PA and NE: side+=wql()
        else: lg.all()
        for s in range(4 if c else 0):
            z=0 if (c==1 and s==0) else None; w=WF+16*((c-1)%2)+4*s
            if kind=="v": mfma(B0,16*(c-1)+4*s,w,z,pa="a")
            else: mfma(B0,w,16*(c-1)+4*s,z,pb="a")
            for _ in range(2):
                if side: do(side.pop(0))
            if kind=="k" and c<7: mfma(B0+16,GF+16*((c-1)%2)+4*s,16*(c-1)+4*s,z,pb="a")
            if side: do(side.pop(0))
        while side: do(side.pop(0))
def pack(dst,src,relu=False):
    for i in range(8): e(f"v_cvt_pk_bf16_f32 v{dst+i}, v{src+2*i}, v{src+2*i+1}")
    if relu:
        for i in range(8): e(f"v_pk_max_i16 v{dst+i}, v{dst+i}, 0")
def st2(tag,src,soff,off=0):
    for h in range(2): vm.op(tag,f"buffer_store_dwordx4 {r('v',src+4*h,4)}, v{vL16}, s[{sWS}:{sWS+3}], s{soff} offen offset:{off+h*1024} sc1")
e(f"s_cmp_eq_u32 s{sSP}, 1"); e("s_cbranch_scc1 L_sp")
main=L; L=[]
lab("L_sp"); e(f"s_cmp_eq_u32 s{sJ}, 8"); e("s_cbranch_scc1 L_av")
lab("L_ak"); vm.q=list(q0); passA("k")
e(f"v_lshlrev_b32 v{vT0}, 7, v{vL}"); e(f"v_cmp_gt_u32 vcc, 1, v{vL}"); e(f"v_mov_b32 v{vT2}, {WS_SZ}"); e(f"s_lshl_b32 s{sT0}, s{sTT}, 12")
e(f"v_cndmask_b32 v{vT2}, v{vT2}, v{vT0}, vcc")
e(f"buffer_store_dword v{vZ}, v{vT2}, s[{sWS}:{sWS+3}], s{sCNT} offen sc1")
e(f"v_mov_b32 v{vT0}, 0x3f803f80"); e(f"v_mov_b32 v{vT1}, 0x00003f80"); e("s_nop 7")
pack(PK,B0)
e(f"v_cndmask_b32 v{PK+6}, v{PK+6}, v{vT0}, s[{sUP}:{sUP+1}]"); e(f"v_cndmask_b32 v{PK+7}, v{PK+7}, v{vT1}, s[{sUP}:{sUP+1}]")
st2("a",PK,sT0)
for s_ in range(4): mfma(B0+16,GF+4*s_,96+4*s_,None,pb="a")
e(f"v_and_b32 v{vT1}, 31, v{vL}"); e(f"v_lshlrev_b32 v{vT1}, 2, v{vT1}")
e(f"s_lshl_b32 s{sT0}, s{sW}, 7"); e(f"s_add_u32 s{sT0}, s{sT0}, {WS_G}"); e(f"s_add_u32 s{sT0}, s{sT0}, s{sBK}"); e("s_nop 7")
e(f"v_mul_f32 v{vT0}, {f2u(-math.log2(math.e))}, v{B0+16}"); e(f"v_exp_f32 v{vT0}, v{vT0}"); e("s_nop 0"); e(f"v_add_f32 v{vT0}, 1.0, v{vT0}")
e(f"v_rcp_f32 v{vT0}, v{vT0}"); e("s_nop 0")
e(f"buffer_store_dword v{vT0}, v{vT1}, s[{sWS}:{sWS+3}], s{sT0} offen sc1")
e("s_branch L_akv")
lab("L_av"); vm.q=list(q0); passA("v")
e(f"v_and_b32 v{vT0}, 31, v{vL}"); e(f"v_mov_b32 v{vT1}, 0x3f803f80"); e(f"v_cmp_eq_u32 vcc, 28, v{vT0}"); e("s_nop 1")
e(f"v_cndmask_b32 v{vT1}, 0, v{vT1}, vcc"); e(f"v_cmp_gt_u32 vcc, 28, v{vT0}"); e("s_nop 7")
pack(PK,B0)
for i in range(8): e(f"v_cndmask_b32 v{PK+i}, v{vT1}, v{PK+i}, vcc")
e(f"s_lshl_b32 s{sT0}, s{sTT}, 12"); e(f"s_add_u32 s{sT0}, s{sT0}, 2048")
st2("a",PK,sT0)
lab("L_akv")
if not NE:
    for x in wql(): do(x)
def spin(name,tag,ld,target,two=False):
    def chk():
        if target is None: return f"  v_cmp_eq_u32 vcc, 1, v{vPOLL}\n  s_cmp_eq_u64 vcc, -1"
        return f"  v_readfirstlane_b32 s{sT0}, v{vPOLL}\n  s_cmp_ge_u32 s{sT0}, {target}"
    q_=list(vm.q)
    if two: e(f"s_cmp_lg_u32 s{sW}, 0"); e(f"s_cbranch_scc1 L_ok{name}")
    vm.wait(tag); L.append(chk()); e(f"s_cbranch_scc0 L_sp{name}"); lab(f"L_ok{name}")
    if two: vm.q=q_
    tail.append(f"""L_sp{name}:
  s_mov_b32 s69, 0
{f"  s_cmp_lg_u32 s{sW}, 0"+chr(10)+f"  s_cbranch_scc1 L_ok{name}" if two else ""}
L_sq{name}:
  s_sleep {opt("slp",4)}
  {ld}
  s_add_u32 s69, s69, 1
  s_waitcnt vmcnt(0)
  s_cmp_ge_u32 s69, 0x40000
  s_cbranch_scc1 L_ok{name}
{chk()}
  s_cbranch_scc0 L_sq{name}
  s_branch L_ok{name}""")
vm.wait("a")
if GFL==2: spin("0b","p0",ld0b,NZ,True)
e("s_barrier"); e(f"v_mov_b32 v{vT0}, 1"); e(f"v_lshlrev_b32 v{vT3}, 8, v0")
ld0=f"buffer_load_dword v{vPOLL}, v{vT8}, s[{sDBG}:{sDBG+3}], 0 offen sc1"
if GFL: vm.op("at",f"buffer_store_dword v{vONE}, v{vFS}, s[{sWS}:{sWS+3}], 0 offen sc1"); vm.op("p0",ld0) if GFL==1 else None
else: vm.op("at",f"buffer_atomic_add v{vT0}, v{vT3}, s[{sDBG}:{sDBG+3}], 0 offen sc0 sc1")
if opt("mw",3)==1:
    e(f"s_lshl_b32 s{sT0}, s{sTT}, 1"); e(f"s_add_u32 s{sT0}, s{sT0}, s{sTH}"); e(f"s_mul_i32 s{sT1}, s{sT0}, {98*128}"); e(f"s_mul_i32 s{sT0}, s{sT0}, {25*128}")
    e(f"v_lshlrev_b32 v{vT1}, 7, v{vL}"); e(f"v_add_u32 v{vT2}, s{sT1}, v{vT1}")
    vm.op("mw",f"global_load_dword v251, v{vT2}, s[{pW2s}:{pW2s+1}]")
    e(f"v_min_u32 v7, {33*128}, v{vT1}"); e(f"s_add_u32 s{sT1}, s{sT1}, 8192"); e(f"v_add_u32 v7, s{sT1}, v7"); e(f"v_min_u32 v{vT1}, {24*128}, v{vT1}")
    vm.op("mw",f"global_load_dword v251, v7, s[{pW2s}:{pW2s+1}]")
    vm.op("mw",f"buffer_load_dword v251, v{vT1}, s[{sWO}:{sWO+3}], s{sT0} offen")
ts("s",7); ts("m",1)
SE=opt("se",16)
def sent():
    o=[f"s_lshl4_add_u32 s{sSTB}, s{sW}, s{sJ}\n  s_lshl_b32 s{sSTB}, s{sSTB}, 11\n  s_add_u32 s{sSTB}, s{sSTB}, {WS_O}\n  s_add_u32 s{sSTB}, s{sSTB}, s{sBK}","\n  ".join(f"v_mov_b32 v{164+i}, -1" for i in range(4))]
    return o+[(lambda h=h: vm.op("h",f"buffer_store_dwordx4 v[164:167], v{vL16}, s[{sWS}:{sWS+3}], s{sSTB} offen offset:{h*1024} sc1")) for h in range(2)]
if SE:
    for x in sent(): do(x)
def gld(tag,dst,va,base,off,p="v"): vm.op(tag,f"global_load_dwordx4 {r(p,dst,4)}, v{va}, s[{base}:{base+1}] offset:{off} sc1")
def setb(b,src,off): return [f"s_add_u32 s{b}, s{src}, {off}", f"s_addc_u32 s{b+1}, s{src+1}, 0"]
def ldkv(kt,f): gld(f"kv{kt}",KV+16*(kt%4)+4*f,vL16,bKV,(kt%2)*4096-4096+f*1024)
def kvinit():
    o=[f"s_lshl_b32 s{sT1}, s{sW}, 16",f"s_add_u32 s{sT1}, s{sT1}, 4096"]+setb(bKV,pWS,f"s{sT1}")
    for kt in range(3):
        if kt==2: o+=setb(bKV,bKV,8192)
        o+=[(lambda kt=kt,f=f: ldkv(kt,f)) for f in range(4)]
    return o
ld1=f"buffer_load_dword v{vPOLL}, v{vT3}, s[{sDBG}:{sDBG+3}], 0 offen offset:128 sc1"
if GFL: ld1=f"buffer_load_dword v{vPOLL}, v{vFP}, s[{sWS}:{sWS+3}], 0 offen sc1"
PL=opt("pl",22); PC=opt("pc",24)
def h1c(ks,nm):
    if PW and ks==opt("pk",19): assert PL>ks; spin("0","p0",ld0,NZ,True)
    if ks==PC and not PW: spin(nm,"p1",ld1,None if GFL else 1,True)
def h1(ks,side,nm):
    if GFL and ks==opt("p0",9): side.insert(0,lambda: vm.op("p0",ld0))
    if ks==PL:
        if GFL and not PW: assert not side; spin("0","p0",ld0,NZ,True)
        side.insert(0,lambda: vm.op("p1",ld1))
    if ks==PC:
        assert not side
        if PW: spin(nm,"p1",ld1,None)
        ts("m",2)
        side+=[(lambda h=h: gld("kt",KT+4*h,vL16,pWS,h*1024)) for h in range(2)]+kvinit()
def trQ(c):
    for s_ in range(4):
        for h in range(2): lg.op(f"q{c}",f"ds_read_b64_tr_b16 {r('v',WF+16*(c%2)+4*s_+2*h,2)}, v{vTRB+2+s_//2} offset:{(s_%2)*RS+c*1024+h*256}")
if not NE: vm.wait("wq"); e("s_barrier")
trQ(0)
for c in range(7):
    lg.all()
    if c<6: trQ(c+1)
    if GFL and c==opt("ac",3)+2:
        if GFL==1: spin("0b","p0",ld0,NZ,True)
        if PW==1: e("s_barrier")
        vm.op("p1",ld1)
    if c==opt("ac",3) and not GFL:
        vm.wait("at"); e(f"v_readfirstlane_b32 s{sT0}, v{vT0}"); e(f"s_cmp_lg_u32 s{sT0}, 31"); e("s_cbranch_scc1 L_nogo")
        e(f"buffer_store_dword v{vONE}, v{vT3}, s[{sDBG}:{sDBG+3}], 0 offen offset:128 sc1")
        lab("L_nogo")
    for s_ in range(4): mfma(A0,WF+16*(c%2)+4*s_,16*c+4*s_,0 if c+s_==0 else None,pb="a")
if not GFL: vm.op("p1",ld1)
h1c(PC,"1b"); e("s_barrier"); side=[]; h1(PC,side,"1b")
while side: do(side.pop(0))
e("s_branch L_join"); tail.append("\n".join(L)); L=main; vm.q=qs
W0F=48; XF=144
def rdS(ks,t):
    c,s_=divmod(ks,4); sl=c%4
    if t==0:
        for h in range(2): lg.op(f"s{ks}",f"ds_read_b64_tr_b16 {r('v',W0F+4*(ks%2)+2*h,2)}, v{vTR0} offset:{(c if W7 else sl)*4096+s_*1024+h*256}")
    elif t<3: lg.op(f"s{ks}",f"ds_read_b128 {r('v',XF+8*(ks%2)+4*(t-1),4)}, v{(vXR,252)[t-1]+s_} offset:{sl*16384}")
    else:
        for h in range(2): lg.op(f"s{ks}",f"ds_read_b64_tr_b16 {r('v',WF+8*(ks%2)+4*(t-3)+2*h,2)}, v{vTRB+t-3} offset:{sl*16384+s_*2048+h*512}")
vm.wait("x0")
if GFL==2 and not ZE: zer("z2",z2)
ts("i"); ts("s",3); e("s_barrier"); e(f"v_lshlrev_b32 v{vT3}, 8, v0"); ts("m",1)
for t in range(5): rdS(0,t)
side=xdma(PD,True,True)
def warm():
    MW=opt("mw",3); n2,no,k=((50,38,3) if MW==2 else (19,5,1))
    o=[f"s_mov_b32 s4, s{pW2s}\n  s_and_b32 s5, s{pW2s+1}, 0xffff", f"s_mov_b32 s6, {1792*896}\n  s_mov_b32 s7, 0x20000",
       f"s_and_b32 s{sT0}, s{sTB}, 3\n  s_lshl2_add_u32 s{sT0}, s{sCB}, s{sT0}", f"s_mul_i32 s{sT0}, s{sT0}, 3\n  s_add_u32 s{sT0}, s{sT0}, s{sW}\n  s_sub_u32 s{sT0}, s{sT0}, 13"]
    if MW==3: o+=[f"s_lshr_b32 s{sT1}, s{sTB}, 2\n  s_lshl2_add_u32 s{sT0}, s{sT0}, s{sT1}\n  s_lshl1_add_u32 s{sT0}, s{sT0}, s{sTH}"]
    o+=[f"s_mul_i32 s{sT1}, s{sT0}, {n2*k*128}\n  s_mul_i32 s{sT0}, s{sT0}, {no*128}",
        f"s_cmp_eq_u32 s{sW}, 0\n  s_cselect_b32 s{sT1}, 0x4000000, s{sT1}\n  s_cselect_b32 s{sT0}, 0x4000000, s{sT0}",
        f"v_lshlrev_b32 v7, 7, v{vL}\n  v_mov_b32 v{vT2}, 0x4000000\n  v_cmp_gt_u32 vcc, {n2}, v{vL}\n  v_add_u32 v{vT0}, s{sT1}, v7\n  v_add_u32 v{vT1}, s{sT0}, v7\n  v_cndmask_b32 v{vT0}, v{vT2}, v{vT0}, vcc",
        f"v_cmp_gt_u32 vcc, {no}, v{vL}\n  s_mov_b32 s{sT0}, {n2*128}\n  s_mov_b32 s{sT1}, {n2*256}\n  v_cndmask_b32 v{vT1}, v{vT2}, v{vT1}, vcc"]
    o+=[(lambda x=x: vm.op("mw",f"buffer_load_dword v251, v{vT0}, s[4:7], {x} offen")) for x in ("0",f"s{sT0}",f"s{sT1}")[:k]]
    return o+[lambda: vm.op("mw",f"buffer_load_dword v251, v{vT1}, s[{sWO}:{sWO+3}], 0 offen")]
for ks in range(28):
    if ks==SE and SE: side+=sent()
    if ks==opt("mk",8) and opt("mw",3)>1: side+=warm()
    lg.wait(f"s{ks}")
    if (ks+1)%4==0 and ks<27:
        c=(ks+1)//4
        while side and c+PD<=7: do(side.pop(0))
        vm.wait(f"x{c}"); h1c(ks,"1"); e("s_barrier")
        if c in (1,3,5,6): ts("s",{1:4,3:5,5:6,6:7}[c])
        if c+PD<7: side+=xdma(c+PD,True,True)
    h1(ks,side,"1")
    for t in range(5):
        z=0 if ks==0 else None
        if t==0: mfma(A0,W0F+4*(ks%2),XF+8*(ks%2),z)
        else: mfma(B0+16*(t-1),WF+8*(ks%2)+4*((t-1)%2),XF+8*(ks%2)+4*((t-1)//2),z)
        if ks<27: rdS(ks+1,(3,4,0,1,2)[t])
        if side and (t>1 or ks>=PC): do(side.pop(0))
        if side and t==4: do(side.pop(0))
while side: do(side.pop(0))
lab("L_join")
ts("m",3); ts("s",8)
e(f"s_mul_i32 s{sT0}, s{sW}, {112*1024}"); e(f"s_lshl_b32 s{sT1}, s68, 12"); e(f"s_add_u32 s{sT0}, s{sT0}, s{sT1}"); e(f"s_add_u32 s{sT0}, s{sT0}, s{sBK}")
e(f"s_bitcmp0_b32 s{sW}, 0"); e(f"s_cselect_b32 s{sT1}, 1, -1"); e(f"s_mul_i32 s{sT1}, s{sT1}, {112*1024}"); e(f"s_add_u32 s{sT1}, s{sT1}, s{sT0}")
e(f"s_cmp_eq_u32 s{sSP}, 1"); e(f"s_cselect_b32 s{sT0}, {WS_SZ}, s{sT0}"); e(f"s_cselect_b32 s{sT1}, {WS_SZ}, s{sT1}")
e(f"s_mov_b32 s{sT2}, {f2u(math.log2(math.e)/math.sqrt(28))}")
for i in range(0 if SE else 4): e(f"v_mov_b32 v{252+i}, -1")
e(f"s_lshl_b32 s68, s{sW}, 15"); e(f"s_lshl_b32 s69, s{sJ}, 11"); e(f"s_add_u32 s68, s68, s69"); e(f"s_add_u32 s68, s68, {WS_O}"); e(f"s_add_u32 s68, s68, s{sBK}")
DH=opt("dh",3); late=[]
e(f"s_mov_b32 s{sSTB}, s68"); e(f"s_mov_b32 s{sST0}, s{sT0}"); e(f"s_mov_b32 s{sCOLB}, s{sT1}")
def sth(i,src,soff,off=0,inc=4):
    for h in range(2):
        f=lambda h=h: vm.op("h",f"buffer_store_dwordx4 {r('v',src+inc*h,4)}, v{vL16}, s[{sWS}:{sWS+3}], s{soff} offen offset:{off+h*1024} sc1")
        if DH>=i: late.append(f)
        else: f()
NS=0 if SE else 2
if not SE: sth(1,252,sSTB,0,0)
for i in range(16): e(f"v_mul_f32 v{A0+i}, s{sT2}, v{A0+i}")
pack(Q,A0)
for i in (6,7): e(f"v_cndmask_b32 v{Q+i}, v{Q+i}, 0, s[{sUP}:{sUP+1}]")
def mins(m,q):
    e(f"v_sub_f32 v{m}, 0, v{m}"); e(f"v_and_b32 v{vT0}, 0xffff0000, v{m}"); e(f"v_sub_f32 v{m}, v{m}, v{vT0}")
    e(f"v_and_b32 v{vT1}, 0xffff0000, v{m}"); e(f"v_sub_f32 v{m}, v{m}, v{vT1}")
    e(f"v_lshrrev_b32 v{vT0}, 16, v{vT0}"); e(f"v_or_b32 v{vT0}, v{vT0}, v{vT1}"); e(f"v_lshrrev_b32 v{m}, 16, v{m}")
    e(f"v_cndmask_b32 v{q+6}, v{q+6}, v{vT0}, s[{sUP}:{sUP+1}]"); e(f"v_cndmask_b32 v{q+7}, v{q+7}, v{m}, s[{sUP}:{sUP+1}]")
def halfmax(m):
    e(f"v_mov_b32 v{vT0}, v{m}"); e("s_nop 1"); e(f"v_permlane32_swap_b32 v{vT0}, v{m}"); e("s_nop 1"); e(f"v_max_f32 v{m}, v{m}, v{vT0}")
pack(40,B0,True); st2("h",40,sT0)
vm.wait("kt")
mfma(S+16,KT,Q,0); mfma(S+16,KT+4,Q+4)
pack(8,B0+16,True); sth(3,8,sST0,2048)
e(f"s_lshl_b32 s{sT0}, s{sW}, 11"); e(f"s_add_u32 s{sT0}, s{sT0}, {QX}"); e(f"v_add_u32 v{vT3}, s{sT0}, v{vL16}")
e(f"v_max3_f32 v{vT2}, v{S+16}, v{S+17}, v{S+18}")
for i in range(3,15,2): e(f"v_max3_f32 v{vT2}, v{vT2}, v{S+16+i}, v{S+17+i}")
e(f"v_max_f32 v{vT2}, v{vT2}, v{S+31}")
halfmax(vT2); mins(vT2,Q)
e(f"ds_write_b128 v{vT3}, {r('v',Q,4)}"); e(f"ds_write_b128 v{vT3}, {r('v',Q+4,4)} offset:1024")
pack(16,B0+32,True); sth(2,16,sCOLB); pack(KT,B0+48,True); sth(2,KT,sCOLB,2048)
for i in range(1,4):
    e(f"s_add_u32 s{sT0}, s{sW}, {i}"); e(f"s_and_b32 s{sT0}, s{sT0}, 3"); e(f"s_lshl_b32 s{sT0}, s{sT0}, 11"); e(f"s_add_u32 s{sT0}, s{sT0}, {QX}")
    e(f"v_add_u32 v{vT0+i}, s{sT0}, v{vL16}")
e("s_waitcnt lgkmcnt(0)"); e("s_barrier")
for i in range(1,4):
    for h in range(2): e(f"ds_read_b128 {r('v',Q+8*i+4*h,4)}, v{vT0+i} offset:{h*1024}")
lab("L_attn")
if ROT!=1: rot7()
for x in setb(4,pWS,f"s{sHO}")+setb(6,pW2s,f"s{sW2O}"): e(x)
def rotg(g,pr):
    if g==0: return [f"s_mov_b32 s{pr}, s{sROT}"]
    return [f"s_add_u32 s{pr}, s{pr}, 1", f"s_cmp_eq_u32 s{pr}, 7\n  s_cselect_b32 s{pr}, 0, s{pr}"]
def dmaw2(step):
    o=[f"s_add_u32 m0, s{sRW}, {(step%14)*2048}"]
    o+= rotg(step//4,8)+[f"s_mul_i32 s9, s8, {64*896}"]+setb(bW2,6,"s9") if step%4==0 else setb(bW2,bW2,32*896)
    return o+[(lambda i=i: vm.op(f"d{step+i//2}",f"global_load_lds_dwordx4 v{vD3+i}, s[{bW2}:{bW2+1}] offset:{i*1024}")) for i in range(4)]
def dmawo(step):
    hd=(step-28)//2
    o=[f"s_add_u32 m0, s{sRW}, {(step%14)*2048}", f"s_add_u32 s{sT2}, s{sWOO}, {hd*28*896}"]
    return o+[(lambda i=i: vm.op(f"d{step+i//2}",f"buffer_load_dwordx4 v{vD3+i}, s[{sWO}:{sWO+3}], s{sT2} offen offset:{i*1024} lds")) for i in range(4)]
def qk(t,h): mfma(S+16*(t%2),KV+16*((t//4)%4)+4*h,Q+8*(t%4)+4*h,0 if h==0 else None)
def pv(t,h): mfma(O+16*(t%4),KV+16*((t//4)%4)+8+4*h,P+4*h,0 if (t<4 and h==0) else None)
def grp(t,g):
    s=S+16*(t%2)+4*g
    for i in range(4): e(f"v_exp_f32 v{s+i}, v{s+i}")
    for i in range(2): e(f"v_cvt_pk_bf16_f32 v{P+2*g+i}, v{s+2*i}, v{s+2*i+1}")
vm.wait("kv0")
ts()
qk(0,0); qk(0,1)
e(f"v_and_b32 v{vT1}, 31, v{vL}"); e(f"v_lshlrev_b32 v{vT1}, 2, v{vT1}"); e(f"v_mul_u32_u24 v{vT2}, 896, v{vL}")
e(f"s_lshr_b32 s{sT0}, s{sW}, 1"); e(f"s_lshl_b32 s{sT0}, s{sT0}, 7"); e(f"v_xor_b32 v{vT0}, s{sT0}, v{vT1}"); e(f"v_xor_b32 v{vT3}, 0x80, v{vT0}")
e("s_waitcnt lgkmcnt(0)"); e("s_nop 3")
fixed={}
for kt in range(16):
    if kt+3<16:
        if (kt+3)%2==0:
            a=setb(bKV,bKV,8192); fixed[(4*kt,1)]=a[0]+"\n  "+a[1]
        for f in range(4): fixed[(4*kt+1,f)]=(lambda kt=kt,f=f: ldkv(kt+3,f))
    if kt<15: fixed[(4*kt+2,3)]=(lambda kt=kt: vm.wait(f"kv{kt+1}"))
ld2=f"buffer_load_dword v{vPOLL}, v{vZ}, s[{sWS}:{sWS+3}], s{sCNT} offen sc1"
SG=opt("sg",14); D0=opt("d0",4 if opt("ev",0) else 10); H0=opt("h0",30)
fifo=[]
def carry(lst):
    o=[]; i=0
    while i<len(lst):
        if isinstance(lst[i],str) and i+1<len(lst) and isinstance(lst[i+1],str) and lst[i+1].startswith("s_addc"): o.append(lst[i]+"\n  "+lst[i+1]); i+=2
        else: o.append(lst[i]); i+=1
    return o
def pace(lst,t0,t1):
    n=sum(callable(x) for x in lst); o=[]; i=0
    for x in lst:
        if callable(x): o.append((4*t0+int(i*4*(t1-t0)/n),x)); i+=1
        else: o.append((0,x))
    return o
def hloads():
    o=[]
    for ks in range(28):
        if ks%4==0: o+=rotg(ks//4,10)+["s_lshl_b32 s11, s10, 12"]+setb(bH,4,"s11")
        for u in range(2): o.append(lambda ks=ks,u=u: gld(f"h{ks}",(ks*2+u)*4,vHU+u,bH,(ks%4)*1024,"a"))
    return o
def gloads():
    o=[f"s_add_u32 s{sT2}, s{sBK}, {WS_G}", f"s_lshl_b32 s{sT0}, s{sTH}, 8", f"s_add_u32 s{sT0}, s{sT0}, s{sT2}",
       f"s_lshl_b32 s{sT1}, s{sW}, 7", f"s_add_u32 s{sT1}, s{sT1}, s{sT2}"]
    o+=[lambda: vm.op("g",f"buffer_load_dword v{vGO}, v{vT1}, s[{sWS}:{sWS+3}], s{sT1} offen sc1")]
    o+=[(lambda u=u: vm.op("g",f"buffer_load_dword v{vG+u}, v{(vT0,vT3)[u]}, s[{sWS}:{sWS+3}], s{sT0} offen sc1")) for u in range(2)]
    return o
NP=opt("np",6); NB=5
def wloc(st):
    if st<4: return ("a",224+8*st)
    if st<NP: return ("v",8+8*(st-4))
    if st<28: return ("v",WG+8*((st-NP)%NB))
    return ("a",8*(st-28))
def tr3(st,t,h):
    assert vm.cnt[f"d{st}"]==2 and vm.n(f"d{st}") is None
    p,b_=wloc(st)
    lg.op(f"w{st}",f"ds_read_b64_tr_b16 {r(p,b_+4*t+2*h,2)}, v{vTR3+t} offset:{(st%14)*2048+h*1024}")
def early():
    o=[]
    for s2 in range(0,NP,2):
        y=[(lambda st=st,t=t,h=h: tr3(st,t,h)) for st in (s2,s2+1) for t in range(2) for h in range(2)]
        if opt("rd",2)==2: y=[(lambda a=y[i],b=y[i+1]: (a(),b())) for i in range(0,len(y),2)]
        o+=[lambda s2=s2,y0=y[0]: (vm.wait(f"d{s2+1}"),chk45() if s2>=4 else None,y0())]+y[1:]
        x=carry(dmaw2(14+s2)); o+=x[:-4]+[lambda s2=s2,x0=x[-4]: (lg.wait(f"w{s2+1}"),x0())]+x[-3:]
    return o
class U:
    def __init__(s,f): s.f=f
    def __call__(s): s.f()
def chk45(): assert vm.n("h") is None
def even():
    G=[]; RD=opt("rd",2)
    for k in range(7+NP//2):
        x=carry(dmaw2(2*k)); pre=x[:-4]; s2=2*(k-7+NP//2)
        y=[(lambda st=st,t=t,h=h: tr3(st,t,h)) for st in (s2,s2+1) for t in range(2) for h in range(2)] if 0<=s2<NP else []
        if y: y[0]=(lambda s2=s2,y0=y[0]: (vm.wait(f"d{s2+1}"),chk45() if s2>=4 else None,y0()))
        if RD==2: y=[(lambda a=y[i],b=y[i+1]: (a(),b())) for i in range(0,len(y),2)]
        if k>=7: x[-4]=(lambda x0=x[-4],k=k: (lg.wait(f"w{2*(k-7)+1}"),x0()))
        for i in range(4):
            n=len(y)//4
            G.append((pre if i==0 else [])+[x[-4+i]]+[U(f) for f in y[i*n:(i+1)*n]])
    D1=opt("d2",H0-1)
    G=[(4*D0+int(i*4*(D1-D0)/len(G)),g) for i,g in enumerate(G)]+[(tm,[x]) for tm,x in pace(late[NS:]+late[:NS],0,opt("l1",8))]
    G.sort(key=lambda a:a[0])
    return [(tm if callable(x) and not isinstance(x,U) else 0,x) for tm,g in G for x in g]
EV=opt("ev",0)
for t in range(64):
    if t==0 and EV: fifo+=even()
    if t==SG: assert "h" in vm.seen and not any(x in late for _,x in fifo)
    if t==0 and late and not EV: fifo+=pace(late[NS:]+late[:NS],0,opt("l1",8))
    if t in (0,6,8,16,24,28,36,48,63): ts("a")
    if t==SG: fifo=[(0,lambda: vm.wait("h")), (0,lambda: vm.op("s2",f"buffer_atomic_add v{vONE}, v{vSIG}, s[{sWS}:{sWS+3}], s{sCNT} offen sc1"))]+fifo
    if t==D0 and not EV: fifo+=pace(sum([carry(dmaw2(s)) for s in range(0,14,2)],[]),D0,opt("d1",22))+pace(early(),opt("d1",22),H0-1)
    if t==H0-5: fifo=[(0,lambda: vm.op("p2",ld2))]+fifo
    if t==H0: fifo+=pace([lambda: spin("2","p2",ld2,64)]+(gloads()+carry(hloads()) if opt("gl",1) else carry(hloads())+gloads()),H0,opt("h1",62))
    ms=[(lambda: qk(t+1,0)) if t<63 else None,(lambda: qk(t+1,1)) if t<63 else None,(lambda: pv(t-1,1)) if t>0 else None,lambda: pv(t,0)]
    for g in range(4):
        if ms[g]:
            ms[g]()
            if (t,g) in fixed: do(fixed[(t,g)])
            elif fifo and fifo[0][0]<=4*t+g:
                x=fifo.pop(0)[1]; do(x)
                if isinstance(x,str) and fifo and isinstance(fifo[0][1],str) and opt("m2",1): do(fifo.pop(0)[1])
        grp(t,g)
print("fifo left",len(fifo),file=sys.stderr)
while fifo: do(fifo.pop(0)[1])
e("s_nop 1"); pv(63,1)
ts()
PKF=opt("pk2",1)
def add2(d,a,b,ks,pk=1):
    if not (PKF and pk): return [f"v_add_f32 v{d+k}, v{a+k}, v{b+k}" for k in ks]
    return [f"v_pk_add_f32 {r('v',d+k,2)}, {r('v',a+k,2)}, {r('v',b+k,2)}" for k in ks if k%2==0]
def mul2(d,g,pk=0):
    if not (PKF and pk): return [f"v_mul_f32 v{d+k}, v{g}, v{d+k}" for k in range(16)]
    return [f"v_pk_mul_f32 {r('v',d+k,2)}, {r('v',d+k,2)}, {r('v',g&~1,2)} op_sel:[0,{g&1}] op_sel_hi:[1,{g&1}]" for k in range(0,16,2)]
red=[]
def A(x): red.append(x)
for i in range(1,4):
    e(f"s_add_u32 s{sT0}, s{sW}, {i}"); e(f"s_and_b32 s{sT0}, s{sT0}, 3"); e(f"s_mul_i32 s{sT0}, s{sT0}, 12288"); e(f"s_add_u32 s{sT0}, s{sT0}, {RED+(i-1)*4096}")
    e(f"v_add_u32 v{vT0+i}, s{sT0}, v{vL16}")
e(f"v_add_f32 v7, v{O+12}, v{O+28}"); e(f"v_add_f32 v7, v7, v{O+44}"); e(f"v_add_f32 v7, v7, v{O+60}")
e(f"v_cmp_ngt_f32 vcc, {f2u(2.0**40 if not FORCE_FB else -1.0)}, v7"); e(f"s_and_b64 vcc, vcc, s[{sUP}:{sUP+1}]")
e(f"s_cselect_b32 s{sT1}, 1.0, 0"); e(f"v_mov_b32 v7, s{sT1}")
for q in range(4): e(f"v_cndmask_b32 v{O+16*q+15}, v{O+16*q+15}, v7, s[{sUP}:{sUP+1}]")
e(f"s_mul_i32 s{sT0}, s{sW}, 12288"); e(f"s_add_u32 s{sT0}, s{sT0}, {RED}"); e(f"v_add_u32 v{vT0}, s{sT0}, v{vL16}")
for i in range(1,4):
    for q in range(4): A([lambda i=i,q=q: lg.op("rw",f"ds_write_b128 v{vT0+i}, {r('v',O+16*i+4*q,4)} offset:{q*1024}")])
A([lambda: lg.wait("rw"),"s_barrier"])
for i in range(0,12,2): A([(lambda i=i+k: lg.op(f"rr{i//4}",f"ds_read_b128 {r('v',O+16+4*i,4)}, v{vT0} offset:{i*1024}")) for k in range(2)])
V=[]
for i in range(3): V+=[lambda i=i: lg.wait(f"rr{i}")]+add2(O,O,O+16+16*i,(12,15,13,14,*range(12)),0)
V+=[lambda: vm.wait("g"), f"v_readlane_b32 s{sT0}, v{O+15}, 32\n  v_rcp_f32 v{vT0}, v{O+12}\n  s_cmp_lg_u32 s{sT0}, 0\n  s_cbranch_scc1 L_fb\nL_fbok:",
    f"v_mul_f32 v{vT0}, v{vT0}, v{vGO}", f"v_mov_b32 v{vT1}, v{vT0}\n  s_nop 1\n  v_permlane32_swap_b32 v{vT0}, v{vT1}\n  s_nop 1"]
V+=mul2(O,vT1)
V+=[f"v_cvt_pk_bf16_f32 v{Q+i}, v{O+2*i}, v{O+2*i+1}" for i in range(8)]
V+=[f"v_cndmask_b32 v{Q+i}, v{Q+i}, 0, s[{sUP}:{sUP+1}]" for i in (6,7)]
V+=[lambda: st2("o",Q,68), lambda: ts()]
V+=[f"s_cmp_eq_u32 s{sCB}, 7\n  s_cbranch_scc1 L_idle"]
tail.append("L_idle:\n  s_waitcnt vmcnt(0) lgkmcnt(0)\n  s_branch L_fin")
FG=opt("fg",6)
for i in range(0,len(V),FG): A(V[i:i+FG])
O0=opt("o0",22); R0=opt("r0",0)
dq=[]; rq=[(st,t,h) for st in range(NP,36) for t in range(2) for h in range(2)]; nd=14+NP
old=[(lambda s=s,u=u: gld(f"o{u}",OF+(s*2+u)*4,vOU+u,bH,s*1024-4096)) for u in (1,0) for s in range(8)]
def canread(x,st):
    return vm.cnt.get(f"d{x}",0)==2 and (x-NB<max(st,NP) if x<28 else st>=8)
for st in range(28):
    if st in (0,4,10,16,22): ts("p")
    if st==O0: assert not red; dq=carry(setb(bH,pWS,f"s{sOO}"))+old+dq
    vm.wait(f"h{st}")
    assert not rq or rq[0][0]>st
    lg.wait(f"w{st}")
    k=0
    for u in (1,0):
        for t in (1,0):
            p,b_=wloc(st)
            mfma(AB+32*u+16*t,b_+4*t,(st*2+u)*4,0 if st==0 else None,pa=p,pb="a")
            for _ in range(0 if st<R0 else (opt('rr',1) if red else 2)):
                if rq and canread(rq[0][0],st) and (rq[0][0]<=st+2 or vm.n(f"d{rq[0][0]}") is None or vm.n(f"d{rq[0][0]}")>=opt("dl",8)):
                    vm.wait(f"d{rq[0][0]}"); tr3(*rq.pop(0))
            if nd<36 and (not rq or rq[0][0]>nd-13) and lg.n(f"w{nd-13}")!=0:
                x=carry(dmaw2(nd) if nd<28 else dmawo(nd)); dq+=x[:-4]+[lambda nd=nd: lg.wait(f"w{nd-13}")]+x[-4:]; nd+=2
            if red:
                for x in red.pop(0): do(x)
            for _ in range(1 if red else 2):
                if dq and (not callable(dq[0]) or k in ((0,1,2,3),(0,1,2,3),(0,2),(0,1,2))[opt("dr",1)]): x=dq.pop(0); do(x)
                if opt("dr",1) and callable(x): break
            k+=1
print("left dq",len(dq),"rq",len(rq),"nd",nd,file=sys.stderr); assert nd==36
while dq: do(dq.pop(0))
while rq: vm.wait(f"d{rq[0][0]}"); tr3(*rq.pop(0))
for u in range(2): e(f"v_sub_f32 v{vG+u}, 1.0, v{vG+u}")
for i in range(1,4):
    e(f"s_xor_b32 s{sT0}, s{sW}, {i}"); e(f"s_mul_i32 s{sT0}, s{sT0}, {RS}")
    e(f"v_add_u32 v{vT0+i}, s{sT0}, v{vL16}")
e(f"v_add_u32 v{vT0}, s{sRW}, v{vL16}"); e("s_mov_b32 s69, 0")
def scl(q): return mul2(AB+16*q,vG+q//2,q==3)
ts("p")
IL=opt("il",0)
for x in scl(3): e(x)
if IL:
    for x in mul2(AB+32,vG+1,1): e(x)
def ochk(u):
    R=[OF+(s*2+u)*4+i for s in range(8) for i in range(4)]
    o=[f"v_max3_u32 v11, v{R[0]}, v{R[1]}, v{R[2]}",f"v_max3_u32 v12, v{R[3]}, v{R[4]}, v{R[5]}"]
    for i in range(6,32,2): o.append(f"v_max3_u32 v{11+(i//2)%2}, v{11+(i//2)%2}, v{R[i]}, v{R[i+1]}")
    return o+["v_max_u32 v11, v11, v12","v_cmp_eq_u32 vcc, -1, v11"]
def obr(u):
    global L
    e(f"s_cbranch_vccnz L_oretry{u}"); lab(f"L_ook{u}")
    m=L; L=[]; q_=list(vm.q); lab(f"L_oretry{u}"); e("s_add_u32 s69, s69, 1"); e("s_cmp_ge_u32 s69, 0x10000"); e(f"s_cbranch_scc1 L_ook{u}")
    for x in old[8*(1-u):8*(2-u)]: x()
    vm.all()
    for x in ochk(u): e(x)
    e("s_nop 1"); e(f"s_cbranch_vccnz L_oretry{u}"); e(f"s_branch L_ook{u}"); tail.append("\n".join(L)); L=m; vm.q=q_
vm.wait("o1")
for x in ochk(1): e(x)
lg.all(); obr(1); c0=ochk(0)
ts("mp")
fin=[f"v_and_b32 v7, 31, v{vL}",f"v_mul_u32_u24 v7, 896, v7",f"v_lshrrev_b32 v{vPOLL}, 5, v{vL}",f"v_lshl_add_u32 v7, v{vPOLL}, 4, v7",
     f"s_lshl_b32 s{sT0}, s{sTB}, 2",f"s_lshl_b32 s{sT1}, s{sTH}, 1",f"s_add_u32 s{sT0}, s{sT0}, s{sT1}",f"s_lshr_b32 s{sT1}, s{sW}, 1",f"s_add_u32 s{sT0}, s{sT0}, s{sT1}",
     f"s_mul_i32 s{sT0}, s{sT0}, {32*896}",f"s_lshl_b32 s{sT1}, s{sCB}, 7",f"s_add_u32 s{sT0}, s{sT0}, s{sT1}",f"s_and_b32 s{sT1}, s{sW}, 1",f"s_lshl_b32 s{sT1}, s{sT1}, 6",f"s_add_u32 s{sT0}, s{sT0}, s{sT1}"]
OT=opt("ot",1)
if OT:
    fin=[f"v_and_b32 v8, 31, v{vL}",f"v_mul_u32_u24 v8, 80, v8",f"v_lshrrev_b32 v9, 5, v{vL}",f"v_lshl_add_u32 v8, v9, 3, v8",f"v_add_u32 v8, s{sRW}, v8",
         f"v_lshrrev_b32 v9, 2, v{vL}",f"v_and_b32 v10, 48, v{vL16}",f"v_mul_u32_u24 v7, 896, v9",f"v_mul_u32_u24 v9, 80, v9",f"v_add_u32 v7, v7, v10",f"v_add3_u32 v9, v9, v10, s{sRW}"]+fin[4:]+[f"s_add_u32 s{sT1}, s{sT0}, {16*896}"]
if IL:
    seq=[3,2]*6+[3,1,3,1,2,1,2,1]+[0,1]*4+[0]*4; cn=[0]*4; F=scl(1)+scl(0)+fin; fin=[]
    def fw(q,k): lg.op("fw",f"ds_write_b128 v{vT0}, {r('v',AB+16*q+4*k,4)} offset:{(q-1)*4096+k*1024}")
    for i,q in enumerate(seq):
        t,u=q%2,q//2; s=cn[q]; cn[q]+=1
        mfma(AB+16*q,8*s+4*t,OF+(s*2+u)*4,None,pa="a")
        if 17<=i<25: fw(3 if i<21 else 2,(i-17)%4)
        if 9<=i<=12:
            if i==9: vm.wait("o0")
            for _ in range(5 if i==12 else 4): e(c0.pop(0))
            if i==12: e("s_nop 1"); obr(0)
        elif i<28:
            for _ in range(4):
                if F: e(F.pop(0))
        elif i<30:
            e("s_nop 4")
            if i==29:
                for k in range(4): fw(1,k)
        else:
            if i==30: lg.all(); e("s_barrier")
            for k in (range(8) if i==30 else range(8,12)): lg.op(f"fr{k//4}",f"ds_read_b128 {r('v',WG+4*k,4)}, v{vT0+1+k//4} offset:{k*1024}")
    assert not F and not c0
for q in (() if IL else (3,2,1,0)):
    t,u=q%2,q//2
    sc=scl(q-1) if q>0 else []
    for s in range(8):
        mfma(AB+16*q,8*s+4*t,OF+(s*2+u)*4,None,pa="a")
        if q>0:
            if s>=3 and s<7 and q<3: lg.op("fw",f"ds_write_b128 v{vT0}, {r('v',AB+16*(q+1)+4*(s-3),4)} offset:{q*4096+(s-3)*1024}")
            if q==2 and s>=4:
                if s==4: vm.wait("o0")
                for _ in range(5 if s==7 else 4): e(c0.pop(0))
                if s==7: assert not c0; e("s_nop 1"); obr(0)
                continue
            for _ in range(4 if s<4 else 3):
                if s<4:
                    if sc: e(sc.pop(0))
                elif fin: e(fin.pop(0))
        else:
            if s<2: e("s_nop 4")
            elif s<4:
                for k in range(2): lg.op("fw",f"ds_write_b128 v{vT0}, {r('v',AB+16+8*(s-2)+4*k,4)} offset:{(2*(s-2)+k)*1024}")
            elif s==5: lg.all(); e("s_barrier")
            if s>=5:
                for i in range(4*(s-5),4*(s-4)): lg.op(f"fr{i//4}",f"ds_read_b128 {r('v',WG+4*i,4)}, v{vT0+1+i//4} offset:{i*1024}")
ts("mp")
lg.wait("fr1")
for x in add2(WG,WG,WG+16,range(16)): e(x)
lg.wait("fr2")
if PKF: e("s_nop 7")
for x in add2(AB,AB,WG+32,range(16)): e(x)
assert not fin
OM=('','sc1','nt','sc0 sc1','sc1 nt')[opt('os',1)]
if OT:
    for g in range(4):
        for x in add2(AB,AB,WG,range(4*g,4*g+4)): e(x)
        for i in (2*g,2*g+1): e(f"v_cvt_pk_bf16_f32 v{Q+i}, v{AB+2*i}, v{AB+2*i+1}")
        e(f"ds_write_b64 v8, {r('v',Q+2*g,2)} offset:{16384+16*g}")
    for p in range(2): e(f"ds_read_b128 {r('v',Q+8+4*p,4)}, v9 offset:{16384+p*16*80}")
    for p in range(2): e(f"s_waitcnt lgkmcnt({1-p})"); e(f"buffer_store_dwordx4 {r('v',Q+8+4*p,4)}, v7, s[{sOUT}:{sOUT+3}], s{(sT0,sT1)[p]} offen {OM}")
else:
    for k in range(16): e(f"v_add_f32 v{AB+k}, v{AB+k}, v{WG+k}")
    pack(Q,AB); e("s_nop 1")
for p in range(0 if OT else 2):
    e(f"v_permlane32_swap_b32 v{Q+4*p}, v{Q+4*p+2}"); e(f"v_permlane32_swap_b32 v{Q+4*p+1}, v{Q+4*p+3}")
    e(f"buffer_store_dwordx4 {r('v',Q+4*p,4)}, v7, s[{sOUT}:{sOUT+3}], s{sT0} offen offset:{p*32} {OM}")
ts("p"); lab("L_fin")
if TS:
    e("s_waitcnt vmcnt(0)"); ts(); e("s_waitcnt lgkmcnt(0)")
    for i in range(tsn[0]): e(f"v_writelane_b32 v7, s{sTS+2*i}, {i}")
    e(f"s_lshl_b32 s{sT0}, s91, 2"); e(f"s_add_u32 s{sT0}, s{sT0}, s{sW}"); e(f"s_lshl_b32 s{sT0}, s{sT0}, 8"); e(f"s_add_u32 s{sT0}, s{sT0}, {WS_T}")
    e(f"v_lshlrev_b32 v{vT0}, 2, v{vL}"); e(f"buffer_store_dword v7, v{vT0}, s[{sWS}:{sWS+3}], s{sT0} offen")
e("s_endpgm")
for t in tail: L.append(t)
lab("L_fb")
e(f"s_cmp_lg_u32 s{sPASS}, 0"); e("s_cbranch_scc1 L_fbok"); e(f"s_mov_b32 s{sPASS}, 1"); e("s_waitcnt vmcnt(0) lgkmcnt(0)"); e("s_nop 15")
M=P
for x in (sSTB,sST0,sCOLB): e(f"s_mov_b32 s{x}, {WS_SZ}")
for q in range(4):
    e(f"v_mov_b32 v{M+q}, 0xff800000")
    for i in (6,7): e(f"v_cndmask_b32 v{Q+8*q+i}, v{Q+8*q+i}, 0, s[{sUP}:{sUP+1}]")
e(f"s_lshl_b32 s{sT3}, s{sW}, 16"); e(f"s_mov_b32 s{sT2}, 16")
lab("L_fbl")
for h in range(2): e(f"buffer_load_dwordx4 {r('v',KT+4*h,4)}, v{vL16}, s[{sWS}:{sWS+3}], s{sT3} offen offset:{h*1024} sc1")
e("s_waitcnt vmcnt(0)")
for q in range(4):
    mfma(S,KT,Q+8*q,0); mfma(S,KT+4,Q+8*q+4); e("s_nop 15")
    for i in range(0,16,2): e(f"v_max3_f32 v{M+q}, v{M+q}, v{S+i}, v{S+i+1}")
e(f"s_add_u32 s{sT3}, s{sT3}, 4096"); e(f"s_sub_u32 s{sT2}, s{sT2}, 1"); e(f"s_cmp_lg_u32 s{sT2}, 0"); e("s_cbranch_scc1 L_fbl")
e("s_barrier")
e(f"v_lshlrev_b32 v{vT2}, 2, v{vL}")
for q in range(4):
    halfmax(M+q)
    e(f"s_add_u32 s{sT0}, s{sW}, {q}"); e(f"s_and_b32 s{sT0}, s{sT0}, 3"); e(f"s_lshl_b32 s{sT0}, s{sT0}, 10"); e(f"s_add_u32 s{sT0}, s{sT0}, {RED}")
    e(f"v_add_u32 v{S+q}, s{sT0}, v{vT2}"); e(f"ds_write_b32 v{S+q}, v{M+q} offset:{q*256}")
e("s_waitcnt lgkmcnt(0)"); e("s_barrier")
for q in range(4):
    for i in range(4): e(f"ds_read_b32 v{S+4+i}, v{S+q} offset:{i*256}")
    e("s_waitcnt lgkmcnt(0)"); e(f"v_max3_f32 v{M+q}, v{S+4}, v{S+5}, v{S+6}"); e(f"v_max_f32 v{M+q}, v{M+q}, v{S+7}")
    mins(M+q,Q+8*q)
for x in kvinit(): do(x)
e("s_waitcnt vmcnt(0)"); e("s_barrier"); e("s_branch L_attn")
lab("L_end"); e("s_endpgm")
L.append(f""".section .rodata,"a"
.p2align 6
.amdhsa_kernel {NAME}_kernel
  .amdhsa_next_free_vgpr 512
  .amdhsa_next_free_sgpr 102
  .amdhsa_accum_offset 256
  .amdhsa_group_segment_fixed_size 0
  .amdhsa_kernarg_size 96
  .amdhsa_user_sgpr_count 2
  .amdhsa_user_sgpr_kernarg_segment_ptr 1
  .amdhsa_system_sgpr_workgroup_id_x 1
.end_amdhsa_kernel""")
out=[a for a in sys.argv[1:] if a.endswith(".s")]
open(out[0] if out else f"cdna_kernels/{NAME}.s","w").write("\n".join(L)+"\n")
```

```python
import sys, math, struct
NAME="gated_mix__grouped_kv_mqa__dense_activation_relu__prompt"
TC = "tc" in sys.argv
TS = "ts" in sys.argv or TC
FORCE_FB = "fb" in sys.argv
import re
DROP=[a[5:] for a in sys.argv if a.startswith("drop=")]
L=[]
def e(s): L.append("  "+s)
def lab(s): L.append(s+":")
def f2u(x): return "0x%08x"%struct.unpack("<I",struct.pack("<f",x))[0]
class VM:
    def __init__(s): s.q=[]; s.seen=set(); s.cnt={}
    def op(s,tag,txt):
        s.seen.add(tag); s.cnt[tag]=s.cnt.get(tag,0)+1
        for d in DROP:
            if re.fullmatch(d,tag): return
        e(txt); s.q.append(tag)
    def n(s,tag):
        assert tag in s.seen, tag
        idx=[i for i,t in enumerate(s.q) if t==tag]
        if not idx: return None
        return len(s.q)-1-idx[-1]
    def wait(s,tag):
        n=s.n(tag)
        if n is None: return
        n=min(n,63); e(f"s_waitcnt vmcnt({n})"); s.q=s.q[len(s.q)-n:] if n else []
    def all(s): e("s_waitcnt vmcnt(0)"); s.q=[]
vm=VM()
class LG(VM):
    def wait(s,tag):
        n=s.n(tag)
        if n is None: return
        n=min(n,15); e(f"s_waitcnt lgkmcnt({n})"); s.q=s.q[len(s.q)-n:] if n else []
    def all(s): e("s_waitcnt lgkmcnt(0)"); s.q=[]
lg=LG()
def opt(name,d):
    v=[a.split("=")[1] for a in sys.argv if a.startswith(name+"=")]
    return int(v[0]) if v else d
def r(p,a,n): return f"{p}[{a}:{a+n-1}]"
def mfma(d,a,b,c=None,pa="v",pb="v"):
    cc = "0" if c==0 and c is not None else r("v",d,16)
    e(f"v_mfma_f32_32x32x16_bf16 {r('v',d,16)}, {r(pa,a,4)}, {r(pb,b,4)}, {cc}")
WS_KV=0; WS_H=0; WS_O=0x70000; WS_G=0x90000; WS_C=0x91000; WS_PAD=0xa0000; WS_T=0x1800000; WS_SZ=0x2000000
RS=28672; W0B=4*RS; QX=147456; XA=0; WBA=65536; W0A=131072; RED=114688
sX,sW0,sWB,sWS,sWO,sOUT,sDBG=8,12,16,20,24,28,32
bKV,bH,bW2,pW2s=36,38,40,42
sTB,sJ,sW,sRW,sST0,sROT,sSTB,sCOLB,sT0,sT1,sT2,sT3,sTT,sPASS,sCNT,sSP,sHO,sW2O,sWOO,sOO,sTH,sCB=range(44,66)
sUP=66; sBK=2; sXB=93; sTS=70; sPR=3
tsn=[0]
TSET=[a[4:] for a in sys.argv if a.startswith("set=")]; TSET=TSET[0] if TSET else "m"
def ts(k="m",idx=None):
    if TS and (TSET in k or k=="*"):
        if idx is not None: tsn[0]=idx
        e(f"{'s_memtime' if TC else 's_memrealtime'} s[{sTS+2*tsn[0]}:{sTS+2*tsn[0]+1}]"); tsn[0]+=1
def srd(d,b,size):
    e(f"s_mov_b32 s{d}, s{b}"); e(f"s_and_b32 s{d+1}, s{b+1}, 0xffff")
    e(f"s_mov_b32 s{d+2}, {size}"); e(f"s_mov_b32 s{d+3}, 0x20000")
vL,vL16,vT0,vT1,vT2,vT3=1,2,3,4,5,6
vXA=8;vXR=12;vW0A=16;vWBA=17;vTR0=21;vTRB=22;vTR3=26;vPOLL=28;vGO=29;vG=30;vD3=240;vHU=244;vOU=246;vONE=248;vSIG=249;vZ=250
WF=32;PK=48;B0=64;A0=128
Q=32;O=64;S=128;P=160;KV=168;KT=232
OF=64;WG=192;AB=128
hdr=open(f"cdna_kernels/{NAME}.s.ref").read().split("; Override")[0]
L.append(hdr.rstrip())
L.append("; @launch grid=(256,1,1) block=(256,1,1) lds=163840")
L.append(f'.amdgcn_target "amdgcn-amd-amdhsa--gfx950"\n.text\n.globl {NAME}_kernel\n.p2align 8\n.type {NAME}_kernel,@function\n{NAME}_kernel:')
e("s_cmp_ge_u32 s2, 256"); e("s_cbranch_scc1 L_end")
ts("*")
e("s_load_dwordx16 s[8:23], s[0:1], 0"); e("s_load_dwordx8 s[92:99], s[0:1], 64")
e(f"v_lshrrev_b32 v{vT0}, 6, v0"); e(f"v_and_b32 v{vL}, 63, v0")
if opt("map",1):
    e(f"s_bfe_u32 s{sT0}, s2, 0x20001"); e(f"v_readfirstlane_b32 s{sW}, v{vT0}")
    e(f"s_lshl_b32 s{sT0}, s{sT0}, 2"); e(f"s_bfe_u32 s{sT1}, s2, 0x20003"); e(f"s_or_b32 s{sTB}, s{sT0}, s{sT1}")
    e(f"s_and_b32 s{sTH}, s2, 1"); e(f"s_lshr_b32 s{sCB}, s2, 5")
else:
    e(f"s_and_b32 s{sT0}, s2, 7"); e(f"v_readfirstlane_b32 s{sW}, v{vT0}")
    e(f"s_lshl_b32 s{sT0}, s{sT0}, 1"); e(f"s_bfe_u32 s{sT1}, s2, 0x10003"); e(f"s_or_b32 s{sTB}, s{sT0}, s{sT1}")
    e(f"s_bfe_u32 s{sTH}, s2, 0x10004"); e(f"s_lshr_b32 s{sCB}, s2, 5")
e(f"s_lshl_b32 s{sJ}, s{sTH}, 3"); e(f"s_or_b32 s{sJ}, s{sJ}, s{sCB}")
e(f"v_lshlrev_b32 v{vL16}, 4, v{vL}")
if TS: e("s_mov_b32 s91, s2")
e(f"s_add_u32 s{sBK}, s{sTB}, 1"); e(f"s_lshl_b32 s{sBK}, s{sBK}, 20")
e(f"s_mul_i32 s{sRW}, s{sW}, {RS}")
e(f"s_lshl_b32 s{sTT}, s{sTB}, 2"); e(f"s_add_u32 s{sTT}, s{sTT}, s{sW}")
def rot7():
    e(f"s_lshl_b32 s{sT0}, s{sTB}, 1"); e(f"s_add_u32 s{sT0}, s{sT0}, s{sJ}"); e(f"s_mul_i32 s{sT1}, s{sT0}, 37"); e(f"s_lshr_b32 s{sT1}, s{sT1}, 8")
    e(f"s_mul_i32 s{sT1}, s{sT1}, 7"); e(f"s_sub_u32 s{sROT}, s{sT0}, s{sT1}")
ROT=opt("rot",1)
if ROT==1: rot7()
if ROT==0: e(f"s_mov_b32 s{sROT}, 0")
if ROT==2: e(f"s_add_u32 s{sT0}, s{sTB}, s{sCB}"); e(f"s_and_b32 s{sT0}, s{sT0}, 1"); e(f"s_mul_i32 s{sROT}, s{sT0}, 3")
if ROT==3: e(f"s_add_u32 s{sT0}, s{sTB}, s{sCB}"); e(f"s_mul_i32 s{sT1}, s{sT0}, 43"); e(f"s_lshr_b32 s{sT1}, s{sT1}, 7"); e(f"s_mul_i32 s{sT1}, s{sT1}, 3"); e(f"s_sub_u32 s{sT0}, s{sT0}, s{sT1}"); e(f"s_lshl_b32 s{sROT}, s{sT0}, 1")
if ROT==4: e(f"s_and_b32 s{sT0}, s{sTB}, 1"); e(f"s_mul_i32 s{sROT}, s{sT0}, 3")
if ROT==5: e(f"s_and_b32 s{sT0}, s{sTB}, 3"); e(f"s_lshl_b32 s{sROT}, s{sT0}, 1")
if ROT==6: e(f"s_cmp_eq_u32 s{sCB}, 7"); e(f"s_cselect_b32 s{sROT}, 0, s{sCB}")
e(f"v_lshrrev_b32 v7, 3, v{vL}"); e(f"v_mul_u32_u24 v{vT0}, 896, v7")
e(f"v_and_b32 v{vT1}, 7, v{vL}"); e(f"v_lshrrev_b32 v{vT2}, 4, v{vL}"); e(f"v_xor_b32 v{vT2}, v{vT1}, v{vT2}")
e(f"v_lshl_add_u32 v{vXA}, v{vT2}, 4, v{vT0}")
e(f"v_xor_b32 v{vT2}, 4, v{vT2}"); e(f"v_lshl_add_u32 v{vXA+1}, v{vT2}, 4, v{vT0}")
e(f"v_add_u32 v{vXA+2}, {2*6144}, v{vXA}"); e(f"v_add_u32 v{vXA+3}, {3*6144}, v{vXA+1}"); e(f"v_add_u32 v{vXA+1}, 6144, v{vXA+1}")
e(f"v_bfe_u32 v{vT2}, v{vL}, 4, 1"); e(f"v_lshlrev_b32 v{vT2}, 2, v{vT2}"); e(f"v_xor_b32 v{vT2}, v{vT1}, v{vT2}"); e(f"v_lshlrev_b32 v{vWBA}, 4, v{vT2}")
e(f"v_add_u32 v{vD3}, v{vWBA}, v{vT0}")
e(f"v_lshrrev_b32 v{vT0}, 2, v{vL}"); e(f"v_and_b32 v{vT1}, 3, v{vL}"); e(f"v_lshlrev_b32 v{vT1}, 4, v{vT1}")
e(f"s_cmp_lt_u32 s{sCB}, 1"); e(f"s_cselect_b32 s{sSP}, 1, 0")
ts("i"); e("s_waitcnt lgkmcnt(0)")
ts("si")
pG,pOUT,pDBG,pWS=92,94,96,98
TW=opt("tw",1)
if TW&1:
    for p in (8,10,20,12,14,22,16,pOUT): e(f"s_load_dword s90, s[{p}:{p+1}], 0")
    e(f"s_load_dword s90, s[{pWS}:{pWS+1}], {WS_PAD}"); e(f"s_add_u32 s{sT0}, s{sBK}, {WS_PAD}"); e(f"s_load_dword s90, s[{pWS}:{pWS+1}], s{sT0}")
e("s_mov_b64 s[4:5], s[20:21]"); e("s_mov_b64 s[6:7], s[10:11]"); e(f"s_mov_b64 s[{pW2s}:{pW2s+1}], s[22:23]")
srd(sWO,16,401408)
e("s_mov_b64 s[100:101], s[12:13]"); e(f"s_mov_b32 s{sST0}, 56"); e(f"s_mov_b32 s{sT3}, 25088"); e(f"s_mov_b32 s{sT2}, 0")
e(f"s_cmp_eq_u32 s{sJ}, 0"); e("s_cbranch_scc1 L_w0done")
e("s_mov_b64 s[100:101], s[14:15]")
e(f"s_cmp_eq_u32 s{sJ}, 8"); e("s_cbranch_scc1 L_w0done")
e("s_mov_b64 s[100:101], s[6:7]"); e(f"s_mov_b32 s{sST0}, 896"); e(f"s_mov_b32 s{sT3}, 401408"); e(f"s_mul_i32 s{sT2}, s{sJ}, 56")
lab("L_w0done")
srd(sW0,100,f"s{sT3}"); srd(sX,8,1835008)
e(f"v_mad_u32_u24 v{vW0A}, v{vT0}, s{sST0}, v{vT1}")
e(f"s_lshl_b32 s{sST0}, s{sST0}, 4"); e(f"s_mul_i32 s{sT1}, s{sW}, s{sST0}"); e(f"s_add_u32 s{sT2}, s{sT2}, s{sT1}"); e(f"s_lshl_b32 s{sST0}, s{sST0}, 2")
e(f"s_mul_i32 s{sT3}, s{sTT}, {32*896}")
def rotc(c):
    if c==0: e(f"s_mov_b32 s{sPR}, s{sROT}")
    else: e(f"s_add_u32 s{sPR}, s{sPR}, 1"); e(f"s_cmp_eq_u32 s{sPR}, 7"); e(f"s_cselect_b32 s{sPR}, 0, s{sPR}")
e(f"s_lshl_b32 s{sT0}, s{sCB}, 1"); e(f"s_mul_i32 s{sT1}, s{sTH}, 14"); e(f"s_add_u32 s68, s{sT0}, s{sT1}"); e(f"s_sub_u32 s68, s68, 2")
e(f"s_lshr_b32 s{sT1}, s{sW}, 1"); e(f"s_add_u32 s{sT0}, s68, s{sT1}"); e(f"s_lshl_b32 s{sCOLB}, s{sT0}, 7")
e(f"s_and_b32 s{sT0}, s{sW}, 1"); e(f"s_add_u32 s68, s68, s{sT0}"); e(f"s_mul_i32 s{sT0}, s{sT0}, {32*3584}"); e(f"s_add_u32 s{sCOLB}, s{sCOLB}, s{sT0}")
srd(sWB,4,1605632); e(f"s_mov_b32 s{sSTB}, 3584")
e(f"v_mad_u32_u24 v{vWBA}, v7, s{sSTB}, v{vWBA}")
for i in range(1,4): e(f"v_add_u32 v{vWBA+i}, {8*3584-1024}, v{vWBA+i-1}")
e(f"s_mov_b64 s[100:101], s[{pG}:{pG+1}]")
PD=opt("pd",2)
e(f"s_lshl_b32 s92, s{sW}, 10"); e(f"s_lshl_b32 s{sXB}, s{sW}, 12")
MOD=('','sc1','nt','sc0 sc1','sc1 nt','sc0')
W7=opt("w7",0)
def xdma(c,sweep,wb):
    o=xdma_(c,sweep,wb)
    return o[:1]+o[3:] if sweep and PD<=c<W7 else o
def xdma_(c,sweep,wb):
    o=[lambda: rotc(c), f"s_mul_i32 s{sT1}, s{sPR}, s{sST0}\n  s_add_u32 m0, s92, {(W0A+(c if W7 else c%4)*4096) if sweep else (W0B+c*4096)}\n  s_add_u32 s{sT1}, s{sT1}, s{sT2}",
       lambda: vm.op(f"x{c}",f"buffer_load_dwordx4 v{vW0A}, s[{sW0}:{sW0+3}], s{sT1} offen {MOD[opt('qm',0)]} lds"),
       f"s_lshl_b32 s{sT1}, s{sPR}, 7\n  s_add_u32 m0, s{sXB}, {(c%4)*16384 if sweep else c*4096}\n  s_add_u32 s{sT1}, s{sT1}, s{sT3}"]
    o+=[(lambda i=i: vm.op(f"x{c}",f"buffer_load_dwordx4 v{vXA+i}, s[{sX}:{sX+3}], s{sT1} offen offset:{i*1024} {MOD[opt('xm',0)]} lds")) for i in range(4)]
    if wb:
        o+=[f"s_mul_i32 s{sT1}, s{sPR}, {64*3584}\n  s_add_u32 m0, s{sXB}, {WBA+(c%4)*16384}\n  s_add_u32 s{sT1}, s{sT1}, s{sCOLB}"]
        o+=[(lambda i=i: vm.op(f"x{c}",f"buffer_load_dwordx4 v{vWBA+i}, s[{sWB}:{sWB+3}], s{sT1} offen offset:{i*1024} {MOD[opt('xm',0)]} lds")) for i in range(4)]
    return o
def do(x):
    if callable(x): x()
    else: e(x)
tail=[]
ts("i")
e(f"s_cmp_eq_u32 s{sSP}, 1"); e("s_cbranch_scc1 L_i2")
main=L; L=[]; lab("L_i2"); e(f"s_mov_b32 s{sXB}, s{sRW}")
PA=opt("pa",3)
GI=QX+8192
srd(sWB,100,896); e(f"s_mov_b32 m0, {GI}"); e("s_movk_i32 s69, 896")
vm.op("gate",f"buffer_load_dwordx4 v{vL16}, s[{sWB}:{sWB+3}], 0 offen lds")
GFL=opt("gf",2); PW=opt("pw",1)*GFL; NR=opt("nr",32); FL=0x80000; NZ=32//max(GFL,1); vFP=160; vFS=161; vT8=162
for c in range(-1,PA):
    for x in (xdma(c,False,False) if c>=0 else []): do(x)
    if GFL==1 and c==opt("zc",0):
        srd(sWS,pWS,WS_SZ); e(f"s_lshl1_add_u32 s{sT1}, s{sTB}, s{sTH}"); e(f"s_lshl2_add_u32 s{sT1}, s{sT1}, {FL}")
        e(f"v_mul_u32_u24 v{vFS}, 0x1100, v0"); e(f"v_add_u32 v{vFS}, s{sT1}, v{vFS}"); e(f"v_mov_b32 v{vFP}, {WS_SZ}"); e(f"v_cmp_gt_u32 vcc, {NR}, v0")
        e(f"v_mov_b32 v{vT8+1}, 0"); e(f"v_cndmask_b32 v{vFS}, v{vFP}, v{vFS}, vcc")
        vm.op("z",f"buffer_store_dword v{vT8+1}, v{vFS}, s[{sWS}:{sWS+3}], 0 offen sc1")
srd(sWB,6,401408); e(f"v_mad_u32_u24 v{vWBA}, v{vT0}, s69, v{vT1}")
e(f"s_mul_i32 s{sCOLB}, s{sJ}, 56"); e(f"s_mul_i32 s{sT1}, s{sW}, {16*896}"); e(f"s_add_u32 s{sCOLB}, s{sCOLB}, s{sT1}")
e("s_branch L_i3"); tail.append("\n".join(L)); L=main; q0=list(vm.q)+["pf"]; vm.q=[]
def zer(nm,f):
    global L
    e(f"s_lshl2_add_u32 s{sT1}, s{sJ}, s{sW}"); e(f"s_cmp_eq_u32 s{sT1}, 28"); e(f"s_cbranch_scc1 L_{nm}"); lab(f"L_{nm}r")
    m=L; L=[]; lab(f"L_{nm}"); f(); e(f"s_branch L_{nm}r"); tail.append("\n".join(L)); L=m
def z1():
    srd(sWS,pWS,WS_SZ); e(f"s_mul_i32 s{sT1}, s{sTB}, 0x2200"); e(f"s_add_u32 s{sT1}, s{sT1}, {FL}")
    e(f"v_lshrrev_b32 v{vFS}, 5, v0"); e(f"v_mul_u32_u24 v{vFS}, {0x1100-128}, v{vFS}"); e(f"v_lshl_add_u32 v{vFS}, v0, 2, v{vFS}"); e(f"v_mov_b32 v{vT8+1}, 0")
    e(f"buffer_store_dword v{vT8+1}, v{vFS}, s[{sWS}:{sWS+3}], s{sT1} offen sc1")
ZE=opt("ze",1)
def z2():
    if ZE: srd(sDBG,pDBG,256); e(f"v_mov_b32 v{vONE}, 1"); e(f"s_waitcnt vmcnt({len(vm.q)})")
    e(f"v_lshlrev_b32 v{vT8+2}, 7, v0"); e(f"buffer_atomic_add v{vONE}, v{vT8+2}, s[{sDBG}:{sDBG+3}], 0 offen sc1")
if GFL==2: assert NR==32; zer("z1",z1)
for c in range(PD):
    for i,x in enumerate(xdma(c,True,True)):
        do(x)
        if c==0 and i in (2,7): ts("i")
    ts("i")
    if GFL==2 and ZE==c+1: zer("z2",z2)
if W7>PD:
    e(f"s_mov_b32 s69, s{sPR}")
    for c in range(PD,W7):
        for x in xdma_(c,True,True)[:3]: do(x)
    e(f"s_mov_b32 s{sPR}, s69")
lab("L_i3")
e("s_getpc_b64 s[4:5]"); lab("L_pc")
e(f"s_mul_i32 s{sT1}, s{sW}, 8192"); e(f"v_lshlrev_b32 v{vT2}, 7, v{vL}"); e(f"v_add_u32 v{vT2}, s{sT1}, v{vT2}")
e(f"v_min_u32 v{vT2}, L_end-L_pc, v{vT2}")
vm.op("pf",f"global_load_dword v{vPOLL}, v{vT2}, s[4:5]")
qs=list(vm.q)
srd(sWS,pWS,WS_SZ); srd(sOUT,pOUT,1835008); srd(sDBG,pDBG,256)
e(f"s_mov_b32 s{sUP}, 0"); e(f"s_mov_b32 s{sUP+1}, -1")
for i in range(1,4): e(f"v_add_u32 v{vD3+i}, {6144*i}, v{vD3}")
e(f"v_and_b32 v{vT0}, 31, v{vL}"); e(f"v_lshrrev_b32 v{vT1}, 5, v{vL}"); e(f"v_bfe_u32 v{vT2}, v{vL}, 1, 3")
e(f"v_xor_b32 v{vT2}, v{vT1}, v{vT2}"); e(f"v_lshlrev_b32 v{vT0}, 7, v{vT0}"); e(f"v_add_u32 v{vT0}, s{sXB}, v{vT0}")
for s in range(4):
    e(f"v_xor_b32 v{vT3}, {2*s}, v{vT2}"); e(f"v_lshl_add_u32 v{vXR+s}, v{vT3}, 4, v{vT0}"); e(f"v_xor_b32 v{252+s}, 0x1000, v{vXR+s}")
e(f"v_bfe_u32 v{vT0}, v{vL}, 2, 2"); e(f"v_bfe_u32 v{vT2}, v{vL}, 4, 1"); e(f"v_and_b32 v{vT3}, 3, v{vL}")
e(f"v_lshlrev_b32 v{vT3}, 3, v{vT3}"); e(f"v_lshl_add_u32 v{vT3}, v{vT2}, 5, v{vT3}")
e(f"v_lshl_add_u32 v{vT2}, v{vT1}, 3, v{vT0}"); e(f"v_lshl_add_u32 v{vTR0}, v{vT2}, 6, v{vT3}"); e(f"s_cmp_eq_u32 s{sSP}, 1"); e(f"s_cselect_b32 s{sT0}, {W0B-W0A}, 0"); e(f"s_add_u32 s{sT0}, s{sT0}, {W0A}"); e(f"v_mov_b32 v{vTRB+2}, v{vTR0}"); e(f"v_add_u32 v{vTRB+3}, {2*RS}, v{vTR0}"); e(f"v_add_u32 v{vTR0}, s{sT0}, v{vTR0}")
e(f"s_and_b32 s{sT1}, s{sW}, 1"); e(f"s_lshl_b32 s{sT1}, s{sT1}, 13"); e(f"s_add_u32 s{sT1}, s{sT1}, {WBA}")
e(f"v_bfe_u32 v7, v{vL}, 3, 1"); e(f"v_lshl_add_u32 v{vT3}, v7, 6, v{vT3}")
e(f"v_lshl_add_u32 v{vTRB}, v{vT2}, 7, v{vT3}"); e(f"v_add_u32 v{vTRB}, s{sT1}, v{vTRB}"); e(f"v_xor_b32 v{vTRB+1}, 64, v{vTRB}")
e(f"v_lshl_add_u32 v{vT2}, v{vT1}, 2, v{vT0}"); e(f"v_lshl_add_u32 v{vT3}, v{vT2}, 7, v{vT3}")
e(f"s_and_b32 s{sT0}, s{sW}, 1"); e(f"s_lshl_b32 s{sT0}, s{sT0}, 6"); e(f"v_xor_b32 v{vT3}, s{sT0}, v{vT3}"); e(f"v_add_u32 v{vTR3}, s{sRW}, v{vT3}")
e(f"v_xor_b32 v{vT3}, 64, v{vT3}"); e(f"v_add_u32 v{vTR3+1}, s{sRW}, v{vT3}")
e(f"s_lshr_b32 s{sT0}, s{sW}, 1"); e(f"s_xor_b32 s{sT1}, s{sT0}, 1")
for u in range(2):
    e(f"s_mul_i32 s69, s{sT0+u}, {112*1024}"); e(f"v_add_u32 v{vHU+u}, s69, v{vL16}"); e(f"s_lshl_b32 s69, s{sT0+u}, 15"); e(f"v_add_u32 v{vOU+u}, s69, v{vL16}")
e(f"v_mov_b32 v{vONE}, 1"); e(f"v_lshlrev_b32 v{vSIG}, 25, v{vL}"); e(f"v_mov_b32 v{vZ}, 0")
e(f"s_add_u32 s{sCNT}, s{sBK}, {WS_C}")
e(f"s_lshl_b32 s{sT0}, s{sTH}, 1")
e(f"s_mul_i32 s{sHO}, s{sT0}, {112*1024}"); e(f"s_mul_i32 s{sT1}, s{sW}, {28*1024}"); e(f"s_add_u32 s{sHO}, s{sHO}, s{sT1}"); e(f"s_add_u32 s{sHO}, s{sHO}, s{sBK}")
e(f"s_lshl_b32 s{sOO}, s{sT0}, 15"); e(f"s_lshl_b32 s{sT1}, s{sW}, 13"); e(f"s_add_u32 s{sOO}, s{sOO}, s{sT1}"); e(f"s_add_u32 s{sOO}, s{sOO}, {WS_O+4096}"); e(f"s_add_u32 s{sOO}, s{sOO}, s{sBK}")
e(f"s_min_u32 s{sT1}, s{sCB}, 6"); e(f"s_lshl_b32 s{sT1}, s{sT1}, 7"); e(f"s_mul_i32 s{sW2O}, s{sW}, {448*896}"); e(f"s_add_u32 s{sW2O}, s{sW2O}, s{sT1}")
e(f"s_mul_i32 s{sWOO}, s{sW}, {112*896}"); e(f"s_add_u32 s{sWOO}, s{sWOO}, s{sT1}")
e(f"s_mov_b32 s{sPASS}, 0")
if GFL:
    e(f"s_lshl1_add_u32 s{sT1}, s{sTB}, s{sTH}"); e(f"s_lshl_b32 s{sT0}, s{sCB}, 5"); e(f"s_add_u32 s{sT1}, s{sT1}, s{sT0}"); e(f"s_and_b32 s{sT1}, s{sT1}, {NR-1}")
    e(f"s_mul_i32 s{sT1}, s{sT1}, 0x1100"); e(f"s_add_u32 s{sT1}, s{sT1}, {FL}");
    if not PW: e(f"s_cmp_eq_u32 s{sW}, 0"); e(f"s_cselect_b32 s{sT1}, s{sT1}, {WS_SZ}")
    e(f"v_and_b32 v{vFP}, 31, v0"); e(f"v_lshl_add_u32 v{vFP}, v{vFP}, 2, s{sT1}"); e(f"v_lshlrev_b32 v{vT8}, 8, v0")
if TW&2:
    e(f"s_add_u32 s{sT0}, s{sBK}, {WS_PAD}"); e(f"s_mov_b32 s{sT1}, {WS_PAD}")
    for x in (f"s[{sWS}:{sWS+3}], s{sT0}",f"s[{sWS}:{sWS+3}], s{sT1}",f"s[{sWO}:{sWO+3}], 0",f"s[{sOUT}:{sOUT+3}], 0",f"s[{sDBG}:{sDBG+3}], 0"): e(f"buffer_load_dword v251, v{vSIG}, {x} offen offset:128 sc1")
    e(f"global_load_dword v251, v{vZ}, s[{pW2s}:{pW2s+1}]")
    q0+=["tw"]*6; qs+=["tw"]*6
ts("si")
def wql():
    o=[]
    for c in range(7):
        o+=[(lambda c=c: rotc(c)), f"s_mul_i32 s{sT1}, s{sPR}, {64*896}\n  s_add_u32 m0, s{sRW}, {c*1024}\n  s_add_u32 s{sT1}, s{sT1}, s{sCOLB}",
            lambda: vm.op("wq",f"buffer_load_dwordx4 v{vWBA}, s[{sWB}:{sWB+3}], s{sT1} offen lds")]
    return o
GF=96; NE=opt("ne",1)
ld0b=f"buffer_load_dword v{vPOLL}, v{vT8}, s[{sDBG}:{sDBG+3}], 0 offen offset:128 sc1"
def passA(kind):
    if GFL==2:
        e(f"s_lshl1_add_u32 s{sT1}, s{sTB}, s{sTH}"); e(f"s_lshl2_add_u32 s{sT1}, s{sT1}, {FL}")
        e(f"v_mul_u32_u24 v{vFS}, 0x1100, v0"); e(f"v_add_u32 v{vFS}, s{sT1}, v{vFS}"); e(f"v_mov_b32 v{vT8+1}, {WS_SZ}"); e(f"v_cmp_gt_u32 vcc, {NR}, v0")
        e("s_nop 0"); e(f"v_cndmask_b32 v{vFS}, v{vT8+1}, v{vFS}, vcc")
    e(f"v_lshrrev_b32 v{vT2}, 5, v{vL}"); e(f"v_lshlrev_b32 v{vT2}, 4, v{vT2}"); e(f"v_add_u32 v{vT2}, {GI}, v{vT2}"); e(f"s_mov_b32 s{sSTB}, s{sROT}")
    vm.wait("gate") if PA<2 else None
    for c in range(8):
        side=[]
        if c<7:
            e(f"s_lshl_b32 s69, s{sSTB}, 7"); e(f"v_add_u32 v7, s69, v{vT2}"); e(f"s_add_u32 s{sSTB}, s{sSTB}, 1"); e(f"s_cmp_eq_u32 s{sSTB}, 7"); e(f"s_cselect_b32 s{sSTB}, 0, s{sSTB}")
            vm.wait(f"x{c}")
            if GFL==2 and c==opt("zp",5): vm.op("p0",ld0b)
            if GFL==1 and c==opt("zc",0)+1: vm.wait("z"); vm.op("za",f"buffer_atomic_add v{vONE}, v{vT8}, s[{sDBG}:{sDBG+3}], 0 offen sc1")
            if c in (0,1,3,6): ts("s",{0:3,1:4,3:5,6:6}[c])
            if c: lg.all()
            for s in range(4): lg.op(f"x{c}",f"ds_read_b128 {r('a',16*c+4*s,4)}, v{vXR+s} offset:{c*4096}")
            e("s_barrier")
            for s in range(4):
                for h in range(2): lg.op("w",f"ds_read_b64_tr_b16 {r('v',WF+16*(c%2)+4*s+2*h,2)}, v{vTR0} offset:{(4*c+s)*1024+h*256}")
            if kind=="k": side=[(lambda s=s: lg.op("w",f"ds_read_b128 {r('v',GF+16*(c%2)+4*s,4)}, v7 offset:{s*32}")) for s in range(4)]
            if c+PA<7: side+=xdma(c+PA,False,False)
            elif c==7-PA and NE: side+=wql()
        else: lg.all()
        for s in range(4 if c else 0):
            z=0 if (c==1 and s==0) else None; w=WF+16*((c-1)%2)+4*s
            if kind=="v": mfma(B0,16*(c-1)+4*s,w,z,pa="a")
            else: mfma(B0,w,16*(c-1)+4*s,z,pb="a")
            for _ in range(2):
                if side: do(side.pop(0))
            if kind=="k" and c<7: mfma(B0+16,GF+16*((c-1)%2)+4*s,16*(c-1)+4*s,z,pb="a")
            if side: do(side.pop(0))
        while side: do(side.pop(0))
def pack(dst,src,relu=False):
    for i in range(8): e(f"v_cvt_pk_bf16_f32 v{dst+i}, v{src+2*i}, v{src+2*i+1}")
    if relu:
        for i in range(8): e(f"v_pk_max_i16 v{dst+i}, v{dst+i}, 0")
def st2(tag,src,soff,off=0):
    for h in range(2): vm.op(tag,f"buffer_store_dwordx4 {r('v',src+4*h,4)}, v{vL16}, s[{sWS}:{sWS+3}], s{soff} offen offset:{off+h*1024} sc1")
e(f"s_cmp_eq_u32 s{sSP}, 1"); e("s_cbranch_scc1 L_sp")
main=L; L=[]
lab("L_sp"); e(f"s_cmp_eq_u32 s{sJ}, 8"); e("s_cbranch_scc1 L_av")
lab("L_ak"); vm.q=list(q0); passA("k")
e(f"v_lshlrev_b32 v{vT0}, 7, v{vL}"); e(f"v_cmp_gt_u32 vcc, 1, v{vL}"); e(f"v_mov_b32 v{vT2}, {WS_SZ}"); e(f"s_lshl_b32 s{sT0}, s{sTT}, 12")
e(f"v_cndmask_b32 v{vT2}, v{vT2}, v{vT0}, vcc")
e(f"buffer_store_dword v{vZ}, v{vT2}, s[{sWS}:{sWS+3}], s{sCNT} offen sc1")
e(f"v_mov_b32 v{vT0}, 0x3f803f80"); e(f"v_mov_b32 v{vT1}, 0x00003f80"); e("s_nop 7")
pack(PK,B0)
e(f"v_cndmask_b32 v{PK+6}, v{PK+6}, v{vT0}, s[{sUP}:{sUP+1}]"); e(f"v_cndmask_b32 v{PK+7}, v{PK+7}, v{vT1}, s[{sUP}:{sUP+1}]")
st2("a",PK,sT0)
for s_ in range(4): mfma(B0+16,GF+4*s_,96+4*s_,None,pb="a")
e(f"v_and_b32 v{vT1}, 31, v{vL}"); e(f"v_lshlrev_b32 v{vT1}, 2, v{vT1}")
e(f"s_lshl_b32 s{sT0}, s{sW}, 7"); e(f"s_add_u32 s{sT0}, s{sT0}, {WS_G}"); e(f"s_add_u32 s{sT0}, s{sT0}, s{sBK}"); e("s_nop 7")
e(f"v_mul_f32 v{vT0}, {f2u(-math.log2(math.e))}, v{B0+16}"); e(f"v_exp_f32 v{vT0}, v{vT0}"); e("s_nop 0"); e(f"v_add_f32 v{vT0}, 1.0, v{vT0}")
e(f"v_rcp_f32 v{vT0}, v{vT0}"); e("s_nop 0")
e(f"buffer_store_dword v{vT0}, v{vT1}, s[{sWS}:{sWS+3}], s{sT0} offen sc1")
e("s_branch L_akv")
lab("L_av"); vm.q=list(q0); passA("v")
e(f"v_and_b32 v{vT0}, 31, v{vL}"); e(f"v_mov_b32 v{vT1}, 0x3f803f80"); e(f"v_cmp_eq_u32 vcc, 28, v{vT0}"); e("s_nop 1")
e(f"v_cndmask_b32 v{vT1}, 0, v{vT1}, vcc"); e(f"v_cmp_gt_u32 vcc, 28, v{vT0}"); e("s_nop 7")
pack(PK,B0)
for i in range(8): e(f"v_cndmask_b32 v{PK+i}, v{vT1}, v{PK+i}, vcc")
e(f"s_lshl_b32 s{sT0}, s{sTT}, 12"); e(f"s_add_u32 s{sT0}, s{sT0}, 2048")
st2("a",PK,sT0)
lab("L_akv")
if not NE:
    for x in wql(): do(x)
def spin(name,tag,ld,target,two=False):
    def chk():
        if target is None: return f"  v_cmp_eq_u32 vcc, 1, v{vPOLL}\n  s_cmp_eq_u64 vcc, -1"
        return f"  v_readfirstlane_b32 s{sT0}, v{vPOLL}\n  s_cmp_ge_u32 s{sT0}, {target}"
    q_=list(vm.q)
    if two: e(f"s_cmp_lg_u32 s{sW}, 0"); e(f"s_cbranch_scc1 L_ok{name}")
    vm.wait(tag); L.append(chk()); e(f"s_cbranch_scc0 L_sp{name}"); lab(f"L_ok{name}")
    if two: vm.q=q_
    tail.append(f"""L_sp{name}:
  s_mov_b32 s69, 0
{f"  s_cmp_lg_u32 s{sW}, 0"+chr(10)+f"  s_cbranch_scc1 L_ok{name}" if two else ""}
L_sq{name}:
  s_sleep {opt("slp",8)}
  {ld}
  s_add_u32 s69, s69, 1
  s_waitcnt vmcnt(0)
  s_cmp_ge_u32 s69, 0x40000
  s_cbranch_scc1 L_ok{name}
{chk()}
  s_cbranch_scc0 L_sq{name}
  s_branch L_ok{name}""")
vm.wait("a")
if GFL==2: spin("0b","p0",ld0b,NZ,True)
e("s_barrier"); e(f"v_mov_b32 v{vT0}, 1"); e(f"v_lshlrev_b32 v{vT3}, 8, v0")
ld0=f"buffer_load_dword v{vPOLL}, v{vT8}, s[{sDBG}:{sDBG+3}], 0 offen sc1"
if GFL: vm.op("at",f"buffer_store_dword v{vONE}, v{vFS}, s[{sWS}:{sWS+3}], 0 offen sc1"); vm.op("p0",ld0) if GFL==1 else None
else: vm.op("at",f"buffer_atomic_add v{vT0}, v{vT3}, s[{sDBG}:{sDBG+3}], 0 offen sc0 sc1")
if opt("mw",3)==1:
    e(f"s_lshl_b32 s{sT0}, s{sTT}, 1"); e(f"s_add_u32 s{sT0}, s{sT0}, s{sTH}"); e(f"s_mul_i32 s{sT1}, s{sT0}, {98*128}"); e(f"s_mul_i32 s{sT0}, s{sT0}, {25*128}")
    e(f"v_lshlrev_b32 v{vT1}, 7, v{vL}"); e(f"v_add_u32 v{vT2}, s{sT1}, v{vT1}")
    vm.op("mw",f"global_load_dword v251, v{vT2}, s[{pW2s}:{pW2s+1}]")
    e(f"v_min_u32 v7, {33*128}, v{vT1}"); e(f"s_add_u32 s{sT1}, s{sT1}, 8192"); e(f"v_add_u32 v7, s{sT1}, v7"); e(f"v_min_u32 v{vT1}, {24*128}, v{vT1}")
    vm.op("mw",f"global_load_dword v251, v7, s[{pW2s}:{pW2s+1}]")
    vm.op("mw",f"buffer_load_dword v251, v{vT1}, s[{sWO}:{sWO+3}], s{sT0} offen")
ts("s",7); ts("m",1)
SE=opt("se",16)
def sent():
    o=[f"s_lshl4_add_u32 s{sSTB}, s{sW}, s{sJ}\n  s_lshl_b32 s{sSTB}, s{sSTB}, 11\n  s_add_u32 s{sSTB}, s{sSTB}, {WS_O}\n  s_add_u32 s{sSTB}, s{sSTB}, s{sBK}","\n  ".join(f"v_mov_b32 v{164+i}, -1" for i in range(4))]
    return o+[(lambda h=h: vm.op("h",f"buffer_store_dwordx4 v[164:167], v{vL16}, s[{sWS}:{sWS+3}], s{sSTB} offen offset:{h*1024} sc1")) for h in range(2)]
if SE:
    for x in sent(): do(x)
def gld(tag,dst,va,base,off,p="v"): vm.op(tag,f"global_load_dwordx4 {r(p,dst,4)}, v{va}, s[{base}:{base+1}] offset:{off} sc1")
def setb(b,src,off): return [f"s_add_u32 s{b}, s{src}, {off}", f"s_addc_u32 s{b+1}, s{src+1}, 0"]
def ldkv(kt,f): gld(f"kv{kt}",KV+16*(kt%4)+4*f,vL16,bKV,(kt%2)*4096-4096+f*1024)
def kvinit():
    o=[f"s_lshl_b32 s{sT1}, s{sW}, 16",f"s_add_u32 s{sT1}, s{sT1}, 4096"]+setb(bKV,pWS,f"s{sT1}")
    for kt in range(3):
        if kt==2: o+=setb(bKV,bKV,8192)
        o+=[(lambda kt=kt,f=f: ldkv(kt,f)) for f in range(4)]
    return o
ld1=f"buffer_load_dword v{vPOLL}, v{vT3}, s[{sDBG}:{sDBG+3}], 0 offen offset:128 sc1"
if GFL: ld1=f"buffer_load_dword v{vPOLL}, v{vFP}, s[{sWS}:{sWS+3}], 0 offen sc1"
PL=opt("pl",21); PC=opt("pc",24)
def h1c(ks,nm):
    if PW and ks==opt("pk",19): assert PL>ks; spin("0","p0",ld0,NZ,True)
    if ks==PC and not PW: spin(nm,"p1",ld1,None if GFL else 1,True)
def h1(ks,side,nm):
    if GFL and ks==opt("p0",9): side.insert(0,lambda: vm.op("p0",ld0))
    if ks==PL:
        if GFL and not PW: assert not side; spin("0","p0",ld0,NZ,True)
        side.insert(0,lambda: vm.op("p1",ld1))
    if ks==PC:
        assert not side
        if PW: spin(nm,"p1",ld1,None)
        ts("m",2)
        side+=[(lambda h=h: gld("kt",KT+4*h,vL16,pWS,h*1024)) for h in range(2)]+kvinit()
def trQ(c):
    for s_ in range(4):
        for h in range(2): lg.op(f"q{c}",f"ds_read_b64_tr_b16 {r('v',WF+16*(c%2)+4*s_+2*h,2)}, v{vTRB+2+s_//2} offset:{(s_%2)*RS+c*1024+h*256}")
if not NE: vm.wait("wq"); e("s_barrier")
trQ(0)
for c in range(7):
    lg.all()
    if c<6: trQ(c+1)
    if GFL and c==opt("ac",3)+2:
        if GFL==1: spin("0b","p0",ld0,NZ,True)
        if PW==1: e("s_barrier")
        vm.op("p1",ld1)
    if c==opt("ac",3) and not GFL:
        vm.wait("at"); e(f"v_readfirstlane_b32 s{sT0}, v{vT0}"); e(f"s_cmp_lg_u32 s{sT0}, 31"); e("s_cbranch_scc1 L_nogo")
        e(f"buffer_store_dword v{vONE}, v{vT3}, s[{sDBG}:{sDBG+3}], 0 offen offset:128 sc1")
        lab("L_nogo")
    for s_ in range(4): mfma(A0,WF+16*(c%2)+4*s_,16*c+4*s_,0 if c+s_==0 else None,pb="a")
if not GFL: vm.op("p1",ld1)
h1c(PC,"1b"); e("s_barrier"); side=[]; h1(PC,side,"1b")
while side: do(side.pop(0))
e("s_branch L_join"); tail.append("\n".join(L)); L=main; vm.q=qs
W0F=48; XF=144
def rdS(ks,t):
    c,s_=divmod(ks,4); sl=c%4
    if t==0:
        for h in range(2): lg.op(f"s{ks}",f"ds_read_b64_tr_b16 {r('v',W0F+4*(ks%2)+2*h,2)}, v{vTR0} offset:{(c if W7 else sl)*4096+s_*1024+h*256}")
    elif t<3: lg.op(f"s{ks}",f"ds_read_b128 {r('v',XF+8*(ks%2)+4*(t-1),4)}, v{(vXR,252)[t-1]+s_} offset:{sl*16384}")
    else:
        for h in range(2): lg.op(f"s{ks}",f"ds_read_b64_tr_b16 {r('v',WF+8*(ks%2)+4*(t-3)+2*h,2)}, v{vTRB+t-3} offset:{sl*16384+s_*2048+h*512}")
vm.wait("x0")
if GFL==2 and not ZE: zer("z2",z2)
ts("i"); ts("s",3); e("s_barrier"); e(f"v_lshlrev_b32 v{vT3}, 8, v0"); ts("m",1)
for t in range(5): rdS(0,t)
side=xdma(PD,True,True)
def warm():
    MW=opt("mw",3); n2,no,k=((50,38,3) if MW==2 else (19,5,1))
    o=[f"s_mov_b32 s4, s{pW2s}\n  s_and_b32 s5, s{pW2s+1}, 0xffff", f"s_mov_b32 s6, {1792*896}\n  s_mov_b32 s7, 0x20000",
       f"s_and_b32 s{sT0}, s{sTB}, 3\n  s_lshl2_add_u32 s{sT0}, s{sCB}, s{sT0}", f"s_mul_i32 s{sT0}, s{sT0}, 3\n  s_add_u32 s{sT0}, s{sT0}, s{sW}\n  s_sub_u32 s{sT0}, s{sT0}, 13"]
    if MW==3: o+=[f"s_lshr_b32 s{sT1}, s{sTB}, 2\n  s_lshl2_add_u32 s{sT0}, s{sT0}, s{sT1}\n  s_lshl1_add_u32 s{sT0}, s{sT0}, s{sTH}"]
    o+=[f"s_mul_i32 s{sT1}, s{sT0}, {n2*k*128}\n  s_mul_i32 s{sT0}, s{sT0}, {no*128}",
        f"s_cmp_eq_u32 s{sW}, 0\n  s_cselect_b32 s{sT1}, 0x4000000, s{sT1}\n  s_cselect_b32 s{sT0}, 0x4000000, s{sT0}",
        f"v_lshlrev_b32 v7, 7, v{vL}\n  v_mov_b32 v{vT2}, 0x4000000\n  v_cmp_gt_u32 vcc, {n2}, v{vL}\n  v_add_u32 v{vT0}, s{sT1}, v7\n  v_add_u32 v{vT1}, s{sT0}, v7\n  v_cndmask_b32 v{vT0}, v{vT2}, v{vT0}, vcc",
        f"v_cmp_gt_u32 vcc, {no}, v{vL}\n  s_mov_b32 s{sT0}, {n2*128}\n  s_mov_b32 s{sT1}, {n2*256}\n  v_cndmask_b32 v{vT1}, v{vT2}, v{vT1}, vcc"]
    o+=[(lambda x=x: vm.op("mw",f"buffer_load_dword v251, v{vT0}, s[4:7], {x} offen")) for x in ("0",f"s{sT0}",f"s{sT1}")[:k]]
    return o+[lambda: vm.op("mw",f"buffer_load_dword v251, v{vT1}, s[{sWO}:{sWO+3}], 0 offen")]
for ks in range(28):
    if ks==SE and SE: side+=sent()
    if ks==opt("mk",8) and opt("mw",3)>1: side+=warm()
    lg.wait(f"s{ks}")
    if (ks+1)%4==0 and ks<27:
        c=(ks+1)//4
        while side and c+PD<=7: do(side.pop(0))
        vm.wait(f"x{c}"); h1c(ks,"1"); e("s_barrier")
        if c in (1,3,5,6): ts("s",{1:4,3:5,5:6,6:7}[c])
        if c+PD<7: side+=xdma(c+PD,True,True)
    h1(ks,side,"1")
    for t in range(5):
        z=0 if ks==0 else None
        if t==0: mfma(A0,W0F+4*(ks%2),XF+8*(ks%2),z)
        else: mfma(B0+16*(t-1),WF+8*(ks%2)+4*((t-1)%2),XF+8*(ks%2)+4*((t-1)//2),z)
        if ks<27: rdS(ks+1,(3,4,0,1,2)[t])
        if side and (t>1 or ks>=PC): do(side.pop(0))
        if side and t==4: do(side.pop(0))
while side: do(side.pop(0))
lab("L_join")
ts("m",3); ts("s",8)
e(f"s_mul_i32 s{sT0}, s{sW}, {112*1024}"); e(f"s_lshl_b32 s{sT1}, s68, 12"); e(f"s_add_u32 s{sT0}, s{sT0}, s{sT1}"); e(f"s_add_u32 s{sT0}, s{sT0}, s{sBK}")
e(f"s_bitcmp0_b32 s{sW}, 0"); e(f"s_cselect_b32 s{sT1}, 1, -1"); e(f"s_mul_i32 s{sT1}, s{sT1}, {112*1024}"); e(f"s_add_u32 s{sT1}, s{sT1}, s{sT0}")
e(f"s_cmp_eq_u32 s{sSP}, 1"); e(f"s_cselect_b32 s{sT0}, {WS_SZ}, s{sT0}"); e(f"s_cselect_b32 s{sT1}, {WS_SZ}, s{sT1}")
e(f"s_mov_b32 s{sT2}, {f2u(math.log2(math.e)/math.sqrt(28))}")
for i in range(0 if SE else 4): e(f"v_mov_b32 v{252+i}, -1")
e(f"s_lshl_b32 s68, s{sW}, 15"); e(f"s_lshl_b32 s69, s{sJ}, 11"); e(f"s_add_u32 s68, s68, s69"); e(f"s_add_u32 s68, s68, {WS_O}"); e(f"s_add_u32 s68, s68, s{sBK}")
DH=opt("dh",3); late=[]
e(f"s_mov_b32 s{sSTB}, s68"); e(f"s_mov_b32 s{sST0}, s{sT0}"); e(f"s_mov_b32 s{sCOLB}, s{sT1}")
def sth(i,src,soff,off=0,inc=4):
    for h in range(2):
        f=lambda h=h: vm.op("h",f"buffer_store_dwordx4 {r('v',src+inc*h,4)}, v{vL16}, s[{sWS}:{sWS+3}], s{soff} offen offset:{off+h*1024} sc1")
        if DH>=i: late.append(f)
        else: f()
NS=0 if SE else 2
if not SE: sth(1,252,sSTB,0,0)
assert sT2%2==0
for i in range(0,16,2): e(f"v_pk_mul_f32 {r('v',A0+i,2)}, {r('v',A0+i,2)}, s[{sT2}:{sT2+1}] op_sel_hi:[1,0]")
pack(Q,A0)
for i in (6,7): e(f"v_cndmask_b32 v{Q+i}, v{Q+i}, 0, s[{sUP}:{sUP+1}]")
def mins(m,q):
    e(f"v_sub_f32 v{m}, 0, v{m}"); e(f"v_and_b32 v{vT0}, 0xffff0000, v{m}"); e(f"v_sub_f32 v{m}, v{m}, v{vT0}")
    e(f"v_and_b32 v{vT1}, 0xffff0000, v{m}"); e(f"v_sub_f32 v{m}, v{m}, v{vT1}")
    e(f"v_lshrrev_b32 v{vT0}, 16, v{vT0}"); e(f"v_or_b32 v{vT0}, v{vT0}, v{vT1}"); e(f"v_lshrrev_b32 v{m}, 16, v{m}")
    e(f"v_cndmask_b32 v{q+6}, v{q+6}, v{vT0}, s[{sUP}:{sUP+1}]"); e(f"v_cndmask_b32 v{q+7}, v{q+7}, v{m}, s[{sUP}:{sUP+1}]")
def halfmax(m):
    e(f"v_mov_b32 v{vT0}, v{m}"); e("s_nop 1"); e(f"v_permlane32_swap_b32 v{vT0}, v{m}"); e("s_nop 1"); e(f"v_max_f32 v{m}, v{m}, v{vT0}")
pack(40,B0,True); st2("h",40,sT0)
vm.wait("kt")
mfma(S+16,KT,Q,0); mfma(S+16,KT+4,Q+4)
pack(8,B0+16,True); sth(3,8,sST0,2048)
e(f"s_lshl_b32 s{sT0}, s{sW}, 11"); e(f"s_add_u32 s{sT0}, s{sT0}, {QX}"); e(f"v_add_u32 v{vT3}, s{sT0}, v{vL16}")
e(f"v_max3_f32 v{vT2}, v{S+16}, v{S+17}, v{S+18}")
for i in range(3,15,2): e(f"v_max3_f32 v{vT2}, v{vT2}, v{S+16+i}, v{S+17+i}")
e(f"v_max_f32 v{vT2}, v{vT2}, v{S+31}")
halfmax(vT2); mins(vT2,Q)
e(f"ds_write_b128 v{vT3}, {r('v',Q,4)}"); e(f"ds_write_b128 v{vT3}, {r('v',Q+4,4)} offset:1024")
pack(16,B0+32,True); sth(2,16,sCOLB); pack(KT,B0+48,True); sth(2,KT,sCOLB,2048)
for i in range(1,4):
    e(f"s_add_u32 s{sT0}, s{sW}, {i}"); e(f"s_and_b32 s{sT0}, s{sT0}, 3"); e(f"s_lshl_b32 s{sT0}, s{sT0}, 11"); e(f"s_add_u32 s{sT0}, s{sT0}, {QX}")
    e(f"v_add_u32 v{vT0+i}, s{sT0}, v{vL16}")
e("s_waitcnt lgkmcnt(0)"); e("s_barrier")
for i in range(1,4):
    for h in range(2): e(f"ds_read_b128 {r('v',Q+8*i+4*h,4)}, v{vT0+i} offset:{h*1024}")
lab("L_attn")
if ROT!=1: rot7()
for x in setb(4,pWS,f"s{sHO}")+setb(6,pW2s,f"s{sW2O}"): e(x)
def rotg(g,pr):
    if g==0: return [f"s_mov_b32 s{pr}, s{sROT}"]
    return [f"s_add_u32 s{pr}, s{pr}, 1", f"s_cmp_eq_u32 s{pr}, 7\n  s_cselect_b32 s{pr}, 0, s{pr}"]
def dmaw2(step):
    o=[f"s_add_u32 m0, s{sRW}, {(step%14)*2048}"]
    o+= rotg(step//4,8)+[f"s_mul_i32 s9, s8, {64*896}"]+setb(bW2,6,"s9") if step%4==0 else setb(bW2,bW2,32*896)
    return o+[(lambda i=i: vm.op(f"d{step+i//2}",f"global_load_lds_dwordx4 v{vD3+i}, s[{bW2}:{bW2+1}] offset:{i*1024}")) for i in range(4)]
def dmawo(step):
    hd=(step-28)//2
    o=[f"s_add_u32 m0, s{sRW}, {(step%14)*2048}", f"s_add_u32 s{sT2}, s{sWOO}, {hd*28*896}"]
    return o+[(lambda i=i: vm.op(f"d{step+i//2}",f"buffer_load_dwordx4 v{vD3+i}, s[{sWO}:{sWO+3}], s{sT2} offen offset:{i*1024} lds")) for i in range(4)]
def qk(t,h): mfma(S+16*(t%2),KV+16*((t//4)%4)+4*h,Q+8*(t%4)+4*h,0 if h==0 else None)
def pv(t,h): mfma(O+16*(t%4),KV+16*((t//4)%4)+8+4*h,P+4*h,0 if (t<4 and h==0) else None)
def grp(t,g):
    s=S+16*(t%2)+4*g
    for i in range(4): e(f"v_exp_f32 v{s+i}, v{s+i}")
    for i in range(2): e(f"v_cvt_pk_bf16_f32 v{P+2*g+i}, v{s+2*i}, v{s+2*i+1}")
vm.wait("kv0")
ts()
qk(0,0); qk(0,1)
e(f"v_and_b32 v{vT1}, 31, v{vL}"); e(f"v_lshlrev_b32 v{vT1}, 2, v{vT1}"); e(f"v_mul_u32_u24 v{vT2}, 896, v{vL}")
e(f"s_lshr_b32 s{sT0}, s{sW}, 1"); e(f"s_lshl_b32 s{sT0}, s{sT0}, 7"); e(f"v_xor_b32 v{vT0}, s{sT0}, v{vT1}"); e(f"v_xor_b32 v{vT3}, 0x80, v{vT0}")
e("s_waitcnt lgkmcnt(0)"); e("s_nop 3")
fixed={}
for kt in range(16):
    if kt+3<16:
        if (kt+3)%2==0:
            a=setb(bKV,bKV,8192); fixed[(4*kt,1)]=a[0]+"\n  "+a[1]
        for f in range(4): fixed[(4*kt+1,f)]=(lambda kt=kt,f=f: ldkv(kt+3,f))
    if kt<15: fixed[(4*kt+2,3)]=(lambda kt=kt: vm.wait(f"kv{kt+1}"))
ld2=f"buffer_load_dword v{vPOLL}, v{vZ}, s[{sWS}:{sWS+3}], s{sCNT} offen sc1"
SG=opt("sg",14); D0=opt("d0",4 if opt("ev",0) else 10); H0=opt("h0",30)
fifo=[]
def carry(lst):
    o=[]; i=0
    while i<len(lst):
        if isinstance(lst[i],str) and i+1<len(lst) and isinstance(lst[i+1],str) and lst[i+1].startswith("s_addc"): o.append(lst[i]+"\n  "+lst[i+1]); i+=2
        else: o.append(lst[i]); i+=1
    return o
def pace(lst,t0,t1):
    n=sum(callable(x) for x in lst); o=[]; i=0
    for x in lst:
        if callable(x): o.append((4*t0+int(i*4*(t1-t0)/n),x)); i+=1
        else: o.append((0,x))
    return o
def hloads():
    o=[]
    for ks in range(28):
        if ks%4==0: o+=rotg(ks//4,10)+["s_lshl_b32 s11, s10, 12"]+setb(bH,4,"s11")
        for u in range(2): o.append(lambda ks=ks,u=u: gld(f"h{ks}",(ks*2+u)*4,vHU+u,bH,(ks%4)*1024,"a"))
    return o
def gloads():
    o=[f"s_add_u32 s{sT2}, s{sBK}, {WS_G}", f"s_lshl_b32 s{sT0}, s{sTH}, 8", f"s_add_u32 s{sT0}, s{sT0}, s{sT2}",
       f"s_lshl_b32 s{sT1}, s{sW}, 7", f"s_add_u32 s{sT1}, s{sT1}, s{sT2}"]
    o+=[lambda: vm.op("g",f"buffer_load_dword v{vGO}, v{vT1}, s[{sWS}:{sWS+3}], s{sT1} offen sc1")]
    o+=[(lambda u=u: vm.op("g",f"buffer_load_dword v{vG+u}, v{(vT0,vT3)[u]}, s[{sWS}:{sWS+3}], s{sT0} offen sc1")) for u in range(2)]
    return o
PF=opt("pf",2); vR=252 if PF==2 else vT0
def radr(vT0=vT0):
    o=[]
    for i in range(1,4): o+=[f"s_add_u32 s{sT0}, s{sW}, {i}",f"s_and_b32 s{sT0}, s{sT0}, 3",f"s_mul_i32 s{sT0}, s{sT0}, 12288",f"s_add_u32 s{sT0}, s{sT0}, {RED+(i-1)*4096}",f"v_add_u32 v{vT0+i}, s{sT0}, v{vL16}"]
    return o+[f"s_mul_i32 s{sT0}, s{sW}, 12288",f"s_add_u32 s{sT0}, s{sT0}, {RED}",f"v_add_u32 v{vT0}, s{sT0}, v{vL16}"]
def mid(l):
    if PF!=2: return l
    assert SE and len(l)>=5 and not EV
    o=[]; x=radr(252)
    for y in l: o+=[y]+x[:4]; x=x[4:]
    return o
NP=opt("np",6); NB=5
def wloc(st):
    if st<4: return ("a",224+8*st)
    if st<NP: return ("v",8+8*(st-4))
    if st<28: return ("v",WG+8*((st-NP)%NB))
    return ("a",8*(st-28))
def tr3(st,t,h):
    assert vm.cnt[f"d{st}"]==2 and vm.n(f"d{st}") is None
    p,b_=wloc(st)
    lg.op(f"w{st}",f"ds_read_b64_tr_b16 {r(p,b_+4*t+2*h,2)}, v{vTR3+t} offset:{(st%14)*2048+h*1024}")
def early():
    o=[]
    for s2 in range(0,NP,2):
        y=[(lambda st=st,t=t,h=h: tr3(st,t,h)) for st in (s2,s2+1) for t in range(2) for h in range(2)]
        if opt("rd",2)==2: y=[(lambda a=y[i],b=y[i+1]: (a(),b())) for i in range(0,len(y),2)]
        o+=[lambda s2=s2,y0=y[0]: (vm.wait(f"d{s2+1}"),chk45() if s2>=4 else None,y0())]+y[1:]
        x=carry(dmaw2(14+s2)); o+=x[:-4]+[lambda s2=s2,x0=x[-4]: (lg.wait(f"w{s2+1}"),x0())]+x[-3:]
    return o
class U:
    def __init__(s,f): s.f=f
    def __call__(s): s.f()
def chk45(): assert vm.n("h") is None
def even():
    G=[]; RD=opt("rd",2)
    for k in range(7+NP//2):
        x=carry(dmaw2(2*k)); pre=x[:-4]; s2=2*(k-7+NP//2)
        y=[(lambda st=st,t=t,h=h: tr3(st,t,h)) for st in (s2,s2+1) for t in range(2) for h in range(2)] if 0<=s2<NP else []
        if y: y[0]=(lambda s2=s2,y0=y[0]: (vm.wait(f"d{s2+1}"),chk45() if s2>=4 else None,y0()))
        if RD==2: y=[(lambda a=y[i],b=y[i+1]: (a(),b())) for i in range(0,len(y),2)]
        if k>=7: x[-4]=(lambda x0=x[-4],k=k: (lg.wait(f"w{2*(k-7)+1}"),x0()))
        for i in range(4):
            n=len(y)//4
            G.append((pre if i==0 else [])+[x[-4+i]]+[U(f) for f in y[i*n:(i+1)*n]])
    D1=opt("d2",H0-1)
    G=[(4*D0+int(i*4*(D1-D0)/len(G)),g) for i,g in enumerate(G)]+[(tm,[x]) for tm,x in pace(late[NS:]+late[:NS],0,opt("l1",8))]
    G.sort(key=lambda a:a[0])
    return [(tm if callable(x) and not isinstance(x,U) else 0,x) for tm,g in G for x in g]
EV=opt("ev",0)
for t in range(64):
    if t==0 and EV: fifo+=even()
    if t==SG: assert "h" in vm.seen and not any(x in late for _,x in fifo)
    if t==0 and late and not EV: fifo+=pace(mid(late[NS:]+late[:NS]),0,opt("l1",8))
    if t in (0,6,8,16,24,28,36,48,63): ts("a")
    if t==SG: fifo=[(0,lambda: vm.wait("h")), (0,lambda: vm.op("s2",f"buffer_atomic_add v{vONE}, v{vSIG}, s[{sWS}:{sWS+3}], s{sCNT} offen sc1"))]+fifo
    if t==D0 and not EV: fifo+=pace(sum([carry(dmaw2(s)) for s in range(0,14,2)],[]),D0,opt("d1",22))+pace(early(),opt("d1",22),H0-1)
    if t==H0-5: fifo=[(0,lambda: vm.op("p2",ld2))]+fifo
    if t==H0: fifo+=pace([lambda: spin("2","p2",ld2,64)]+(gloads()+carry(hloads()) if opt("gl",1) else carry(hloads())+gloads()),H0,opt("h1",62))
    ms=[(lambda: qk(t+1,0)) if t<63 else None,(lambda: qk(t+1,1)) if t<63 else None,(lambda: pv(t-1,1)) if t>0 else None,lambda: pv(t,0)]
    for g in range(4):
        if ms[g]:
            ms[g]()
            if (t,g) in fixed: do(fixed[(t,g)])
            elif fifo and fifo[0][0]<=4*t+g:
                x=fifo.pop(0)[1]; do(x)
                if isinstance(x,str) and fifo and isinstance(fifo[0][1],str) and opt("m2",1): do(fifo.pop(0)[1])
        grp(t,g)
print("fifo left",len(fifo),file=sys.stderr)
while fifo: do(fifo.pop(0)[1])
e("s_nop 1"); pv(63,1)
ts()
PKF=opt("pk2",1)
def add2(d,a,b,ks,pk=1):
    if not (PKF and pk): return [f"v_add_f32 v{d+k}, v{a+k}, v{b+k}" for k in ks]
    return [f"v_pk_add_f32 {r('v',d+k,2)}, {r('v',a+k,2)}, {r('v',b+k,2)}" for k in ks if k%2==0]
def mul2(d,g,pk=0):
    if not (PKF and pk): return [f"v_mul_f32 v{d+k}, v{g}, v{d+k}" for k in range(16)]
    return [f"v_pk_mul_f32 {r('v',d+k,2)}, {r('v',d+k,2)}, {r('v',g&~1,2)} op_sel:[0,{g&1}] op_sel_hi:[1,{g&1}]" for k in range(0,16,2)]
red=[]
def A(x): red.append(x)
main=L; L=[]
for i in range(1,4):
    e(f"s_add_u32 s{sT0}, s{sW}, {i}"); e(f"s_and_b32 s{sT0}, s{sT0}, 3"); e(f"s_mul_i32 s{sT0}, s{sT0}, 12288"); e(f"s_add_u32 s{sT0}, s{sT0}, {RED+(i-1)*4096}")
    e(f"v_add_u32 v{vT0+i}, s{sT0}, v{vL16}")
e(f"v_add_f32 v7, v{O+12}, v{O+28}"); e(f"v_add_f32 v7, v7, v{O+44}"); e(f"v_add_f32 v7, v7, v{O+60}")
e(f"v_cmp_ngt_f32 vcc, {f2u(2.0**40 if not FORCE_FB else -1.0)}, v7"); e(f"s_and_b64 vcc, vcc, s[{sUP}:{sUP+1}]")
e(f"s_cselect_b32 s{sT1}, 1.0, 0"); e(f"v_mov_b32 v7, s{sT1}")
for q in range(4): e(f"v_cndmask_b32 v{O+16*q+15}, v{O+16*q+15}, v7, s[{sUP}:{sUP+1}]")
e(f"s_mul_i32 s{sT0}, s{sW}, 12288"); e(f"s_add_u32 s{sT0}, s{sT0}, {RED}"); e(f"v_add_u32 v{vT0}, s{sT0}, v{vL16}")
pre=[x.strip() for x in L]; L=main
if PF==1:
    A(pre[:7]); A(pre[7:15]); A(pre[-3:]+["s_nop 3"]); A(["\n  ".join(pre[15:22])]); A(pre[22:-3])
elif PF==0:
    for x in pre: e(x)
else: assert "\n  ".join(pre[:15]+pre[-3:])=="\n  ".join(radr())
W=[(i,q) for i in range(1,4) for q in range(4)]
if PF==2: W=[(1,0),(1,1),(1,2),(2,0),(2,1),(2,2),(1,3),(2,3),(3,0),(3,1),(3,2),(3,3)]
for n,(i,q) in enumerate(W):
    A([lambda i=i,q=q: lg.op("rw",f"ds_write_b128 v{vR+i}, {r('v',O+16*i+4*q,4)} offset:{q*1024}")]+((["\n  ".join(pre[15:22])] if n==3 else pre[22:-3] if n==4 else []) if PF==2 else []))
A([lambda: lg.wait("rw"),"s_barrier"])
for i in range(0,12,2): A([(lambda i=i+k: lg.op(f"rr{i//4}",f"ds_read_b128 {r('v',O+16+4*i,4)}, v{vR} offset:{i*1024}")) for k in range(2)])
V=[]
for i in range(3): V+=[lambda i=i: lg.wait(f"rr{i}")]+add2(O,O,O+16+16*i,(12,15,13,14,*range(12)),0)
V+=[lambda: vm.wait("g"), f"v_readlane_b32 s{sT0}, v{O+15}, 32\n  v_rcp_f32 v{vT0}, v{O+12}\n  s_cmp_lg_u32 s{sT0}, 0\n  s_cbranch_scc1 L_fb\nL_fbok:",
    f"v_mul_f32 v{vT0}, v{vT0}, v{vGO}", f"v_mov_b32 v{vT1}, v{vT0}\n  s_nop 1\n  v_permlane32_swap_b32 v{vT0}, v{vT1}\n  s_nop 1"]
V+=mul2(O,vT1)
V+=[f"v_cvt_pk_bf16_f32 v{Q+i}, v{O+2*i}, v{O+2*i+1}" for i in range(8)]
V+=[f"v_cndmask_b32 v{Q+i}, v{Q+i}, 0, s[{sUP}:{sUP+1}]" for i in (6,7)]
V+=[lambda: st2("o",Q,68), lambda: ts()]
V+=[f"s_cmp_eq_u32 s{sCB}, 7\n  s_cbranch_scc1 L_idle"]
tail.append("L_idle:\n  s_waitcnt vmcnt(0) lgkmcnt(0)\n  s_branch L_fin")
FG=opt("fg",6)
for i in range(0,len(V),FG): A(V[i:i+FG])
O0=opt("o0",23); R0=opt("r0",0)
dq=[]; rq=[(st,t,h) for st in range(NP,36) for t in range(2) for h in range(2)]; nd=14+NP
old=[(lambda s=s,u=u: gld(f"o{u}",OF+(s*2+u)*4,vOU+u,bH,s*1024-4096)) for u in (1,0) for s in range(8)]
def canread(x,st):
    return vm.cnt.get(f"d{x}",0)==2 and (x-NB<max(st,NP) if x<28 else st>=8)
for st in range(28):
    if st in (0,4,10,16,22): ts("p")
    if st==O0: assert not red; dq=carry(setb(bH,pWS,f"s{sOO}"))+old+dq
    vm.wait(f"h{st}")
    assert not rq or rq[0][0]>st
    lg.wait(f"w{st}")
    k=0
    for u in (1,0):
        for t in (1,0):
            p,b_=wloc(st)
            mfma(AB+32*u+16*t,b_+4*t,(st*2+u)*4,0 if st==0 else None,pa=p,pb="a")
            for _ in range(0 if st<R0 else (opt('rr',1) if red else 2)):
                if rq and canread(rq[0][0],st) and (rq[0][0]<=st+2 or vm.n(f"d{rq[0][0]}") is None or vm.n(f"d{rq[0][0]}")>=opt("dl",8)):
                    vm.wait(f"d{rq[0][0]}"); tr3(*rq.pop(0))
            if nd<36 and (not rq or rq[0][0]>nd-13) and lg.n(f"w{nd-13}")!=0:
                x=carry(dmaw2(nd) if nd<28 else dmawo(nd)); dq+=x[:-4]+[lambda nd=nd: lg.wait(f"w{nd-13}")]+x[-4:]; nd+=2
            if red:
                for x in red.pop(0): do(x)
            for _ in range(1 if red else 2):
                if dq and (not callable(dq[0]) or k in ((0,1,2,3),(0,1,2,3),(0,2),(0,1,2))[opt("dr",1)]): x=dq.pop(0); do(x)
                if opt("dr",1) and callable(x): break
            k+=1
print("left dq",len(dq),"rq",len(rq),"nd",nd,file=sys.stderr); assert nd==36
while dq: do(dq.pop(0))
while rq: vm.wait(f"d{rq[0][0]}"); tr3(*rq.pop(0))
for u in range(2): e(f"v_sub_f32 v{vG+u}, 1.0, v{vG+u}")
for i in range(1,4):
    e(f"s_xor_b32 s{sT0}, s{sW}, {i}"); e(f"s_mul_i32 s{sT0}, s{sT0}, {RS}")
    e(f"v_add_u32 v{vT0+i}, s{sT0}, v{vL16}")
e(f"v_add_u32 v{vT0}, s{sRW}, v{vL16}"); e("s_mov_b32 s69, 0")
def scl(q): return mul2(AB+16*q,vG+q//2,q==3)
ts("p")
IL=opt("il",0)
for x in scl(3): e(x)
if IL:
    for x in mul2(AB+32,vG+1,1): e(x)
def ochk(u):
    R=[OF+(s*2+u)*4+i for s in range(8) for i in range(4)]
    o=[f"v_max3_u32 v11, v{R[0]}, v{R[1]}, v{R[2]}",f"v_max3_u32 v12, v{R[3]}, v{R[4]}, v{R[5]}"]
    for i in range(6,32,2): o.append(f"v_max3_u32 v{11+(i//2)%2}, v{11+(i//2)%2}, v{R[i]}, v{R[i+1]}")
    return o+["v_max_u32 v11, v11, v12","v_cmp_eq_u32 vcc, -1, v11"]
def obr(u):
    global L
    e(f"s_cbranch_vccnz L_oretry{u}"); lab(f"L_ook{u}")
    m=L; L=[]; q_=list(vm.q); lab(f"L_oretry{u}"); e("s_add_u32 s69, s69, 1"); e("s_cmp_ge_u32 s69, 0x10000"); e(f"s_cbranch_scc1 L_ook{u}")
    for x in old[8*(1-u):8*(2-u)]: x()
    vm.all()
    for x in ochk(u): e(x)
    e("s_nop 1"); e(f"s_cbranch_vccnz L_oretry{u}"); e(f"s_branch L_ook{u}"); tail.append("\n".join(L)); L=m; vm.q=q_
vm.wait("o1")
for x in ochk(1): e(x)
lg.all(); obr(1); c0=ochk(0)
ts("mp")
fin=[f"v_and_b32 v7, 31, v{vL}",f"v_mul_u32_u24 v7, 896, v7",f"v_lshrrev_b32 v{vPOLL}, 5, v{vL}",f"v_lshl_add_u32 v7, v{vPOLL}, 4, v7",
     f"s_lshl_b32 s{sT0}, s{sTB}, 2",f"s_lshl_b32 s{sT1}, s{sTH}, 1",f"s_add_u32 s{sT0}, s{sT0}, s{sT1}",f"s_lshr_b32 s{sT1}, s{sW}, 1",f"s_add_u32 s{sT0}, s{sT0}, s{sT1}",
     f"s_mul_i32 s{sT0}, s{sT0}, {32*896}",f"s_lshl_b32 s{sT1}, s{sCB}, 7",f"s_add_u32 s{sT0}, s{sT0}, s{sT1}",f"s_and_b32 s{sT1}, s{sW}, 1",f"s_lshl_b32 s{sT1}, s{sT1}, 6",f"s_add_u32 s{sT0}, s{sT0}, s{sT1}"]
OT=opt("ot",1)
if OT:
    fin=[f"v_and_b32 v8, 31, v{vL}",f"v_mul_u32_u24 v8, 80, v8",f"v_lshrrev_b32 v9, 5, v{vL}",f"v_lshl_add_u32 v8, v9, 3, v8",f"v_add_u32 v8, s{sRW}, v8",
         f"v_lshrrev_b32 v9, 2, v{vL}",f"v_and_b32 v10, 48, v{vL16}",f"v_mul_u32_u24 v7, 896, v9",f"v_mul_u32_u24 v9, 80, v9",f"v_add_u32 v7, v7, v10",f"v_add3_u32 v9, v9, v10, s{sRW}"]+fin[4:]+[f"s_add_u32 s{sT1}, s{sT0}, {16*896}"]
if IL:
    seq=[3,2]*6+[3,1,3,1,2,1,2,1]+[0,1]*4+[0]*4; cn=[0]*4; F=scl(1)+scl(0)+fin; fin=[]
    def fw(q,k): lg.op("fw",f"ds_write_b128 v{vT0}, {r('v',AB+16*q+4*k,4)} offset:{(q-1)*4096+k*1024}")
    for i,q in enumerate(seq):
        t,u=q%2,q//2; s=cn[q]; cn[q]+=1
        mfma(AB+16*q,8*s+4*t,OF+(s*2+u)*4,None,pa="a")
        if 17<=i<25: fw(3 if i<21 else 2,(i-17)%4)
        if 9<=i<=12:
            if i==9: vm.wait("o0")
            for _ in range(5 if i==12 else 4): e(c0.pop(0))
            if i==12: e("s_nop 1"); obr(0)
        elif i<28:
            for _ in range(4):
                if F: e(F.pop(0))
        elif i<30:
            e("s_nop 4")
            if i==29:
                for k in range(4): fw(1,k)
        else:
            if i==30: lg.all(); e("s_barrier")
            for k in (range(8) if i==30 else range(8,12)): lg.op(f"fr{k//4}",f"ds_read_b128 {r('v',WG+4*k,4)}, v{vT0+1+k//4} offset:{k*1024}")
    assert not F and not c0
for q in (() if IL else (3,2,1,0)):
    t,u=q%2,q//2
    sc=scl(q-1) if q>0 else []
    for s in range(8):
        mfma(AB+16*q,8*s+4*t,OF+(s*2+u)*4,None,pa="a")
        if q>0:
            if s>=3 and s<7 and q<3: lg.op("fw",f"ds_write_b128 v{vT0}, {r('v',AB+16*(q+1)+4*(s-3),4)} offset:{q*4096+(s-3)*1024}")
            if q==2 and s>=4:
                if s==4: vm.wait("o0")
                for _ in range(5 if s==7 else 4): e(c0.pop(0))
                if s==7: assert not c0; e("s_nop 1"); obr(0)
                continue
            for _ in range(4 if s<4 else 3):
                if s<4:
                    if sc: e(sc.pop(0))
                elif fin: e(fin.pop(0))
        else:
            if s<2: e("s_nop 4")
            elif s<4:
                for k in range(2): lg.op("fw",f"ds_write_b128 v{vT0}, {r('v',AB+16+8*(s-2)+4*k,4)} offset:{(2*(s-2)+k)*1024}")
            elif s==5: lg.all(); e("s_barrier")
            if s>=5:
                for i in range(4*(s-5),4*(s-4)): lg.op(f"fr{i//4}",f"ds_read_b128 {r('v',WG+4*i,4)}, v{vT0+1+i//4} offset:{i*1024}")
ts("mp")
lg.wait("fr1")
for x in add2(WG,WG,WG+16,range(16)): e(x)
lg.wait("fr2")
if PKF: e("s_nop 7")
for x in add2(AB,AB,WG+32,range(16)): e(x)
assert not fin
OM=('','sc1','nt','sc0 sc1','sc1 nt')[opt('os',1)]
if OT:
    for g in range(4):
        for x in add2(AB,AB,WG,range(4*g,4*g+4)): e(x)
        for i in (2*g,2*g+1): e(f"v_cvt_pk_bf16_f32 v{Q+i}, v{AB+2*i}, v{AB+2*i+1}")
        e(f"ds_write_b64 v8, {r('v',Q+2*g,2)} offset:{16384+16*g}")
    for p in range(2): e(f"ds_read_b128 {r('v',Q+8+4*p,4)}, v9 offset:{16384+p*16*80}")
    for p in range(2): e(f"s_waitcnt lgkmcnt({1-p})"); e(f"buffer_store_dwordx4 {r('v',Q+8+4*p,4)}, v7, s[{sOUT}:{sOUT+3}], s{(sT0,sT1)[p]} offen {OM}")
else:
    for k in range(16): e(f"v_add_f32 v{AB+k}, v{AB+k}, v{WG+k}")
    pack(Q,AB); e("s_nop 1")
for p in range(0 if OT else 2):
    e(f"v_permlane32_swap_b32 v{Q+4*p}, v{Q+4*p+2}"); e(f"v_permlane32_swap_b32 v{Q+4*p+1}, v{Q+4*p+3}")
    e(f"buffer_store_dwordx4 {r('v',Q+4*p,4)}, v7, s[{sOUT}:{sOUT+3}], s{sT0} offen offset:{p*32} {OM}")
ts("p"); lab("L_fin")
if TS:
    e("s_waitcnt vmcnt(0)"); ts(); e("s_waitcnt lgkmcnt(0)")
    for i in range(tsn[0]): e(f"v_writelane_b32 v7, s{sTS+2*i}, {i}")
    e(f"s_lshl_b32 s{sT0}, s91, 2"); e(f"s_add_u32 s{sT0}, s{sT0}, s{sW}"); e(f"s_lshl_b32 s{sT0}, s{sT0}, 8"); e(f"s_add_u32 s{sT0}, s{sT0}, {WS_T}")
    e(f"v_lshlrev_b32 v{vT0}, 2, v{vL}"); e(f"buffer_store_dword v7, v{vT0}, s[{sWS}:{sWS+3}], s{sT0} offen")
e("s_endpgm")
for t in tail: L.append(t)
lab("L_fb")
e(f"s_cmp_lg_u32 s{sPASS}, 0"); e("s_cbranch_scc1 L_fbok"); e(f"s_mov_b32 s{sPASS}, 1"); e("s_waitcnt vmcnt(0) lgkmcnt(0)"); e("s_nop 15")
M=P
for x in (sSTB,sST0,sCOLB): e(f"s_mov_b32 s{x}, {WS_SZ}")
for q in range(4):
    e(f"v_mov_b32 v{M+q}, 0xff800000")
    for i in (6,7): e(f"v_cndmask_b32 v{Q+8*q+i}, v{Q+8*q+i}, 0, s[{sUP}:{sUP+1}]")
e(f"s_lshl_b32 s{sT3}, s{sW}, 16"); e(f"s_mov_b32 s{sT2}, 16")
lab("L_fbl")
for h in range(2): e(f"buffer_load_dwordx4 {r('v',KT+4*h,4)}, v{vL16}, s[{sWS}:{sWS+3}], s{sT3} offen offset:{h*1024} sc1")
e("s_waitcnt vmcnt(0)")
for q in range(4):
    mfma(S,KT,Q+8*q,0); mfma(S,KT+4,Q+8*q+4); e("s_nop 15")
    for i in range(0,16,2): e(f"v_max3_f32 v{M+q}, v{M+q}, v{S+i}, v{S+i+1}")
e(f"s_add_u32 s{sT3}, s{sT3}, 4096"); e(f"s_sub_u32 s{sT2}, s{sT2}, 1"); e(f"s_cmp_lg_u32 s{sT2}, 0"); e("s_cbranch_scc1 L_fbl")
e("s_barrier")
e(f"v_lshlrev_b32 v{vT2}, 2, v{vL}")
for q in range(4):
    halfmax(M+q)
    e(f"s_add_u32 s{sT0}, s{sW}, {q}"); e(f"s_and_b32 s{sT0}, s{sT0}, 3"); e(f"s_lshl_b32 s{sT0}, s{sT0}, 10"); e(f"s_add_u32 s{sT0}, s{sT0}, {RED}")
    e(f"v_add_u32 v{S+q}, s{sT0}, v{vT2}"); e(f"ds_write_b32 v{S+q}, v{M+q} offset:{q*256}")
e("s_waitcnt lgkmcnt(0)"); e("s_barrier")
for q in range(4):
    for i in range(4): e(f"ds_read_b32 v{S+4+i}, v{S+q} offset:{i*256}")
    e("s_waitcnt lgkmcnt(0)"); e(f"v_max3_f32 v{M+q}, v{S+4}, v{S+5}, v{S+6}"); e(f"v_max_f32 v{M+q}, v{M+q}, v{S+7}")
    mins(M+q,Q+8*q)
for x in kvinit(): do(x)
e("s_waitcnt vmcnt(0)"); e("s_barrier"); e("s_branch L_attn")
lab("L_end"); e("s_endpgm")
L.append(f""".section .rodata,"a"
.p2align 6
.amdhsa_kernel {NAME}_kernel
  .amdhsa_next_free_vgpr 512
  .amdhsa_next_free_sgpr 102
  .amdhsa_accum_offset 256
  .amdhsa_group_segment_fixed_size 0
  .amdhsa_kernarg_size 96
  .amdhsa_user_sgpr_count 2
  .amdhsa_user_sgpr_kernarg_segment_ptr 1
  .amdhsa_system_sgpr_workgroup_id_x 1
.end_amdhsa_kernel""")
out=[a for a in sys.argv[1:] if a.endswith(".s")]
open(out[0] if out else f"cdna_kernels/{NAME}.s","w").write("\n".join(L)+"\n")
```
